```python
import torch

def _softmax(x, axis=-1):
    return torch.softmax(x, dim=axis)
def _gelu(x):
    return torch.nn.functional.gelu(x, approximate="tanh")
def _silu(x):
    return torch.nn.functional.silu(x)
def _sigmoid(x):
    return torch.sigmoid(x)
def _layernorm(x, axis=-1, eps=1e-5):
    m = x.mean(dim=axis, keepdim=True)
    v = x.var(dim=axis, keepdim=True, unbiased=False)
    return (x - m) / torch.sqrt(v + eps)
def _scatter_add(tgt, idx, src, axis=0):
    return tgt.clone().index_add_(axis, idx, src)
def _segment_sum(src, seg, n):
    out = torch.zeros((n,) + src.shape[1:], dtype=src.dtype)
    return out.index_add_(0, seg, src)
def _pad(x, pw):
    flat = tuple(v for pair in reversed(pw) for v in pair)
    return torch.nn.functional.pad(x, flat)

kernel_name = 'gather_scatter__cheap_equivariant_egnn__graph'

def setup_inputs():

    _w = (lambda a: (lambda t: t.to(torch.bfloat16) if t.is_floating_point() else t)(torch.as_tensor(a)))
    N, deg, D, De = 25000, 32, 64, max(4, 1)
    E = N * deg
    return {
        "h": _w((lambda *s: torch.randn(*s, dtype=torch.bfloat16) * 0.2)(N, D)),
        "pos": _w((lambda *s: torch.randn(*s, dtype=torch.bfloat16) * 0.8)(N, 3)),
        "e_attr": _w((lambda *s: torch.randn(*s, dtype=torch.bfloat16) * 0.8)(E, De)),
        "src": _w((lambda lo, hi, *s: torch.randint(lo, hi, s))(0, N, E).to(torch.int64)),
        "dst": _w((lambda lo, hi, *s: torch.randint(lo, hi, s))(0, N, E).to(torch.int64)),
        "w_e": _w(0.1 * (lambda *s: torch.randn(*s, dtype=torch.bfloat16) * 0.8)(2 * D + 1 + De, D)),
        "w_x": _w(0.1 * (lambda *s: torch.randn(*s, dtype=torch.bfloat16) * 0.2)(D, 1)),
        "w_h": _w(0.1 * (lambda *s: torch.randn(*s, dtype=torch.bfloat16) * 0.2)(2 * D, D)),
    }

def reference(h, pos, e_attr, src, dst, w_e, w_x, w_h):
    N, D = h.shape[0], h.shape[1]
    diff = pos[dst] - pos[src]
    dist2 = torch.sum(diff * diff, axis=-1, keepdims=True)
    e_in = torch.concatenate([h[dst], h[src], dist2, e_attr], axis=-1)
    m_ij = _silu(e_in @ w_e)
    coord_scale = m_ij @ w_x
    pos_new = pos + _segment_sum(diff * coord_scale, dst, N)
    m_i = _segment_sum(m_ij, dst, N)
    h_new = h + _silu(torch.concatenate([h, m_i], axis=-1) @ w_h)
    return h_new, pos_new
```

```python
import re

TRANS = ("v_exp_f32", "v_rcp_f32", "v_log_f32", "v_rsq_f32", "v_sqrt_f32", "v_exp_f16", "v_rcp_f16")
REG_RE = re.compile(r"^(-?\|?)([vsa])(\d+)\|?$")
RNG_RE = re.compile(r"^(-?\|?)([vsa])\[(\d+):(\d+)\]\|?$")

def regs_of(op):
    op = op.strip()
    m = REG_RE.match(op)
    if m: return [(m.group(2), int(m.group(3)))]
    m = RNG_RE.match(op)
    if m: return [(m.group(2), i) for i in range(int(m.group(3)), int(m.group(4)) + 1)]
    if op == "vcc": return [("s", 106), ("s", 107)]
    if op == "vcc_lo": return [("s", 106)]
    if op == "vcc_hi": return [("s", 107)]
    if op == "exec": return [("s", 126), ("s", 127)]
    if op == "m0": return [("s", 124)]
    return []

class Ins:
    def __init__(self, text):
        self.text = text
        t = text.split(";")[0].strip()
        self.label = None
        self.mn = ""
        self.dst = []; self.src = []; self.srcA = []; self.srcB = []; self.srcC = []
        self.kind = "none"; self.states = 1
        if not t: self.states = 0; return
        if t.endswith(":"):
            self.label = t[:-1]; self.kind = "label"; self.states = 0; return
        if t.startswith("."):
            self.kind = "dir"; self.states = 0; return
        parts = t.split(None, 1)
        mn = parts[0]; self.mn = mn
        rest = parts[1] if len(parts) > 1 else ""
        ops = []; cur = ""; depth = 0
        for ch in rest:
            if ch in "[(": depth += 1
            if ch in "])": depth -= 1
            if ch == "," and depth == 0: ops.append(cur.strip()); cur = ""
            else: cur += ch
        if cur.strip(): ops.append(cur.strip())
        mods = ""
        if ops:
            last = ops[-1].split(None, 1)
            ops[-1] = last[0]
            mods = last[1] if len(last) > 1 else ""
        self.ops = ops; self.mods = mods
        R = [regs_of(o) for o in ops]
        allr = lambda xs: [r for x in xs for r in x]
        if mn.startswith("v_mfma"):
            self.kind = "mfma"; self.passes = 8 if "32x32x16" in mn else 4
            self.dst = R[0]; self.srcA = R[1]; self.srcB = R[2]; self.srcC = R[3]
            self.src = R[1] + R[2] + R[3]
        elif mn.startswith("v_"):
            base = mn.replace("_e32", "").replace("_e64", "").replace("_dpp", "").replace("_sdwa", "")
            self.kind = "trans" if base in TRANS else ("dot" if base.startswith("v_dot") else "valu")
            self.base = base
            if "permlane" in mn and "swap" in mn:
                self.dst = R[0] + R[1]; self.src = R[0] + R[1]
            elif base in ("v_add_co_u32", "v_sub_co_u32", "v_addc_co_u32"):
                self.dst = R[0] + R[1]; self.src = allr(R[2:])
            else:
                self.dst = R[0]; self.src = allr(R[1:])
                if base.startswith("v_fmac") or base.startswith("v_pk_fmac") or base.startswith("v_dot2c") or base == "v_writelane_b32":
                    self.src += R[0]
                if base == "v_cndmask_b32" and len(ops) == 3: self.src += regs_of("vcc")
            self.dpp = "_dpp" in mn or "row_" in mods or "quad_perm" in mods
            if self.kind == "dot":
                self.srcC = R[3] if len(R) > 3 else []
        elif mn.startswith("ds_"):
            self.kind = "ds"
            if mn.startswith("ds_read") or "rtn" in mn or "permute" in mn or "swizzle" in mn:
                self.dst = R[0]; self.src = allr(R[1:])
            else:
                self.src = allr(R)
        elif mn.startswith("buffer_") or mn.startswith("global_"):
            self.kind = "vmem"
            islds = re.search(r"\blds\b", mods) is not None
            self.lds = islds
            if "load" in mn and not islds:
                self.dst = R[0]; self.src = allr(R[1:])
                if "d16" in mn: self.src += R[0]
            else:
                self.src = allr(R)
                if islds: self.src += [("s", 124)]
            self.wide_store = ("store" in mn and (mn.endswith("x3") or mn.endswith("x4")))
            self.data = R[0] if "store" in mn else []
        elif mn.startswith("s_"):
            self.kind = "salu"
            if mn == "s_nop": self.states = int(ops[0], 0) + 1
            nod = ("s_cmp", "s_cbranch", "s_waitcnt", "s_barrier", "s_nop", "s_setprio", "s_branch", "s_endpgm", "s_bitcmp", "s_sleep")
            if any(mn.startswith(x) for x in nod): self.src = allr(R)
            else:
                self.dst = R[0] if R else []; self.src = allr(R[1:])
                if "saveexec" in mn: self.dst = self.dst + regs_of("exec")
            if mn.startswith("s_load") or mn.startswith("s_memtime") or mn.startswith("s_buffer_load"): self.kind = "smem"
        else:
            raise ValueError("unknown instr: " + text)

def isvalu(i): return i.kind in ("valu", "trans", "dot")

def need(p, c):
    n = 0
    pd = set(p.dst); cs = set(c.src); cd = set(c.dst)
    pdv = {r for r in pd if r[0] in "va"}; pds = {r for r in pd if r[0] == "s"}
    if isvalu(p):
        if c.kind == "mfma" and pdv & cs: n = max(n, 2)
        if p.kind == "trans" and c.kind != "trans" and pdv & cs: n = max(n, 1)
        if pds:
            if (isvalu(c) or c.kind == "mfma") and pds & cs:
                n = max(n, 4 if c.mn.startswith(("v_readlane", "v_writelane")) else 2)
            if c.kind == "vmem" and pds & cs: n = max(n, 5)
            if c.kind in ("salu", "smem") and pds & cs: n = max(n, 1)
            if ("s", 126) in pds: n = max(n, 5)
        if isvalu(c):
            if c.mn.startswith(("v_readlane", "v_readfirstlane")) and pdv & cs: n = max(n, 1)
            if getattr(c, "dpp", False) and pdv & set(regs_of(c.ops[1])): n = max(n, 2)
            if "permlane" in c.mn and pdv & cs: n = max(n, 2)
        if p.kind == "dot" and (pdv & (cs | cd)):
            if c.kind == "dot" and c.base == p.base and not (pdv & set(regs_of(c.ops[1]) + regs_of(c.ops[2]))): pass
            else: n = max(n, 3)
        if "sdwa" in p.mn and "dst_sel:DWORD" not in p.mods and not p.mn.startswith("v_cmp") and isvalu(c) and pdv & (cs | cd): n = max(n, 1)
    if p.kind == "mfma":
        big = 12 if p.passes == 8 else 8
        if c.kind == "mfma":
            if pd & (set(c.srcA) | set(c.srcB)): n = max(n, big)
            if pd & set(c.srcC):
                if not (c.srcC == p.dst and c.passes == p.passes): n = max(n, 10 if p.passes == 8 else 6)
            elif pd & cd and not (c.dst == p.dst): n = max(n, big)
        elif c.kind in ("valu", "trans", "dot", "ds", "vmem"):
            if pd & (cs | cd): n = max(n, big)
            if isvalu(c) and set(p.srcC) & cd: n = max(n, 7 if p.passes == 8 else 3)
    if p.kind == "salu" and ("s", 124) in pd and c.kind == "vmem" and getattr(c, "lds", False): n = max(n, 1)
    if p.kind == "vmem" and getattr(p, "wide_store", False) and set(p.data) & cd:
        n = max(n, 2 if isvalu(c) else 1)
    return n

class Asm:
    def __init__(self):
        self.ins = []
        self.auto = True
    def __call__(self, text):
        for line in text.split("\n"):
            if line.strip() == "": continue
            i = Ins(line.strip())
            if self.auto and i.states: self._fix(i)
            self.ins.append(i)
    def _fix(self, c):
        d = 0; worst = 0
        for p in reversed(self.ins):
            if p.kind == "label" or p.mn in ("s_branch", "s_endpgm"):
                if p.mn in ("s_branch", "s_endpgm"): break
                continue
            if d >= 12: break
            n = need(p, c)
            if n > d: worst = max(worst, n - d)
            d += p.states
        while worst > 0:
            k = min(worst, 16)
            self.ins.append(Ins(f"s_nop {k-1}")); worst -= k
    def check_edges(self):
        lab = {i.label: k for k, i in enumerate(self.ins) if i.label}
        bad = []
        for k, b in enumerate(self.ins):
            if b.mn.startswith("s_cbranch") or b.mn == "s_branch":
                tgt = lab[b.ops[0]]
                prods = []; d = 0
                for p in reversed(self.ins[:k+1]):
                    if p is not b and p.mn in ("s_branch", "s_endpgm"): break
                    if p.states == 0: continue
                    prods.append((p, d)); d += p.states
                    if d > 13: break
                e = 0
                for c in self.ins[tgt:]:
                    if c.states == 0: continue
                    for p, dp in prods:
                        dist = dp + e
                        if need(p, c) > dist: bad.append((b.text, p.text, c.text, need(p, c), dist))
                    e += c.states
                    if e > 13 or c.mn in ("s_branch", "s_endpgm"): break
        return bad
    def text(self):
        out = []
        for i in self.ins:
            out.append(i.text if (i.kind in ("label", "dir")) else "    " + i.text)
        return "\n".join(out) + "\n"
```

```python
import sys, math, struct
from asmlib import Asm

NAME = "gather_scatter__cheap_equivariant_egnn__graph"
KN = NAME + "_kernel"
def f32bits(x): return struct.unpack("<I", struct.pack("<f", x))[0]
NLOG2E = f32bits(-math.log2(math.e)); NLN2 = f32bits(-math.log(2.0))
OPT = dict(a.split("=") for a in sys.argv[2:]) if len(sys.argv) > 2 else {}
def opt(k, d): return type(d)(OPT.get(k, d))
STAMP = opt("stamp", 0)

CH = 3128; CHB = CH * 12; CHS = opt('chs', 37632); NQ = CH // 4; NQ_LAST = (800000 - 255 * CH) // 4
WS_GRAN = 0x00A00000; WS_POSF = 0x00B00000; WS_ACC = 0x01000000; WS_STAMP = 0x08000000
GMUL = 10737; GMAGIC = 51201995
L_CUR = 0; L_FLAG = 64; L_EPOCH = 68; L_TBL = 0x100; L_IMG = 0x1100; L_GB = 0x5100
L_WH = L_GB + 8 * 8192
L_REC = L_WH + 16384
PADO = 128 * 98 + 384 * 16; PLANE = 18944; PO1 = PLANE // 256; PO2 = 2 * PO1
L_PAD = L_REC + PADO
LDS = L_REC + 3 * PLANE
L_STG = L_GB; L_HIST = L_GB + 37632; L_OFFS = L_HIST + 1024; L_WF = L_GB + 40960
assert LDS <= 163840 and PADO + 128 <= PLANE and L_GB % 256 == 0
PADW = (32767 << 7) | (7 << 3)
HUGE = 0x40000000
TAGK = 0x9E3779B9

D0 = 16; D1 = 32; T = 48; MP = 64; A2 = 72; A1 = 80; XR = 96
W2F = 100; BXA0 = 132; BXA1 = 136; BXB0 = 140; BXB1 = 144
ACCA0 = 148; ACCA1 = 164; ACCB0 = 180; ACCB1 = 196
COLC = 212; RDA = 216; TRA = 220; IMGB = 221; LANEQ = 222; LANEE = 223
WQ = 224; W2E = 228; ADE = 230; PS = 232; CURB = 235; HA = 236; PA = 237; PV = 238; CURL = 239
PD = 240; WX0 = 243; VAL = 244; IMGA = 246; S8 = 247; S16 = 248; ADQ = 249
ZERO = 250; D2 = 252; PIX = 253; WX1 = 254
LANE = 1; SW = 2; I12 = 3; I12H = 4; BPX = 5; FOUR = 6; TMP = 7; HB = 8
S_H = 8; S_POSF = 12; S_REC = 16; S_POS = 20; S_OUT = 24; S_ACC = 28; S_MASK = 32; S_HJ = 32
S_W = 64; S_B = 65; S_NA = 66; S_NB = 67; S_CA = 68; S_CB = 69
S_LO = 70; S_HI = 72; S_GM = 74; S_TBL = 75; S_TBLA = 76; S_TBLB = 77
S_NEXT = 78; S_END = 79; S_JUMP = 80; S_END2 = 81; S_PADB = 82; S_PADE = 83
S_REM = 84; S_TB = 85; S_GB = 86; S_WIN = 87; S_ROUND = 88; S_MORE = 89; S_T0 = 90; S_T1 = 91; S_T3 = 92
S_SEG = 93; S_ACCO = 94; S_FLIP = 95; S_WX = 96; S_SUB = 100

def vr(b, n): return f"v[{b}:{b+n-1}]"
def sr(b, n): return f"s[{b}:{b+n-1}]"
def srd(a, d, lo, hi, off, num, stride=0):
    if off > 0:
        a(f"s_add_u32 s{d}, s{lo}, {hex(off)}"); a(f"s_addc_u32 s{d+1}, s{hi}, 0")
    elif off < 0:
        a(f"s_sub_u32 s{d}, s{lo}, {hex(-off)}"); a(f"s_subb_u32 s{d+1}, s{hi}, 0")
    else:
        a(f"s_mov_b32 s{d}, s{lo}"); a(f"s_mov_b32 s{d+1}, s{hi}")
    if stride: a(f"s_or_b32 s{d+1}, s{d+1}, {hex(stride << 16)}")
    a(f"s_mov_b32 s{d+2}, {hex(num)}"); a(f"s_mov_b32 s{d+3}, 0x20000")
def stamp(a, idx, cyc=False):
    if not STAMP: return
    a(f"{'s_memtime' if cyc else 's_memrealtime'} s[6:7]"); a("s_waitcnt lgkmcnt(0)"); a(f"v_writelane_b32 v255, s6, {idx}")
def stamp_out(a):
    if not STAMP: return
    a("s_mov_b64 exec, -1")
    a("s_load_dwordx2 s[32:33], s[0:1], 80"); a("s_waitcnt lgkmcnt(0)")
    srd(a, 36, 32, 33, WS_STAMP, 1 << 22)
    a("s_lshl_b32 s32, s2, 4"); a(f"s_add_u32 s32, s32, s{S_W}"); a("s_lshl_b32 s32, s32, 8")
    a(f"v_lshlrev_b32 v16, 2, v{LANE}")
    a("buffer_store_dword v255, v16, s[36:39], s32 offen")

def mfma32(d, a_, b_, c=None):
    return f"v_mfma_f32_32x32x16_bf16 {vr(d,16)}, {vr(a_,4)}, {vr(b_,4)}, {'0' if c == 0 else vr(d,16)}"
def silu_main(d):
    m = [f"v_exp_f32 v{T+j}, v{d+j}" for j in range(16)]
    m += [f"v_pk_add_f32 {vr(T+2*j,2)}, {vr(T+2*j,2)}, 1.0 op_sel_hi:[1,0]" for j in range(8)]
    m += [f"v_rcp_f32 v{T+j}, v{T+j}" for j in range(16)]
    m += [f"v_pk_mul_f32 {vr(T+2*j,2)}, {vr(T+2*j,2)}, {vr(d+2*j,2)}" for j in range(8)]
    m += [f"v_cvt_pk_bf16_f32 v{MP+j}, v{T+2*j}, v{T+2*j+1}" for j in range(8)]
    return m
def emit(a, main, ins):
    for t in ins.get(-1, []): a(t)
    for i, m in enumerate(main):
        a(m)
        for t in ins.get(i, []): a(t)
def gstate(isA=True):
    o = [f"s_add_u32 s{S_NEXT}, s{S_NEXT}, 128", f"s_cmp_eq_u32 s{S_NEXT}, s{S_END}",
         f"s_cselect_b32 s{S_NEXT}, s{S_JUMP}, s{S_NEXT}", f"s_cselect_b32 s{S_END}, s{S_END2}, s{S_END}"]
    if isA: o += [f"s_cselect_b32 s{S_JUMP}, s{S_PADB}, s{S_JUMP}", f"s_cselect_b32 s{S_END2}, s{S_PADE}, s{S_END2}"]
    return o
def g_reads(e, wq=WQ, isA=True):
    return [f"v_add_u32 v{ADQ}, s{S_NEXT}, v{LANEQ}", f"v_add_u32 v{ADE+e}, s{S_NEXT}, v{LANEE}",
            f"ds_read_b128 {vr(wq,4)}, v{ADQ}", f"ds_read_b32 v{W2E+e}, v{ADE+e}"] + gstate(isA)
def g_addr(wq=WQ): return [f"v_and_or_b32 v{wq+j}, v{wq+j}, s{S_GM}, v{COLC+j}" for j in range(4)]
def g_m0(e): return [f"s_add_u32 m0, s{S_GB}, {e*4096}"]
def g_dma(wq=WQ): return [f"buffer_load_dwordx4 v{wq+j}, {sr(S_HJ+4*j,4)}, 0 offen offset:{j*1024} lds" for j in range(4)]
def pos_gather(): return f"buffer_load_dwordx3 {vr(PS,3)}, v{PIX}, {sr(S_POSF,4)}, 0 idxen sc1"
def e_head(e):
    return [f"v_and_b32 v{S8}, 0x38, v{W2E+e}", f"v_lshl_add_u32 v{S16}, v{S8}, 1, s{S_TBL}", f"ds_read_b96 {vr(PD,3)}, v{S16} offset:128",
            f"v_bfe_u32 v{PIX}, v{W2E+1-e}, 7, 15"]
def e_sect(e, zero=True):
    o = [f"v_sub_f32 v{PD+k}, v{PD+k}, v{PS+k}" for k in range(3)]
    o += [f"v_cvt_pk_bf16_f32 v{VAL}, 1.0, v{PD}", f"v_cvt_pk_bf16_f32 v{VAL+1}, v{PD+1}, v{PD+2}",
          f"s_mov_b64 exec, {sr(S_LO,2)}", f"ds_read_b128 {vr(XR,4)}, v{S16}", f"s_mov_b64 exec, {sr(S_HI,2)}",
          f"v_dot2_f32_bf16 v{D2}, v{VAL}, v{VAL}, -1.0", f"v_dot2_f32_bf16 v{D2}, v{VAL+1}, v{VAL+1}, v{D2}",
          f"ds_read2st64_b32 {vr(XR,2)}, v{ADE+e} offset0:{PO1} offset1:{PO2}"]
    if zero: o += [f"ds_write_b64 v{IMGA}, {vr(ZERO,2)}"]
    o += [f"v_add_u32 v{IMGA}, v{S8}, v{IMGB}", f"ds_write_b64 v{IMGA}, {vr(VAL,2)}", pos_gather(),
          f"v_cvt_pk_bf16_f32 v{XR+2}, v{D2}, v{D2}", "s_mov_b64 exec, -1"]
    return o
def a1_reads(e): return [f"ds_read_b128 {vr(A1+4*s,4)}, v{RDA+s} offset:{e*4096}" for s in range(4)]
def tr_reads(): return [f"ds_read_b64_tr_b16 {vr(A2+2*k,2)}, v{TRA} offset:{k*512}" for k in range(4)]

NPF = opt('npf', 4)
PRIO = opt("prio", 2)
_lbl = [0]
def phase_x(a, p, acc1, bx1, isA):
    e = 1 - p
    ins = {}; pre = []
    if isA:
        pre += [f"s_sub_u32 s{S_REM}, s{S_REM}, 1", f"s_cmp_eq_u32 s{S_REM}, 0", f"s_cselect_b32 s{S_TBL}, s{S_TBLB}, s{S_TBLA}"]
        if PRIO == 2:
            _lbl[0] += 1; L = f"KP{_lbl[0]}"
            ins[1] = [f"s_cmp_lg_u32 s{S_REM}, s{S_FLIP}", f"s_cbranch_scc1 {L}", "s_setprio 1", f"{L}:"]
    if STAMP == 2:
        pre += ["s_memtime s[6:7]", "s_waitcnt lgkmcnt(0)", "s_mov_b32 m0, s5", "s_add_u32 s5, s5, 1", "v_writelane_b32 v255, s6, m0"]
    ins[-1] = pre
    ins[0] = [mfma32(acc1, A2, MP)] + e_head(e)
    ins[3] = [mfma32(acc1, A2+4, MP+4)]
    tr = tr_reads()
    ins[4] = tr[:2]; ins[5] = tr[2:]
    ins[6] = [mfma32(D1, XR, bx1, 0)]
    ins[9] = [mfma32(D1, A1, W2F+16)]
    ins[12] = [mfma32(D1, A1+4, W2F+20)]
    ins[17] = ["s_waitcnt vmcnt(4) lgkmcnt(4)"] + e_sect(e)
    ins[20] = g_reads(e, isA=isA)
    ins[24] = [mfma32(D1, A1+8, W2F+24)]
    ins[27] = [mfma32(D1, A1+12, W2F+28)]
    ins[28] = a1_reads(e)
    emit(a, silu_main(D0), ins)

def phase_y(a, p, acc0, bx0):
    e = 1 - p
    ins = {}
    ins[-1] = ["s_waitcnt lgkmcnt(10)"]
    ins[0] = [mfma32(acc0, A2, MP)] + g_m0(e)
    ins[1] = ["s_waitcnt lgkmcnt(5)"] + g_addr()
    ins[3] = [mfma32(acc0, A2+4, MP+4)]
    gd = g_dma()
    ins[6] = ["s_waitcnt lgkmcnt(0)", mfma32(D0, A1, W2F, 0)]
    ins[7] = gd[0:1]; ins[8] = gd[1:2]
    ins[9] = [mfma32(D0, A1+4, W2F+4)]
    ins[10] = gd[2:3]; ins[11] = gd[3:4]
    ins[12] = [mfma32(D0, A1+8, W2F+8)]
    ins[24] = [mfma32(D0, A1+12, W2F+12)]
    ins[27] = [mfma32(D0, XR, bx0)]
    emit(a, silu_main(D1), ins)

def node_sel(a, cond, vnode, vcnt, vtmp):
    a(cond)
    a(f"v_mov_b32 v{vnode}, s{S_NB}"); a(f"v_mov_b32 v{vcnt}, s{S_NA}")
    a(f"v_cndmask_b32 v{vnode}, v{vnode}, v{vcnt}, vcc")
    a(f"v_mov_b32 v{vcnt}, s{S_CB}"); a(f"v_mov_b32 v{vtmp}, s{S_CA}")
    a(f"v_cndmask_b32 v{vcnt}, v{vcnt}, v{vtmp}, vcc")

def cursor_init(a):
    a(f"v_lshlrev_b32 v13, 2, v{LANE}")
    a("s_mov_b64 exec, 0x1ffff"); a(f"ds_write_b32 v13, v{CURB}"); a("s_mov_b64 exec, -1")

def gen(a):
    a(f"{KN}:")
    a("s_cmp_ge_u32 s2, 256")
    a("s_cbranch_scc1 K_END")
    a("s_load_dwordx16 s[32:47], s[0:1], 0")
    a("s_load_dwordx4 s[48:51], s[0:1], 64")
    a("s_load_dwordx2 s[52:53], s[0:1], 80")
    stamp(a, 0); stamp(a, 14, True)
    a("s_cmp_eq_u32 s2, 255")
    a(f"s_movk_i32 s4, {NQ - 512}")
    a(f"s_cselect_b32 s4, {NQ_LAST - 512}, s4")
    a(f"s_mul_i32 s3, s2, {CH*4}")
    a("s_lshl_b32 s5, s3, 1")
    a("v_lshlrev_b32 v8, 4, v0")
    a("v_lshlrev_b32 v9, 5, v0")
    a("v_cmp_gt_u32 s[62:63], s4, v0")
    a(f"v_mov_b32 v12, {hex(HUGE)}")
    a("v_add_u32 v10, 0x2000, v8")
    a("v_add_u32 v11, 0x4000, v9")
    a("v_cndmask_b32 v10, v12, v10, s[62:63]")
    a("v_cndmask_b32 v11, v12, v11, s[62:63]")
    a("v_and_b32 v12, 0xff, v0")
    a("v_lshlrev_b32 v12, 2, v12")
    a(f"v_mov_b32 v{ZERO}, 0")
    a(f"ds_write_b32 v12, v{ZERO} offset:{L_HIST}")
    a("s_waitcnt lgkmcnt(0)")
    srd(a, 8, 40, 41, 0, 3200000)
    srd(a, 12, 38, 39, 0, 3200000)
    srd(a, 16, 36, 37, 0, 6400000)
    nt = " nt" if opt("k1nt", 1) else ""
    a(f"buffer_load_dwordx4 v[16:19], v8, s[8:11], s3 offen{nt}")
    a(f"buffer_load_dwordx4 v[20:23], v10, s[8:11], s3 offen{nt}")
    a(f"buffer_load_dwordx4 v[24:27], v8, s[12:15], s3 offen{nt}")
    a(f"buffer_load_dwordx4 v[28:31], v10, s[12:15], s3 offen{nt}")
    a(f"buffer_load_dwordx4 v[32:35], v9, s[16:19], s5 offen{nt}")
    a(f"buffer_load_dwordx4 v[36:39], v9, s[16:19], s5 offen offset:16{nt}")
    a(f"buffer_load_dwordx4 v[40:43], v11, s[16:19], s5 offen{nt}")
    a(f"buffer_load_dwordx4 v[44:47], v11, s[16:19], s5 offen offset:16{nt}")
    a("s_barrier")
    a(f"v_and_b32 v{LANE}, 63, v0")
    a("v_lshrrev_b32 v12, 6, v0")
    a(f"v_readfirstlane_b32 s{S_W}, v12")
    RW = 148
    srd(a, S_ACC, 50, 51, 0, 256)
    a("v_mov_b32 v12, 0")
    a("s_cmp_lg_u32 s2, 0"); a("s_cbranch_scc1 K_NOEP")
    a(f"s_cmp_lg_u32 s{S_W}, 7"); a("s_cbranch_scc1 K_NOEP")
    a("s_memrealtime s[4:5]")
    a("s_waitcnt lgkmcnt(0)")
    a("s_or_b32 s4, s4, 1")
    a("v_mov_b32 v13, s4")
    a("s_mov_b64 exec, 1")
    a(f"buffer_store_dword v13, v12, {sr(S_ACC,4)}, 0 offen sc0 sc1")
    a("s_mov_b64 exec, -1")
    a("K_NOEP:")
    a(f"v_mov_b32 v{ZERO+1}, 0")
    a("s_and_b32 s3, s2, 7"); a("s_lshl_b32 s3, s3, 5")
    a(f"s_lshr_b32 s{S_B}, s2, 3"); a(f"s_add_u32 s{S_B}, s{S_B}, s3")
    a(f"s_lshl_b32 s4, s{S_B}, 20"); a(f"s_add_u32 s4, s4, {GMUL-1}")
    a(f"s_mov_b32 s7, {GMAGIC}")
    a(f"v_lshl_add_u32 v12, v{LANE}, 16, s4")
    a("v_add_u32 v13, 0x10000, v12")
    a("v_mul_hi_u32 v12, v12, s7"); a("v_mul_hi_u32 v13, v13, s7")
    a("v_lshrrev_b32 v12, 7, v12"); a("v_lshrrev_b32 v13, 7, v13")
    a("v_min_u32 v13, 25000, v13")
    a(f"s_lshl_b32 s4, s{S_W}, 1"); a("s_add_u32 s5, s4, 1")
    a("v_readlane_b32 s3, v12, 0")
    a(f"v_readlane_b32 s{S_NA}, v12, s4"); a(f"v_readlane_b32 s{S_NB}, v12, s5"); a(f"v_readlane_b32 s{S_CB}, v13, s5")
    a(f"v_mul_u32_u24 v14, 384, v{LANE}")
    a("s_lshl_b32 s3, s3, 7"); a(f"s_sub_u32 s3, {L_REC}, s3")
    a(f"v_lshl_add_u32 v{CURB}, v12, 7, v14"); a(f"v_add_u32 v{CURB}, s3, v{CURB}")
    a(f"v_lshl_add_u32 v{CURL}, v13, 7, v14"); a("s_add_u32 s3, s3, 384"); a(f"v_add_u32 v{CURL}, s3, v{CURL}")
    a(f"v_cmp_gt_u32 vcc, 16, v{LANE}")
    a(f"s_sub_u32 s{S_CB}, s{S_CB}, s{S_NB}"); a(f"s_sub_u32 s{S_CA}, s{S_NB}, s{S_NA}")
    a(f"v_cndmask_b32 v{CURB}, 0, v{CURB}, vcc")
    a(f"v_and_b32 v9, 31, v{LANE}")
    a(f"v_lshrrev_b32 v10, 5, v{LANE}")
    a(f"v_lshlrev_b32 v11, 4, v{LANE}")
    a(f"v_and_b32 v12, 7, v{LANE}")
    node_sel(a, f"v_cmp_gt_u32 vcc, 8, v{LANE}", 13, 14, 15)
    a("v_cmp_lt_u32 vcc, v12, v14")
    a(f"v_cmp_gt_u32 s[60:61], 16, v{LANE}")
    a("v_add_u32 v13, v13, v12"); a("v_mov_b32 v14, 0x7fff")
    a("s_and_b64 vcc, vcc, s[60:61]")
    a(f"v_cndmask_b32 v{PIX}, v14, v13, vcc")
    a(f"v_mul_u32_u24 v{D2}, 6, v{PIX}")
    srd(a, S_POS, 34, 35, 0, 150000)
    for j in range(3): a(f"buffer_load_ushort v{RW+8+j}, v{D2}, {sr(S_POS,4)}, 0 offen offset:{2*j}")
    N1 = 3
    a("v_and_b32 v12, 3, v9"); a("v_bfe_u32 v13, v9, 3, 1"); a("v_lshl_or_b32 v12, v13, 2, v12")
    node_sel(a, "v_cmp_gt_u32 vcc, 16, v9", 13, 14, 15)
    a("v_and_b32 v15, 4, v9"); a("v_lshl_or_b32 v15, v15, 1, v12")
    a("v_cmp_lt_u32 vcc, v15, v14")
    a("v_add_u32 v13, v13, v12"); a("v_lshlrev_b32 v13, 7, v13"); a("v_lshl_add_u32 v13, v10, 4, v13")
    a(f"v_mov_b32 v14, {hex(HUGE)}")
    a(f"v_cndmask_b32 v{S8}, v14, v13, vcc")
    srd(a, S_H, 32, 33, 0, 3200000)
    for s in range(4): a(f"buffer_load_dwordx4 {vr(A1+4*s,4)}, v{S8}, {sr(S_H,4)}, 0 offen offset:{32*s}")
    N1 += 4
    srd(a, 56, 42, 43, 0, 133 * 128)
    srd(a, 40, 46, 47, 0, 128 * 128)
    if opt("wpf", 1):
        a("s_lshr_b32 s4, s2, 3"); a("s_lshl_b32 s4, s4, 10"); a("s_and_b32 s5, s4, 0x3fff")
        a(f"s_cmp_lg_u32 s{S_W}, 6"); a("s_cbranch_scc1 K_NOWPF")
        a(f"buffer_load_dwordx4 {vr(PD,4)}, v11, s[56:59], s4 offen")
        a(f"buffer_load_dwordx4 {vr(PD,4)}, v11, s[40:43], s5 offen")
        a("K_NOWPF:")
    srd(a, S_POSF, 52, 53, WS_POSF, 25000, stride=16)
    srd(a, S_REC, 52, 53, 0, WS_GRAN + 256 * 4096)
    a("v_mov_b32 v14, 12")
    a(f"s_mul_i32 s54, s2, {CHS}")
    for g in range(2):
        a(f"s_waitcnt vmcnt({N1 + 7 - g})")
        if g == 0: stamp(a, 1)
        if g == 1: a("s_mov_b64 exec, s[62:63]")
        for k in range(4):
            i = 4*g + k
            a(f"v_mul_u32_u24 v{48+i}, {hex(GMUL)}, v{16+i}")
            a(f"v_lshrrev_b32 v{56+i}, 18, v{48+i}")
            a(f"v_and_b32 v{56+i}, 0x3fc, v{56+i}")
            a(f"ds_add_rtn_u32 v{64+i}, v{56+i}, v14 offset:{L_HIST}")
    a("s_mov_b64 exec, -1")
    a(f"buffer_load_dword v{RW+12}, v{ZERO}, {sr(S_ACC,4)}, 0 offen sc0 sc1")
    N1 += 1
    a("s_mov_b32 s6, 400016")
    for i in range(8):
        a(f"v_and_b32 v{16+i}, 0xffff, v{48+i}")
        a(f"v_mul_hi_u32 v{16+i}, v{16+i}, s6")
        a(f"v_bfe_u32 v{48+i}, v{48+i}, 16, 4")
        a(f"v_lshlrev_b32 v{16+i}, 3, v{16+i}")
        a(f"v_lshl_or_b32 v{16+i}, v{48+i}, 24, v{16+i}")
    a("s_waitcnt lgkmcnt(0)")
    a("s_barrier")
    stamp(a, 2)
    a(f"ds_read_b128 v[72:75], v11 offset:{L_HIST}")
    a(f"s_lshl_b32 s4, s{S_W}, 8")
    a(f"v_lshl_add_u32 v15, v{LANE}, 2, s4")
    a(f"ds_read_b32 v76, v15 offset:{L_HIST}")
    a("s_waitcnt lgkmcnt(1)")
    a("v_add_u32 v49, v72, v73"); a("v_add_u32 v50, v49, v74"); a("v_add_u32 v51, v50, v75")
    a("v_mov_b32 v52, v51")
    for sh in (1, 2, 4, 8): a(f"v_add_u32_dpp v52, v52, v52 row_shr:{sh} row_mask:0xf bank_mask:0xf bound_ctrl:0")
    a("v_add_u32_dpp v52, v52, v52 row_bcast:15 row_mask:0xa bank_mask:0xf")
    a("v_add_u32_dpp v52, v52, v52 row_bcast:31 row_mask:0xc bank_mask:0xf")
    a("v_sub_u32 v52, v52, v51"); a("v_add_u32 v53, v52, v72"); a("v_add_u32 v54, v52, v49"); a("v_add_u32 v55, v52, v50")
    a(f"ds_write_b128 v11, v[52:55] offset:{L_OFFS}")
    a("s_waitcnt lgkmcnt(0)")
    for i in range(8): a(f"ds_read_b32 v{48+i}, v{56+i} offset:{L_OFFS}")
    a(f"ds_read_b32 v77, v15 offset:{L_OFFS}")
    a(f"s_waitcnt vmcnt({N1 + 4})")
    for i in range(8): a(f"v_lshl_or_b32 v{16+i}, v{24+i}, 7, v{16+i}")
    a("s_waitcnt lgkmcnt(0)")
    for i in range(8): a(f"v_add_u32 v{48+i}, v{48+i}, v{64+i}")
    a("v_lshl_or_b32 v76, v76, 16, v77")
    for g in range(2):
        if g == 1: a("s_mov_b64 exec, s[62:63]")
        for k in range(4): a(f"ds_write_b32 v{48+4*g+k}, v{16+4*g+k} offset:{L_STG+8}")
        for k in range(4): a(f"v_add_u32 v{56+4*g+k}, {L_STG}, v{48+4*g+k}")
        a(f"s_waitcnt vmcnt({N1 + 2 - 2*g})")
        for k in range(4):
            i = 4*g + k
            a(f"ds_write2_b32 v{56+i}, v{32+2*i}, v{33+2*i} offset0:0 offset1:1")
    a("s_mov_b64 exec, -1")
    N2 = 9
    a(f"v_cmp_gt_u32 vcc, {CHS//16 - 2048}, v0")
    a(f"v_mov_b32 v12, {hex(HUGE)}")
    a("v_cndmask_b32 v12, v12, v8, vcc")
    a("s_waitcnt vmcnt(5)")
    for j in range(3): a(f"v_lshlrev_b32 v{68+j}, 16, v{RW+8+j}")
    a("v_mov_b32 v71, 0")
    a("s_mov_b64 exec, 0xffff")
    a(f"buffer_store_dwordx4 v[68:71], v{PIX}, {sr(S_POSF,4)}, 0 idxen sc1")
    a("s_mov_b64 exec, -1")
    a("s_movk_i32 s4, 0x2000")
    a(f"buffer_load_dwordx4 {vr(RW,4)}, v8, {sr(56,4)}, s4 offen")
    a("s_movk_i32 s4, 0x4000")
    a(f"buffer_load_dwordx4 {vr(RW+4,4)}, v11, {sr(56,4)}, s4 offen")
    a(f"s_lshl_b32 s5, s{S_W}, 10")
    a(f"s_add_u32 m0, s5, {L_WF + 8192}"); a("s_nop 0")
    a(f"buffer_load_dwordx4 v8, {sr(56,4)}, 0 offen lds")
    a(f"s_add_u32 m0, s5, {L_WH}"); a("s_nop 0")
    a(f"buffer_load_dwordx4 v8, s[40:43], 0 offen lds")
    a(f"s_add_u32 m0, s5, {L_WH + 8192}"); a("s_movk_i32 s4, 0x2000")
    a(f"buffer_load_dwordx4 v8, s[40:43], s4 offen lds")
    stamp(a, 3)
    a("s_waitcnt lgkmcnt(0)")
    a("s_barrier")
    for j in range(5): a(f"ds_read_b128 {vr(16+4*j,4)}, v8 offset:{L_STG + 8192*j}")
    for j in range(5):
        a(f"s_waitcnt lgkmcnt({4-j})")
        a(f"buffer_store_dwordx4 {vr(16+4*j,4)}, v{8 if j < 4 else 12}, {sr(S_REC,4)}, s54 offen sc1")
        if j < 4: a("s_add_u32 s54, s54, 8192")
    stamp(a, 4)
    srd(a, S_OUT, 48, 49, 0, 3350000)
    srd(a, S_WX, 44, 45, 0, 128)
    cursor_init(a)
    a(f"s_mov_b32 s{S_LO}, -1"); a(f"s_mov_b32 s{S_LO+1}, 0"); a(f"s_mov_b32 s{S_HI}, 0"); a(f"s_mov_b32 s{S_HI+1}, -1")
    a(f"s_mov_b32 s{S_GM}, 0x3fff80")
    a(f"s_lshl_b32 s{S_TBLA}, s{S_W}, 9"); a(f"s_add_u32 s{S_TBLA}, s{S_TBLA}, {L_TBL}"); a(f"s_add_u32 s{S_TBLB}, s{S_TBLA}, 256")
    a(f"s_lshl_b32 s{S_GB}, s{S_W}, 13"); a(f"s_add_u32 s{S_GB}, s{S_GB}, {L_GB}")
    a(f"s_mov_b32 s{S_WIN}, {32*12}"); a(f"s_mov_b32 s{S_ROUND}, 1"); a(f"s_mov_b32 s{S_PADB}, {L_PAD}"); a(f"s_mov_b32 s{S_PADE}, {L_PAD+128}")
    a(f"s_lshl_b32 s{S_ACCO}, s2, 3"); a(f"s_add_u32 s{S_ACCO}, s{S_ACCO}, s{S_W}"); a(f"s_lshl_b32 s{S_ACCO}, s{S_ACCO}, 14")
    a(f"s_mul_i32 s{S_SEG}, s{S_W}, {32*CHS}")
    a(f"v_mov_b32 v{FOUR}, 4")
    a(f"v_mul_u32_u24 v{I12}, 12, v9"); a(f"v_mul_u32_u24 v{I12H}, {CHS}, v10"); a(f"v_add_u32 v{I12H}, v{I12H}, v{I12}")
    a(f"v_lshlrev_b32 v{BPX}, 2, v10")
    a(f"s_lshl_b32 s4, s{S_W}, 11"); a(f"s_add_u32 s4, s4, {L_IMG}")
    for j in range(4): a(f"v_mov_b32 v{48+j}, 0")
    a("v_add_u32 v12, s4, v11")
    a("ds_write_b128 v12, v[48:51]"); a("ds_write_b128 v12, v[48:51] offset:1024")
    a(f"v_lshl_add_u32 v{IMGB}, v9, 6, s4")
    a(f"v_bfe_u32 v12, v{LANE}, 2, 2"); a("v_lshl_add_u32 v12, v10, 2, v12"); a("v_lshlrev_b32 v12, 6, v12")
    a(f"v_bfe_u32 v13, v{LANE}, 4, 1"); a("v_lshl_add_u32 v12, v13, 5, v12")
    a(f"v_and_b32 v13, 3, v{LANE}"); a("v_lshl_add_u32 v12, v13, 3, v12")
    a(f"v_add_u32 v{TRA}, s4, v12")
    a(f"v_and_b32 v12, 7, v{LANE}"); a("v_lshrrev_b32 v13, 1, v12"); a("v_and_b32 v14, 1, v12"); a("v_lshlrev_b32 v14, 4, v14")
    a("v_mov_b32 v60, 0x3f80"); a("v_lshlrev_b32 v14, v14, v60")
    for j in range(4):
        a(f"v_cmp_eq_u32 vcc, {j}, v13"); a(f"v_cndmask_b32 v{48+j}, 0, v14, vcc")
    a(f"v_bfe_u32 v13, v{LANE}, 3, 1"); a("v_lshlrev_b32 v13, 8, v13"); a("v_lshl_add_u32 v13, v12, 4, v13")
    a(f"v_add_u32 v{TMP}, s{S_TBLA}, v13")
    a("s_mov_b64 exec, 0xffff"); a(f"ds_write_b128 v{TMP}, v[48:51]"); a(f"ds_write_b128 v{TMP}, v[68:71] offset:128"); a("s_mov_b64 exec, -1")
    a(f"v_and_b32 v12, 7, v{LANE}"); a(f"v_bfe_u32 v13, v{LANE}, 4, 1"); a("v_lshlrev_b32 v13, 2, v13"); a("v_xor_b32 v12, v12, v13")
    for j in range(4):
        a(f"v_xor_b32 v13, {j}, v12"); a(f"v_lshlrev_b32 v{COLC+j}, 4, v13")
    a("v_and_b32 v12, 3, v9"); a("v_lshrrev_b32 v13, 2, v9"); a("v_lshl_add_u32 v13, v12, 3, v13"); a("v_lshlrev_b32 v13, 7, v13")
    a(f"v_add_u32 v13, s{S_GB}, v13")
    a("v_bfe_u32 v14, v9, 3, 1"); a("v_lshl_or_b32 v12, v14, 2, v12"); a("v_xor_b32 v12, v12, v10")
    for s in range(4):
        a(f"v_xor_b32 v14, {2*s}, v12"); a(f"v_lshl_add_u32 v{RDA+s}, v14, 4, v13")
    a(f"v_lshrrev_b32 v12, 3, v{LANE}"); a(f"v_lshlrev_b32 v{LANEQ}, 4, v12"); a(f"v_lshlrev_b32 v{LANEE}, 2, v9")
    a(f"v_mov_b32 v12, {hex(PADW)}"); a(f"v_add_u32 v13, s{S_PADB}, v{LANEE}")
    a("ds_write_b32 v13, v12"); a(f"ds_write2st64_b32 v13, v{ZERO}, v{ZERO} offset0:{PO1} offset1:{PO2}")
    a(f"v_mov_b32 v{XR+3}, 0")
    a(f"s_mov_b32 s4, {hex(NLOG2E)}"); a("s_mov_b32 s5, s4")
    a("s_waitcnt vmcnt(8)")
    for j in range(8):
        a(f"v_lshlrev_b32 v{32+2*j}, 16, v{RW+j}"); a(f"v_and_b32 v{33+2*j}, 0xffff0000, v{RW+j}")
    for j in range(8): a(f"v_pk_mul_f32 {vr(32+2*j,2)}, {vr(32+2*j,2)}, s[4:5]")
    for j in range(8): a(f"v_cvt_pk_bf16_f32 v{48+j}, v{32+2*j}, v{33+2*j}")
    a(f"v_add_u32 v16, {L_WF}, v8")
    a("ds_write_b128 v16, v[48:51]")
    for j in range(4):
        a(f"v_lshlrev_b32 v{56+2*j}, 16, v{52+j}"); a(f"v_and_b32 v{57+2*j}, 0xffff0000, v{52+j}")
    for j in range(4): a(f"v_pk_add_f32 {vr(56+2*j,2)}, {vr(40+2*j,2)}, {vr(56+2*j,2)} neg_lo:[0,1] neg_hi:[0,1]")
    for j in range(4): a(f"v_cvt_pk_bf16_f32 v{56+j}, v{56+2*j}, v{57+2*j}")
    a(f"v_add_u32 v16, {L_WF + 16384 - 128}, v11")
    a(f"v_add_u32 v17, {L_WF + 16384 + 512}, v11")
    a("s_mov_b64 exec, 0xff")
    a("ds_write_b128 v17, v[52:55]"); a("ds_write_b128 v17, v[56:59] offset:128")
    a("s_mov_b32 s6, 0xffffff00"); a("s_mov_b32 s7, 0xff0000ff"); a("s_mov_b64 exec, s[6:7]")
    a("ds_write_b128 v16, v[52:55]")
    a("s_mov_b32 s6, 0"); a("s_mov_b32 s7, 0xff000000"); a("s_mov_b64 exec, s[6:7]")
    a("ds_write_b128 v16, v[52:55] offset:128")
    a("s_mov_b64 exec, -1")
    a(f"v_bfe_u32 v18, v{LANE}, 2, 2"); a("v_lshlrev_b32 v16, 7, v18")
    a(f"v_bfe_u32 v18, v{LANE}, 4, 1"); a("v_lshl_add_u32 v16, v18, 5, v16")
    a(f"v_and_b32 v18, 3, v{LANE}"); a("v_lshl_add_u32 v16, v18, 3, v16")
    a(f"v_add_u32 v{VAL}, {L_WF + 16384}, v16")
    a("v_lshl_add_u32 v16, v10, 10, v16"); a(f"v_add_u32 v{VAL+1}, {L_WF}, v16")
    a(f"s_mov_b32 s5, {opt('spin', 200000)}")
    a("K_EPW:")
    a(f"v_readfirstlane_b32 s4, v{RW+12}")
    a("s_cmp_lg_u32 s4, 0"); a("s_cbranch_scc1 K_EPOK")
    a("s_sub_u32 s5, s5, 1"); a("s_cmp_eq_u32 s5, 0"); a("s_cbranch_scc1 K_EPOK")
    a(f"buffer_load_dword v{RW+12}, v{ZERO}, {sr(S_ACC,4)}, 0 offen sc0 sc1")
    a("s_waitcnt vmcnt(0)")
    a("s_branch K_EPW")
    a("K_EPOK:")
    srd(a, S_ACC, 52, 53, WS_ACC, 256 * 8 * 16384)
    a(f"v_mov_b32 v77, v{RW+12}")
    a("s_lshl_b32 s3, s2, 12"); a(f"s_add_u32 s3, s3, {hex(WS_GRAN)}")
    a("v_lshlrev_b32 v15, 2, v15")
    a(f"s_mov_b32 s4, {hex(TAGK)}")
    a("v_not_b32 v79, v77"); a("v_xor_b32 v14, s4, v77"); a("v_xor_b32 v78, v76, v14")
    a("v_lshlrev_b32 v13, 12, v9")
    a(f"s_lshl_b32 s5, s{S_W}, 17"); a(f"s_lshl_b32 s6, s{S_B}, 4"); a("s_add_u32 s5, s5, s6"); a(f"s_add_u32 s{S_T3}, s5, {hex(WS_GRAN)}")
    a("s_waitcnt vmcnt(0) lgkmcnt(0)")
    stamp(a, 5)
    a("s_barrier")
    a(f"s_cmp_ge_u32 s{S_W}, 4")
    a("s_cbranch_scc1 K_NOPUB")
    a(f"buffer_store_dwordx4 v[76:79], v15, {sr(S_REC,4)}, s3 offen sc1")
    a("K_NOPUB:")
    if opt("epoll", 0):
        a(f"s_mov_b64 exec, {sr(S_LO,2)}")
        a(f"buffer_load_dwordx4 v[72:75], v13, {sr(S_REC,4)}, s{S_T3} offen sc1")
        a("s_mov_b64 exec, -1")
    WT = ACCB0
    for f in range(8):
        for kk in range(2): a(f"ds_read_b64_tr_b16 {vr(WT+4*f+2*kk,2)}, v{VAL+1} offset:{8192 + (f&3)*2048 + kk*512 + (f>>2)*64}")
    a("s_waitcnt lgkmcnt(8)")
    for s in range(4): a(mfma32(ACCA0, A1+4*s, WT + 4*s, 0 if s == 0 else None))
    for nh, b in ((0, BXA0), (1, BXA1), (0, BXB0), (1, BXB1)):
        for kk in range(2): a(f"ds_read_b64_tr_b16 {vr(b+2*kk,2)}, v{VAL} offset:{kk*512 + nh*64}")
    a("s_waitcnt lgkmcnt(8)")
    for s in range(4): a(mfma32(ACCA1, A1+4*s, WT + 16 + 4*s, 0 if s == 0 else None))
    a("s_waitcnt lgkmcnt(0)")
    for f in range(8):
        for kk in range(2): a(f"ds_read_b64_tr_b16 {vr(W2F+4*f+2*kk,2)}, v{VAL+1} offset:{(f&3)*2048 + kk*512 + (f>>2)*64}")
    a(f"s_mov_b32 s4, {hex(NLOG2E)}"); a("s_mov_b32 s5, s4")
    a(f"s_mov_b64 exec, {sr(S_LO,2)}")
    for nh, d, ba, bb in ((0, ACCA0, BXA0, BXB0), (1, ACCA1, BXA1, BXB1)):
        for j in range(8): a(f"v_pk_mul_f32 {vr(d+2*j,2)}, {vr(d+2*j,2)}, s[4:5]")
        for j in range(4):
            a(f"v_cvt_pk_bf16_f32 v{ba+j}, v{d+2*j}, v{d+2*j+1}")
            a(f"v_cvt_pk_bf16_f32 v{bb+j}, v{d+8+2*j}, v{d+8+2*j+1}")
    a("s_mov_b64 exec, -1")
    for i in range(64): a(f"v_mov_b32 v{ACCA0+i}, 0")
    a(f"v_mov_b32 v{SW}, 0")
    a(f"s_mov_b64 exec, {sr(S_LO,2)}")
    a(f"s_mov_b32 s5, {opt('spin', 200000)}")
    if opt("epoll", 0): a("s_branch K_POLL2")
    a("K_POLL:")
    a(f"buffer_load_dwordx4 v[72:75], v13, {sr(S_REC,4)}, s{S_T3} offen sc1")
    a("K_POLL2:")
    a("s_waitcnt vmcnt(0)")
    a("v_xor_b32 v74, v72, v74")
    a("v_cmp_eq_u32 vcc, v73, v77"); a("v_cmp_eq_u32 s[60:61], v75, v79"); a("v_cmp_eq_u32 s[58:59], v74, v14")
    a("s_and_b64 vcc, vcc, s[60:61]"); a("s_and_b64 vcc, vcc, s[58:59]")
    a(f"v_cndmask_b32 v{SW}, v{SW}, v72, vcc")
    a("s_andn2_b64 exec, exec, vcc")
    a("s_cbranch_execz K_GOT")
    a("s_sub_u32 s5, s5, 1")
    a("s_cmp_eq_u32 s5, 0")
    a("s_cbranch_scc1 K_GOT")
    if opt("slp", 4): a(f"s_sleep {opt('slp', 4)}")
    a("s_branch K_POLL")
    a("K_GOT:")
    a("s_mov_b64 exec, -1")
    if STAMP: a("v_writelane_b32 v255, s5, 15")
    stamp(a, 6)
    a(f"v_mov_b32 v0, v{SW}")
    a(f"s_mov_b32 s{S_SUB}, 0")
    a("s_waitcnt lgkmcnt(0)")
    a("s_branch K_ROUND")
    a("K_RESET:")
    cursor_init(a)
    a(f"v_mov_b32 v0, v{SW}")
    a(f"s_mov_b32 s{S_SUB}, 1")
    a("s_waitcnt lgkmcnt(0)")
    a("s_barrier")
    a("K_ROUND:")
    for p in range(16): a(f"ds_bpermute_b32 v{16+4*p+3}, v{BPX}, v0 offset:{8*p}")
    a(f"s_mov_b32 s3, s{S_SEG}")
    for p in range(16):
        r = 16 + 4*p
        a(f"s_waitcnt lgkmcnt({15-p})")
        a(f"v_cmp_lt_u32_sdwa {sr(S_MASK+2*p,2)}, v{I12}, v{r+3} src0_sel:DWORD src1_sel:WORD_1")
        a(f"v_add_u32_sdwa v{r+3}, v{r+3}, v{I12H} dst_sel:DWORD dst_unused:UNUSED_PAD src0_sel:WORD_0 src1_sel:DWORD")
        a(f"s_or_b64 exec, {sr(S_MASK+2*p,2)}, 1")
        a(f"buffer_load_dwordx3 {vr(r,3)}, v{r+3}, {sr(S_REC,4)}, s3 offen sc1")
        a("s_mov_b64 exec, -1")
        a(f"s_add_u32 s3, s3, {2*CHS}")
    stamp(a, 7)
    a("v_lshrrev_b32 v12, 16, v0")
    a(f"v_cmp_lt_u32 vcc, s{S_WIN}, v12")
    a(f"v_min_u32 v12, s{S_WIN}, v12")
    a("v_add_u32 v0, v0, v12"); a("v_lshlrev_b32 v12, 16, v12"); a("v_sub_u32 v0, v0, v12")
    a(f"s_mov_b32 s{S_MORE}, vcc_lo")
    a(f"v_and_b32 v12, 7, v{LANE}"); a(f"v_and_b32 v13, 8, v{LANE}")
    node_sel(a, "v_cmp_eq_u32 vcc, 0, v13", 13, 14, 15)
    a("v_cmp_lt_u32 vcc, v12, v14")
    a("v_add_u32 v13, v13, v12"); a("v_lshlrev_b32 v13, 7, v13")
    a(f"v_lshrrev_b32 v14, 4, v{LANE}"); a("v_lshl_add_u32 v13, v14, 5, v13")
    a(f"v_mov_b32 v15, {hex(HUGE)}")
    a(f"v_cndmask_b32 v{HA}, v15, v13, vcc")
    a(f"v_bfe_u32 v12, v{LANE}, 2, 2"); a(f"v_lshrrev_b32 v13, 5, v{LANE}"); a("v_lshl_add_u32 v12, v12, 1, v13")
    a(f"v_and_b32 v13, 16, v{LANE}")
    node_sel(a, "v_cmp_eq_u32 vcc, 0, v13", 13, 14, 15)
    a("v_cmp_lt_u32 vcc, v12, v14")
    a("v_add_u32 v13, v13, v12"); a("v_mul_u32_u24 v13, 6, v13")
    a(f"v_and_b32 v14, 3, v{LANE}"); a("v_lshl_add_u32 v13, v14, 1, v13")
    a(f"v_cmp_gt_u32 {sr(S_T0,2)}, 3, v14")
    a(f"v_mov_b32 v15, {hex(HUGE)}")
    a(f"s_and_b64 vcc, vcc, {sr(S_T0,2)}")
    a(f"v_cndmask_b32 v{PA}, v15, v13, vcc")
    for p in range(16):
        r = 16 + 4*p
        a(f"s_waitcnt vmcnt({15-p + min(p, NPF)})")
        a(f"s_mov_b64 exec, {sr(S_MASK+2*p,2)}")
        a(f"v_bfe_u32 v{r+3}, v{r+2}, 22, 6")
        a(f"ds_add_rtn_u32 v{r+3}, v{r+3}, v{FOUR}")
        if p < NPF:
            a(f"v_and_b32 v{ADQ}, s{S_GM}, v{r+2}")
            a(f"s_or_b64 exec, {sr(S_MASK+2*p,2)}, 1")
            a(f"buffer_load_dword v{S16}, v{ADQ}, {sr(S_H,4)}, 0 offen")
        if p % 4 == 3:
            a("s_waitcnt lgkmcnt(0)")
            for q in range(p-3, p+1):
                rq = 16 + 4*q
                a(f"s_mov_b64 exec, {sr(S_MASK+2*q,2)}")
                a(f"ds_write_b32 v{rq+3}, v{rq+2}")
                a(f"ds_write2st64_b32 v{rq+3}, v{rq}, v{rq+1} offset0:{PO1} offset1:{PO2}")
    a("s_mov_b64 exec, -1")
    a(f"s_cmp_eq_u32 s{S_MORE}, 0")
    a("s_cbranch_scc1 K_BINNED")
    a(f"s_cmp_eq_u32 s{S_SUB}, 0")
    a(f"s_mov_b32 s{S_SUB}, 1")
    a("s_cbranch_scc1 K_ROUND")
    a(f"v_mov_b32 v13, {L_FLAG}")
    a(f"ds_write_b32 v13, v{FOUR}")
    a("K_BINNED:")
    stamp(a, 8)
    a(f"buffer_load_dwordx4 {vr(HB,4)}, v{HA}, {sr(S_H,4)}, 0 offen")
    a(f"buffer_load_dwordx4 {vr(HB+4,4)}, v{HA}, {sr(S_H,4)}, 0 offen offset:16")
    a(f"v_lshrrev_b32 v16, 1, v{LANEE}")
    a(f"buffer_load_ushort v{WX0}, v16, {sr(S_WX,4)}, 0 offen")
    a(f"buffer_load_ushort v{WX1}, v16, {sr(S_WX,4)}, 0 offen offset:64")
    a(f"buffer_load_ushort v{PV}, v{PA}, {sr(S_POS,4)}, 0 offen")
    for j in range(4): srd(a, S_HJ+4*j, S_H, S_H+1, -1024*j, 3200000 + 1024*j)
    for i in range(16): a(f"v_mov_b32 v{MP+i}, 0")
    a(f"v_lshlrev_b32 v17, 2, v{LANE}")
    a(f"s_lshl_b32 s4, s{S_W}, 1"); a("s_add_u32 s5, s4, 1")
    a("s_xor_b32 s48, s4, 8"); a("s_xor_b32 s49, s5, 8")
    a(f"v_readlane_b32 s{S_NEXT}, v{CURB}, s4"); a(f"v_readlane_b32 s{S_JUMP}, v{CURB}, s5")
    a(f"v_mov_b32 v19, {hex(PADW)}")
    a(f"s_mov_b32 s{S_TBL}, s{S_TBLA}")
    a("s_waitcnt lgkmcnt(0)")
    a("s_barrier")
    a("ds_read_b32 v16, v17")
    a("s_waitcnt lgkmcnt(0)")
    a(f"v_cmp_gt_u32 vcc, v16, v{CURL}")
    a(f"v_sub_u32 v18, v16, v{CURB}"); a("v_add_u32 v18, 127, v18"); a("v_lshrrev_b32 v18, 7, v18")
    a("v_med3_u32 v18, v18, 1, 10")
    a(f"v_readlane_b32 s{S_T0}, v16, s4"); a(f"v_readlane_b32 s{S_T1}, v16, s5"); a(f"v_readlane_b32 s{S_MORE}, v16, 16")
    a(f"v_readlane_b32 s{S_REM}, v18, s4"); a(f"v_readlane_b32 s{S_TB}, v18, s5")
    a("v_readlane_b32 s50, v18, s48"); a("v_readlane_b32 s51, v18, s49")
    a("s_and_b32 s6, vcc_lo, 0xffff")
    a("s_cbranch_scc0 K_FITS")
    a(f"s_cmp_le_u32 s{S_WIN}, 12")
    a("s_cbranch_scc1 K_FITS")
    a("s_barrier")
    a(f"s_lshr_b32 s{S_WIN}, s{S_WIN}, 1")
    a(f"v_mov_b32 v16, {hex(HUGE)}")
    a(f"v_cmp_gt_u32 vcc, s{S_WIN}, v{I12}")
    a(f"v_cndmask_b32 v{I12}, v16, v{I12}, vcc")
    a("s_waitcnt vmcnt(0)")
    a("s_branch K_RESET")
    a("K_FITS:")
    a(f"s_lshl_b32 s4, s{S_REM}, 7"); a(f"s_add_u32 s{S_END}, s4, s{S_NEXT}")
    a(f"s_lshl_b32 s5, s{S_TB}, 7"); a(f"s_add_u32 s{S_END2}, s5, s{S_JUMP}")
    for cur, end, m in ((S_T0, S_END, S_LO), (S_T1, S_END2, S_HI)):
        a(f"v_add_u32 v16, s{cur}, v{LANEE}")
        a(f"v_cmp_gt_u32 vcc, s{end}, v16")
        a(f"s_and_b64 exec, vcc, {sr(m,2)}")
        a("ds_write_b32 v16, v19")
        a(f"ds_write2st64_b32 v16, v{ZERO}, v{ZERO} offset0:{PO1} offset1:{PO2}")
        a("s_mov_b64 exec, -1")
    WQ2 = 20
    for t in g_reads(0, WQ2) + g_reads(1): a(t)
    a(f"v_mov_b32 v{SW}, v0")
    a("s_add_u32 s50, s50, s51"); a(f"s_add_u32 s51, s{S_REM}, s{S_TB}")
    a(f"s_mul_i32 s50, s50, {opt('fa', 125)}"); a(f"s_mul_i32 s51, s51, {opt('fb', 51)}"); a("s_sub_i32 s50, s50, s51"); a("s_add_i32 s50, s50, 128")
    a("s_ashr_i32 s50, s50, 8"); a("s_max_i32 s50, s50, 0")
    a(f"s_sub_i32 s{S_FLIP}, s{S_REM}, s50"); a(f"s_sub_i32 s{S_FLIP}, s{S_FLIP}, 1"); a(f"s_max_i32 s{S_FLIP}, s{S_FLIP}, 0")
    a(f"s_cmp_lt_u32 s{S_W}, 4"); a(f"s_cselect_b32 s{S_FLIP}, -1, s{S_FLIP}")
    a("s_waitcnt lgkmcnt(2)")
    a(f"v_bfe_u32 v{PIX}, v{W2E}, 7, 15")
    for t in g_addr(WQ2) + g_m0(0): a(t)
    a(f"s_mov_b64 exec, {sr(S_HI,2)}"); a(pos_gather()); a("s_mov_b64 exec, -1")
    for t in g_dma(WQ2): a(t)
    a("s_waitcnt lgkmcnt(0)")
    for t in g_addr() + g_m0(1) + ["s_nop 0"] + g_dma(): a(t)
    a(f"s_cmp_eq_u32 s{S_ROUND}, 1")
    a("s_cbranch_scc1 K_FILL2")
    a(f"v_lshlrev_b32 v16, 4, v{LANE}")
    a(f"s_mov_b32 s3, s{S_ACCO}")
    for i in range(16):
        a(f"buffer_load_dwordx4 {vr(ACCA0+4*i,4)}, v16, {sr(S_ACC,4)}, s3 offen offset:{(i%4)*1024} sc0 sc1")
        if i % 4 == 3: a("s_add_u32 s3, s3, 4096")
    a("s_waitcnt vmcnt(0)")
    a("K_FILL2:")
    for t in e_head(0): a(t)
    a("s_waitcnt vmcnt(4) lgkmcnt(0)")
    for t in a1_reads(0) + e_sect(0, zero=False) + g_reads(0): a(t)
    a("s_waitcnt lgkmcnt(5)")
    a(mfma32(D0, A1, W2F, 0))
    for s in range(1, 4): a(mfma32(D0, A1+4*s, W2F+4*s))
    a("s_waitcnt lgkmcnt(0)")
    a(mfma32(D0, XR, BXA0))
    for t in g_addr() + g_m0(0) + ["s_nop 0"] + g_dma(): a(t)
    a("s_nop 3")
    stamp(a, 9); stamp(a, 10, True)
    if STAMP: a(f"v_writelane_b32 v255, s{S_REM}, 12"); a(f"v_writelane_b32 v255, s{S_TB}, 13"); a("s_mov_b32 s5, 24")
    a("K_XA0:")
    phase_x(a, 0, ACCA1, BXA1, True)
    a(f"s_cmp_eq_u32 s{S_REM}, 0"); a("s_cbranch_scc1 K_YT0")
    phase_y(a, 0, ACCA0, BXA0)
    phase_x(a, 1, ACCA1, BXA1, True)
    a(f"s_cmp_eq_u32 s{S_REM}, 0"); a("s_cbranch_scc1 K_YT1")
    phase_y(a, 1, ACCA0, BXA0)
    a("s_branch K_XA0")
    a("K_YT0:")
    phase_y(a, 0, ACCA0, BXB0)
    phase_x(a, 1, ACCA1, BXB1, False)
    a("s_branch K_YB1")
    a("K_YT1:")
    phase_y(a, 1, ACCA0, BXB0)
    phase_x(a, 0, ACCA1, BXB1, False)
    a("K_YB0:")
    phase_y(a, 0, ACCB0, BXB0)
    a(f"s_sub_u32 s{S_TB}, s{S_TB}, 1"); a(f"s_cmp_eq_u32 s{S_TB}, 0"); a("s_cbranch_scc1 K_DRAIN")
    phase_x(a, 1, ACCB1, BXB1, False)
    a("K_YB1:")
    phase_y(a, 1, ACCB0, BXB0)
    a(f"s_sub_u32 s{S_TB}, s{S_TB}, 1"); a(f"s_cmp_eq_u32 s{S_TB}, 0"); a("s_cbranch_scc1 K_DRAIN")
    phase_x(a, 0, ACCB1, BXB1, False)
    a("s_branch K_YB0")
    a("K_DRAIN:")
    a(mfma32(ACCB1, A2, MP))
    a(mfma32(ACCB1, A2+4, MP+4))
    stamp(a, 16); stamp(a, 11, True)
    a(f"s_cmp_eq_u32 s{S_MORE}, 0")
    a("s_cbranch_scc1 K_EPI")
    a("s_setprio 0")
    a(f"s_mov_b64 exec, {sr(S_HI,2)}"); a(f"ds_write_b64 v{IMGA}, {vr(ZERO,2)}"); a("s_mov_b64 exec, -1")
    a(f"v_lshlrev_b32 v16, 4, v{LANE}")
    a(f"s_mov_b32 s3, s{S_ACCO}")
    a("s_nop 7")
    for i in range(16):
        a(f"buffer_store_dwordx4 {vr(ACCA0+4*i,4)}, v16, {sr(S_ACC,4)}, s3 offen offset:{(i%4)*1024} sc0 sc1")
        if i % 4 == 3: a("s_add_u32 s3, s3, 4096")
    a(f"s_mov_b32 s{S_ROUND}, 2")
    a("s_waitcnt vmcnt(0) lgkmcnt(0)")
    a("s_barrier")
    a("s_branch K_RESET")
    a("K_EPI:")
    whf = lambda f: (16 + 4*f) if f < 12 else (80 + 4*(f-12))
    MB = 108; DO = 116; AD = 100
    a(f"v_lshrrev_b32 v{AD}, 4, v{LANE}"); a(f"v_lshlrev_b32 v{AD}, 4, v{AD}")
    a(f"v_bfe_u32 v{AD+1}, v{LANE}, 2, 2"); a(f"v_add_u32 v{AD}, v{AD}, v{AD+1}"); a(f"v_lshlrev_b32 v{AD}, 7, v{AD}")
    a(f"v_and_b32 v{AD+1}, 3, v{LANE}"); a(f"v_lshl_add_u32 v{AD}, v{AD+1}, 5, v{AD}"); a(f"v_add_u32 v{AD}, {L_WH}, v{AD}")
    a(f"s_mov_b32 s4, {hex(NLN2)}")
    a(f"v_lshrrev_b32 v{AD+2}, 5, v{LANE}"); a(f"v_lshlrev_b32 v{AD+2}, 7, v{AD+2}"); a(f"v_lshrrev_b32 v{AD+3}, 1, v{LANEE}")
    a(f"v_add3_u32 v{AD+2}, v{AD+2}, v{AD+3}, s{S_GB}")
    a(f"v_and_b32 v{AD+3}, 15, v{LANE}"); a(f"v_lshlrev_b32 v{AD+3}, 7, v{AD+3}"); a(f"v_lshrrev_b32 v{AD+4}, 4, v{LANE}")
    a(f"v_lshl_add_u32 v{AD+3}, v{AD+4}, 5, v{AD+3}"); a(f"v_add_u32 v{AD+3}, s{S_GB}, v{AD+3}")
    for g, (c0, c1) in enumerate(((ACCA0, ACCA1), (ACCB0, ACCB1))):
        for q in range(4):
            a(f"v_mul_f32 v{c0+4*q}, s4, v{c0+4*q}"); a(f"v_mul_f32 v{c1+4*q}, s4, v{c1+4*q}")
            a(f"v_cvt_pk_bf16_f32 v{c0+4*q}, v{c0+4*q}, v{c1+4*q}")
    a("s_waitcnt vmcnt(0)")
    for g, (c0, c1) in enumerate(((ACCA0, ACCA1), (ACCB0, ACCB1))):
        for q in range(4):
            a(f"ds_write_b16 v{AD+2}, v{c0+4*q} offset:{g*1024 + q*256}")
            a(f"ds_write_b16_d16_hi v{AD+2}, v{c0+4*q} offset:{g*1024 + q*256 + 64}")
    a(f"ds_read_b128 {vr(MB,4)}, v{AD+3}"); a(f"ds_read_b128 {vr(MB+4,4)}, v{AD+3} offset:16")
    for s in range(4):
        for t in range(4):
            for kk in range(2):
                a(f"ds_read_b64_tr_b16 {vr(whf(t*4+s)+2*kk,2)}, v{AD} offset:{(s>>1)*8192 + (s&1)*1024 + kk*512 + t*8}")
    for w in (WX0, WX1): a(f"v_lshlrev_b32 v{w}, 16, v{w}"); a(f"v_mul_f32 v{w}, s4, v{w}")
    for (c0, c1) in ((ACCA0, ACCA1), (ACCB0, ACCB1)):
        for q in range(4):
            for k in (1, 2, 3):
                a(f"v_mul_f32 v{c0+4*q+k}, v{WX0}, v{c0+4*q+k}"); a(f"v_fmac_f32 v{c0+4*q+k}, v{WX1}, v{c1+4*q+k}")
    a("s_waitcnt lgkmcnt(0)")
    bsrc = (HB, HB+4, MB, MB+4)
    mf = []
    for s in range(4):
        for t in range(4):
            c = "0" if s == 0 else vr(DO+4*t, 4)
            mf.append(f"v_mfma_f32_16x16x32_bf16 {vr(DO+4*t,4)}, {vr(whf(t*4+s),4)}, {vr(bsrc[s],4)}, {c}")
    red = []
    for q in range(4):
        for k in (1, 2, 3): red.append(f"v_permlane16_swap_b32 v{ACCA0+4*q+k}, v{ACCB0+4*q+k}")
    for q in range(4):
        for k in (1, 2, 3): red.append(f"v_add_f32 v{ACCA0+4*q+k}, v{ACCA0+4*q+k}, v{ACCB0+4*q+k}")
    for q in range(2):
        for k in (1, 2, 3):
            red.append(f"v_add_f32_dpp v{ACCA1+4*q+k}, v{ACCA0+4*q+k}, v{ACCA0+4*q+k} row_ror:8 row_mask:0xf bank_mask:0x3")
            red.append(f"v_add_f32_dpp v{ACCA1+4*q+k}, v{ACCA0+4*q+8+k}, v{ACCA0+4*q+8+k} row_ror:8 row_mask:0xf bank_mask:0xc")
    for i, m in enumerate(mf):
        a(m)
        for t in red[2*i:2*i+2]: a(t)
    for t in red[32:]: a(t)
    for k in (1, 2, 3):
        a(f"v_add_f32_dpp v{ACCB1+k}, v{ACCA1+k}, v{ACCA1+k} row_shl:4 row_mask:0xf bank_mask:0x5")
        a(f"v_add_f32_dpp v{ACCB1+k}, v{ACCA1+4+k}, v{ACCA1+4+k} row_shr:4 row_mask:0xf bank_mask:0xa")
    for perm in ("[1,0,3,2]", "[2,3,0,1]"):
        for k in (1, 2, 3): a(f"v_add_f32_dpp v{ACCB1+k}, v{ACCB1+k}, v{ACCB1+k} quad_perm:{perm} row_mask:0xf bank_mask:0xf")
    a(f"v_cmp_eq_u32 vcc, 1, v{AD+1}"); a(f"v_lshlrev_b32 v{PV}, 16, v{PV}"); a(f"s_mov_b32 s4, {hex(NLOG2E)}")
    a(f"v_cndmask_b32 v{AD+5}, v{ACCB1+1}, v{ACCB1+2}, vcc")
    a(f"v_cmp_eq_u32 vcc, 2, v{AD+1}"); a("s_mov_b32 s5, s4"); a("s_mov_b32 s3, 3200000")
    a(f"v_cndmask_b32 v{AD+5}, v{AD+5}, v{ACCB1+3}, vcc")
    a(f"v_add_f32 v{AD+5}, v{AD+5}, v{PV}"); a(f"v_cvt_pk_bf16_f32 v{AD+5}, v{AD+5}, v{AD+5}")
    a(f"buffer_store_short v{AD+5}, v{PA}, {sr(S_OUT,4)}, s3 offen")
    E = 148
    for j in range(8): a(f"v_pk_mul_f32 {vr(E+2*j,2)}, {vr(DO+2*j,2)}, s[4:5]")
    for j in range(16): a(f"v_exp_f32 v{E+j}, v{E+j}")
    for j in range(8): a(f"v_pk_add_f32 {vr(E+2*j,2)}, {vr(E+2*j,2)}, 1.0 op_sel_hi:[1,0]")
    for j in range(16): a(f"v_rcp_f32 v{E+j}, v{E+j}")
    for j in range(8):
        a(f"v_lshlrev_b32 v{E+16+2*j}, 16, v{HB+j}"); a(f"v_and_b32 v{E+17+2*j}, 0xffff0000, v{HB+j}")
    for j in range(8): a(f"v_pk_fma_f32 {vr(E+2*j,2)}, {vr(E+2*j,2)}, {vr(DO+2*j,2)}, {vr(E+16+2*j,2)}")
    for j in range(8): a(f"v_cvt_pk_bf16_f32 v{E+32+j}, v{E+2*j}, v{E+2*j+1}")
    a(f"buffer_store_dwordx4 {vr(E+32,4)}, v{HA}, {sr(S_OUT,4)}, 0 offen")
    a(f"buffer_store_dwordx4 {vr(E+36,4)}, v{HA}, {sr(S_OUT,4)}, 0 offen offset:16")
    stamp(a, 17)
    if STAMP: a("s_waitcnt vmcnt(0)")
    stamp(a, 18)
    stamp_out(a)
    a("K_END:")
    a("s_endpgm")

def main():
    ref = open(f"cdna_kernels/{NAME}.s.ref").read().split("\n")
    head = [l for l in ref if l.startswith(";") and "@launch" not in l and not l.startswith("; Override") and not l.startswith("; grid=")]
    out = "\n".join(head) + "\n"
    if opt("aslist", 0): out += f"; @launch kernel={KN} grid=(256,1,1) block=(512,1,1) lds={LDS}\n"
    else: out += f"; @launch grid=(256,1,1) block=(512,1,1) lds={LDS}\n"
    out += '.amdgcn_target "amdgcn-amd-amdhsa--gfx950"\n.text\n'
    a = Asm(); gen(a)
    for b in a.check_edges(): print("EDGE HAZARD", b, file=sys.stderr)
    out += f".globl {KN}\n.p2align 8\n.type {KN},@function\n" + a.text()
    out += f""".section .rodata,"a"
.p2align 6
.amdhsa_kernel {KN}
  .amdhsa_next_free_vgpr 256
  .amdhsa_next_free_sgpr 102
  .amdhsa_accum_offset 256
  .amdhsa_group_segment_fixed_size 0
  .amdhsa_kernarg_size 88
  .amdhsa_user_sgpr_count 2
  .amdhsa_user_sgpr_kernarg_segment_ptr 1
  .amdhsa_system_sgpr_workgroup_id_x 1
  .amdhsa_float_denorm_mode_32 3
.end_amdhsa_kernel
"""
    open(sys.argv[1], "w").write(out)
main()
```

```python
import sys, math, struct
from asmlib import Asm

NAME = "gather_scatter__cheap_equivariant_egnn__graph"
KN = NAME + "_kernel"
def f32bits(x): return struct.unpack("<I", struct.pack("<f", x))[0]
NLOG2E = f32bits(-math.log2(math.e)); NLN2 = f32bits(-math.log(2.0))
OPT = dict(a.split("=") for a in sys.argv[2:]) if len(sys.argv) > 2 else {}
def opt(k, d): return type(d)(OPT.get(k, d))
STAMP = opt("stamp", 0)

CH = 3128; CHB = CH * 12; CHS = opt('chs', 37632); NQ = CH // 4; NQ_LAST = (800000 - 255 * CH) // 4
WS_GRAN = 0x00A00000; WS_POSF = 0x00B00000; WS_ACC = 0x01000000; WS_STAMP = 0x08000000
GMUL = 10737; GMAGIC = 51201995
L_CUR = 0; L_FLAG = 64; L_EPOCH = 68; L_TBL = 0x100; L_IMG = 0x1100; L_GB = 0x5100
L_WH = L_GB + 8 * 8192
L_REC = L_WH + 16384
PADO = 128 * 98 + 384 * 16; PLANE = 18944; PO1 = PLANE // 256; PO2 = 2 * PO1
L_PAD = L_REC + PADO
LDS = L_REC + 3 * PLANE
L_STG = L_GB; L_HIST = L_GB + 37632; L_OFFS = L_HIST + 1024; L_WF = L_GB + 40960
assert LDS <= 163840 and PADO + 128 <= PLANE and L_GB % 256 == 0
PADW = (32767 << 7) | (7 << 3)
HUGE = 0x40000000
TAGK = 0x9E3779B9

D0 = 16; D1 = 32; T = 48; MP = 64; A2 = 72; A1 = 80; XR = 96
W2F = 100; BXA0 = 132; BXA1 = 136; BXB0 = 140; BXB1 = 144
ACCA0 = 148; ACCA1 = 164; ACCB0 = 180; ACCB1 = 196
COLC = 212; RDA = 216; TRA = 220; IMGB = 221; LANEQ = 222; LANEE = 223
WQ = 224; W2E = 228; ADE = 230; PS = 232; CURB = 235; HA = 236; PA = 237; PV = 238; CURL = 239
PD = 240; WX0 = 243; VAL = 244; IMGA = 246; S8 = 247; S16 = 248; ADQ = 249
ZERO = 250; D2 = 252; PIX = 253; WX1 = 254
LANE = 1; SW = 2; I12 = 3; I12H = 4; BPX = 5; FOUR = 6; TMP = 7; HB = 8
S_H = 8; S_POSF = 12; S_REC = 16; S_POS = 20; S_OUT = 24; S_ACC = 28; S_MASK = 32; S_HJ = 32
S_W = 64; S_B = 65; S_NA = 66; S_NB = 67; S_CA = 68; S_CB = 69
S_LO = 70; S_HI = 72; S_GM = 74; S_TBL = 75; S_TBLA = 76; S_TBLB = 77
S_NEXT = 78; S_END = 79; S_JUMP = 80; S_END2 = 81; S_PADB = 82; S_PADE = 83
S_REM = 84; S_TB = 85; S_GB = 86; S_WIN = 87; S_ROUND = 88; S_MORE = 89; S_T0 = 90; S_T1 = 91; S_T3 = 92
S_SEG = 93; S_ACCO = 94; S_FLIP = 95; S_WX = 96; S_SUB = 100

def vr(b, n): return f"v[{b}:{b+n-1}]"
def sr(b, n): return f"s[{b}:{b+n-1}]"
def srd(a, d, lo, hi, off, num, stride=0):
    if off > 0:
        a(f"s_add_u32 s{d}, s{lo}, {hex(off)}"); a(f"s_addc_u32 s{d+1}, s{hi}, 0")
    elif off < 0:
        a(f"s_sub_u32 s{d}, s{lo}, {hex(-off)}"); a(f"s_subb_u32 s{d+1}, s{hi}, 0")
    else:
        a(f"s_mov_b32 s{d}, s{lo}"); a(f"s_mov_b32 s{d+1}, s{hi}")
    if stride: a(f"s_or_b32 s{d+1}, s{d+1}, {hex(stride << 16)}")
    a(f"s_mov_b32 s{d+2}, {hex(num)}"); a(f"s_mov_b32 s{d+3}, 0x20000")
def stamp(a, idx, cyc=False):
    if not STAMP: return
    a(f"{'s_memtime' if cyc else 's_memrealtime'} s[6:7]"); a("s_waitcnt lgkmcnt(0)"); a(f"v_writelane_b32 v255, s6, {idx}")
def stamp_out(a):
    if not STAMP: return
    a("s_mov_b64 exec, -1")
    a("s_load_dwordx2 s[32:33], s[0:1], 80"); a("s_waitcnt lgkmcnt(0)")
    srd(a, 36, 32, 33, WS_STAMP, 1 << 22)
    a("s_lshl_b32 s32, s2, 4"); a(f"s_add_u32 s32, s32, s{S_W}"); a("s_lshl_b32 s32, s32, 8")
    a(f"v_lshlrev_b32 v16, 2, v{LANE}")
    a("buffer_store_dword v255, v16, s[36:39], s32 offen")

def mfma32(d, a_, b_, c=None):
    return f"v_mfma_f32_32x32x16_bf16 {vr(d,16)}, {vr(a_,4)}, {vr(b_,4)}, {'0' if c == 0 else vr(d,16)}"
def silu_main(d):
    m = [f"v_exp_f32 v{T+j}, v{d+j}" for j in range(16)]
    m += [f"v_pk_add_f32 {vr(T+2*j,2)}, {vr(T+2*j,2)}, 1.0 op_sel_hi:[1,0]" for j in range(8)]
    m += [f"v_rcp_f32 v{T+j}, v{T+j}" for j in range(16)]
    m += [f"v_pk_mul_f32 {vr(T+2*j,2)}, {vr(T+2*j,2)}, {vr(d+2*j,2)}" for j in range(8)]
    m += [f"v_cvt_pk_bf16_f32 v{MP+j}, v{T+2*j}, v{T+2*j+1}" for j in range(8)]
    return m
def emit(a, main, ins):
    for t in ins.get(-1, []): a(t)
    for i, m in enumerate(main):
        a(m)
        for t in ins.get(i, []): a(t)
def gstate(isA=True):
    o = [f"s_add_u32 s{S_NEXT}, s{S_NEXT}, 128", f"s_cmp_eq_u32 s{S_NEXT}, s{S_END}",
         f"s_cselect_b32 s{S_NEXT}, s{S_JUMP}, s{S_NEXT}", f"s_cselect_b32 s{S_END}, s{S_END2}, s{S_END}"]
    if isA: o += [f"s_cselect_b32 s{S_JUMP}, s{S_PADB}, s{S_JUMP}", f"s_cselect_b32 s{S_END2}, s{S_PADE}, s{S_END2}"]
    return o
def g_reads(e, wq=WQ, isA=True):
    return [f"v_add_u32 v{ADQ}, s{S_NEXT}, v{LANEQ}", f"v_add_u32 v{ADE+e}, s{S_NEXT}, v{LANEE}",
            f"ds_read_b128 {vr(wq,4)}, v{ADQ}", f"ds_read_b32 v{W2E+e}, v{ADE+e}"] + gstate(isA)
def g_addr(wq=WQ): return [f"v_and_or_b32 v{wq+j}, v{wq+j}, s{S_GM}, v{COLC+j}" for j in range(4)]
def g_m0(e): return [f"s_add_u32 m0, s{S_GB}, {e*4096}"]
def g_dma(wq=WQ): return [f"buffer_load_dwordx4 v{wq+j}, {sr(S_HJ+4*j,4)}, 0 offen offset:{j*1024} lds" for j in range(4)]
def pos_gather(): return f"buffer_load_dwordx3 {vr(PS,3)}, v{PIX}, {sr(S_POSF,4)}, 0 idxen sc1"
def e_head(e):
    return [f"v_and_b32 v{S8}, 0x38, v{W2E+e}", f"v_lshl_add_u32 v{S16}, v{S8}, 1, s{S_TBL}", f"ds_read_b96 {vr(PD,3)}, v{S16} offset:128",
            f"v_bfe_u32 v{PIX}, v{W2E+1-e}, 7, 15"]
def e_sect(e, zero=True):
    o = [f"v_sub_f32 v{PD+k}, v{PD+k}, v{PS+k}" for k in range(3)]
    o += [f"v_cvt_pk_bf16_f32 v{VAL}, 1.0, v{PD}", f"v_cvt_pk_bf16_f32 v{VAL+1}, v{PD+1}, v{PD+2}",
          f"s_mov_b64 exec, {sr(S_LO,2)}", f"ds_read_b128 {vr(XR,4)}, v{S16}", f"s_mov_b64 exec, {sr(S_HI,2)}",
          f"v_dot2_f32_bf16 v{D2}, v{VAL}, v{VAL}, -1.0", f"v_dot2_f32_bf16 v{D2}, v{VAL+1}, v{VAL+1}, v{D2}",
          f"ds_read2st64_b32 {vr(XR,2)}, v{ADE+e} offset0:{PO1} offset1:{PO2}"]
    if zero: o += [f"ds_write_b64 v{IMGA}, {vr(ZERO,2)}"]
    o += [f"v_add_u32 v{IMGA}, v{S8}, v{IMGB}", f"ds_write_b64 v{IMGA}, {vr(VAL,2)}", pos_gather(),
          f"v_cvt_pk_bf16_f32 v{XR+2}, v{D2}, v{D2}", "s_mov_b64 exec, -1"]
    return o
def a1_reads(e): return [f"ds_read_b128 {vr(A1+4*s,4)}, v{RDA+s} offset:{e*4096}" for s in range(4)]
def tr_reads(): return [f"ds_read_b64_tr_b16 {vr(A2+2*k,2)}, v{TRA} offset:{k*512}" for k in range(4)]

NPF = opt('npf', 4)
PRIO = opt("prio", 2)
_lbl = [0]
def phase_x(a, p, acc1, bx1, isA):
    e = 1 - p
    ins = {}; pre = []
    if isA:
        pre += [f"s_sub_u32 s{S_REM}, s{S_REM}, 1", f"s_cmp_eq_u32 s{S_REM}, 0", f"s_cselect_b32 s{S_TBL}, s{S_TBLB}, s{S_TBLA}"]
        if PRIO == 2:
            _lbl[0] += 1; L = f"KP{_lbl[0]}"
            ins[1] = [f"s_cmp_lg_u32 s{S_REM}, s{S_FLIP}", f"s_cbranch_scc1 {L}", "s_setprio 1", f"{L}:"]
    if STAMP == 2:
        pre += ["s_memtime s[6:7]", "s_waitcnt lgkmcnt(0)", "s_mov_b32 m0, s5", "s_add_u32 s5, s5, 1", "v_writelane_b32 v255, s6, m0"]
    ins[-1] = pre
    ins[0] = [mfma32(acc1, A2, MP)] + e_head(e)
    ins[3] = [mfma32(acc1, A2+4, MP+4)]
    tr = tr_reads()
    ins[4] = tr[:2]; ins[5] = tr[2:]
    ins[6] = [mfma32(D1, XR, bx1, 0)]
    ins[9] = [mfma32(D1, A1, W2F+16)]
    ins[12] = [mfma32(D1, A1+4, W2F+20)]
    ins[17] = ["s_waitcnt vmcnt(4) lgkmcnt(4)"] + e_sect(e)
    ins[20] = g_reads(e, isA=isA)
    ins[24] = [mfma32(D1, A1+8, W2F+24)]
    ins[27] = [mfma32(D1, A1+12, W2F+28)]
    ins[28] = a1_reads(e)
    emit(a, silu_main(D0), ins)

def phase_y(a, p, acc0, bx0):
    e = 1 - p
    ins = {}
    ins[-1] = ["s_waitcnt lgkmcnt(10)"]
    ins[0] = [mfma32(acc0, A2, MP)] + g_m0(e)
    ins[1] = ["s_waitcnt lgkmcnt(5)"] + g_addr()
    ins[3] = [mfma32(acc0, A2+4, MP+4)]
    gd = g_dma()
    ins[6] = ["s_waitcnt lgkmcnt(0)", mfma32(D0, A1, W2F, 0)]
    ins[7] = gd[0:1]; ins[8] = gd[1:2]
    ins[9] = [mfma32(D0, A1+4, W2F+4)]
    ins[10] = gd[2:3]; ins[11] = gd[3:4]
    ins[12] = [mfma32(D0, A1+8, W2F+8)]
    ins[24] = [mfma32(D0, A1+12, W2F+12)]
    ins[27] = [mfma32(D0, XR, bx0)]
    emit(a, silu_main(D1), ins)

def node_sel(a, cond, vnode, vcnt, vtmp):
    a(cond)
    a(f"v_mov_b32 v{vnode}, s{S_NB}"); a(f"v_mov_b32 v{vcnt}, s{S_NA}")
    a(f"v_cndmask_b32 v{vnode}, v{vnode}, v{vcnt}, vcc")
    a(f"v_mov_b32 v{vcnt}, s{S_CB}"); a(f"v_mov_b32 v{vtmp}, s{S_CA}")
    a(f"v_cndmask_b32 v{vcnt}, v{vcnt}, v{vtmp}, vcc")

def cursor_init(a):
    a(f"v_lshlrev_b32 v13, 2, v{LANE}")
    a("s_mov_b64 exec, 0x1ffff"); a(f"ds_write_b32 v13, v{CURB}"); a("s_mov_b64 exec, -1")

def gen(a):
    a(f"{KN}:")
    a("s_cmp_ge_u32 s2, 256")
    a("s_cbranch_scc1 K_END")
    a("s_load_dwordx16 s[32:47], s[0:1], 0")
    a("s_load_dwordx4 s[48:51], s[0:1], 64")
    a("s_load_dwordx2 s[52:53], s[0:1], 80")
    if opt("cpf", 0) == 2:
        a("s_getpc_b64 s[4:5]")
        a("K_PC:")
        a("s_mov_b32 s3, K_END-K_PC-16")
        a("v_lshlrev_b32 v8, 4, v0")
        for k in range(2):
            a(f"v_add_u32 v12, {8192*k}, v8"); a("v_min_u32 v12, s3, v12")
            a(f"global_load_dwordx4 {vr(PD,4)}, v12, s[4:5]")
    stamp(a, 0); stamp(a, 14, True)
    a("s_cmp_eq_u32 s2, 255")
    a(f"s_movk_i32 s4, {NQ - 512}")
    a(f"s_cselect_b32 s4, {NQ_LAST - 512}, s4")
    a(f"s_mul_i32 s3, s2, {CH*4}")
    a("s_lshl_b32 s5, s3, 1")
    a("v_lshlrev_b32 v8, 4, v0")
    a("v_lshlrev_b32 v9, 5, v0")
    a("v_cmp_gt_u32 s[62:63], s4, v0")
    a(f"v_mov_b32 v12, {hex(HUGE)}")
    a("v_add_u32 v10, 0x2000, v8")
    a("v_add_u32 v11, 0x4000, v9")
    a("v_cndmask_b32 v10, v12, v10, s[62:63]")
    a("v_cndmask_b32 v11, v12, v11, s[62:63]")
    a("v_and_b32 v12, 0xff, v0")
    a("v_lshlrev_b32 v12, 2, v12")
    a(f"v_mov_b32 v{ZERO}, 0")
    a(f"ds_write_b32 v12, v{ZERO} offset:{L_HIST}")
    a("s_waitcnt lgkmcnt(0)")
    srd(a, 8, 40, 41, 0, 3200000)
    srd(a, 12, 38, 39, 0, 3200000)
    srd(a, 16, 36, 37, 0, 6400000)
    nt = " nt" if opt("k1nt", 1) else ""
    a(f"buffer_load_dwordx4 v[16:19], v8, s[8:11], s3 offen{nt}")
    a(f"buffer_load_dwordx4 v[20:23], v10, s[8:11], s3 offen{nt}")
    a(f"buffer_load_dwordx4 v[24:27], v8, s[12:15], s3 offen{nt}")
    a(f"buffer_load_dwordx4 v[28:31], v10, s[12:15], s3 offen{nt}")
    a(f"buffer_load_dwordx4 v[32:35], v9, s[16:19], s5 offen{nt}")
    a(f"buffer_load_dwordx4 v[36:39], v9, s[16:19], s5 offen offset:16{nt}")
    a(f"buffer_load_dwordx4 v[40:43], v11, s[16:19], s5 offen{nt}")
    a(f"buffer_load_dwordx4 v[44:47], v11, s[16:19], s5 offen offset:16{nt}")
    NC = 0
    if opt("cpf", 0) == 1:
        a("s_getpc_b64 s[4:5]")
        a("K_PC:")
        a("s_mov_b32 s3, K_END-K_PC-16")
        for k in range(2):
            a(f"v_add_u32 v12, {8192*k}, v8"); a("v_min_u32 v12, s3, v12")
            a(f"global_load_dwordx4 {vr(PD,4)}, v12, s[4:5]")
        NC = 2
    a("s_barrier")
    a(f"v_and_b32 v{LANE}, 63, v0")
    a("v_lshrrev_b32 v12, 6, v0")
    a(f"v_readfirstlane_b32 s{S_W}, v12")
    RW = 148
    srd(a, S_ACC, 50, 51, 0, 256)
    a("v_mov_b32 v12, 0")
    a("s_cmp_lg_u32 s2, 0"); a("s_cbranch_scc1 K_NOEP")
    a(f"s_cmp_lg_u32 s{S_W}, 7"); a("s_cbranch_scc1 K_NOEP")
    a("s_memrealtime s[4:5]")
    a("s_waitcnt lgkmcnt(0)")
    a("s_or_b32 s4, s4, 1")
    a("v_mov_b32 v13, s4")
    a("s_mov_b64 exec, 1")
    a(f"buffer_store_dword v13, v12, {sr(S_ACC,4)}, 0 offen sc0 sc1")
    a("s_mov_b64 exec, -1")
    a("K_NOEP:")
    a(f"v_mov_b32 v{ZERO+1}, 0")
    a("s_and_b32 s3, s2, 7"); a("s_lshl_b32 s3, s3, 5")
    a(f"s_lshr_b32 s{S_B}, s2, 3"); a(f"s_add_u32 s{S_B}, s{S_B}, s3")
    a(f"s_lshl_b32 s4, s{S_B}, 20"); a(f"s_add_u32 s4, s4, {GMUL-1}")
    a(f"s_mov_b32 s7, {GMAGIC}")
    a(f"v_lshl_add_u32 v12, v{LANE}, 16, s4")
    a("v_add_u32 v13, 0x10000, v12")
    a("v_mul_hi_u32 v12, v12, s7"); a("v_mul_hi_u32 v13, v13, s7")
    a("v_lshrrev_b32 v12, 7, v12"); a("v_lshrrev_b32 v13, 7, v13")
    a("v_min_u32 v13, 25000, v13")
    a(f"s_lshl_b32 s4, s{S_W}, 1"); a("s_add_u32 s5, s4, 1")
    a("v_readlane_b32 s3, v12, 0")
    a(f"v_readlane_b32 s{S_NA}, v12, s4"); a(f"v_readlane_b32 s{S_NB}, v12, s5"); a(f"v_readlane_b32 s{S_CB}, v13, s5")
    a(f"v_mul_u32_u24 v14, 384, v{LANE}")
    a("s_lshl_b32 s3, s3, 7"); a(f"s_sub_u32 s3, {L_REC}, s3")
    a(f"v_lshl_add_u32 v{CURB}, v12, 7, v14"); a(f"v_add_u32 v{CURB}, s3, v{CURB}")
    a(f"v_lshl_add_u32 v{CURL}, v13, 7, v14"); a("s_add_u32 s3, s3, 384"); a(f"v_add_u32 v{CURL}, s3, v{CURL}")
    a(f"v_cmp_gt_u32 vcc, 16, v{LANE}")
    a(f"s_sub_u32 s{S_CB}, s{S_CB}, s{S_NB}"); a(f"s_sub_u32 s{S_CA}, s{S_NB}, s{S_NA}")
    a(f"v_cndmask_b32 v{CURB}, 0, v{CURB}, vcc")
    a(f"v_and_b32 v9, 31, v{LANE}")
    a(f"v_lshrrev_b32 v10, 5, v{LANE}")
    a(f"v_lshlrev_b32 v11, 4, v{LANE}")
    a(f"v_and_b32 v12, 7, v{LANE}")
    node_sel(a, f"v_cmp_gt_u32 vcc, 8, v{LANE}", 13, 14, 15)
    a("v_cmp_lt_u32 vcc, v12, v14")
    a(f"v_cmp_gt_u32 s[60:61], 16, v{LANE}")
    a("v_add_u32 v13, v13, v12"); a("v_mov_b32 v14, 0x7fff")
    a("s_and_b64 vcc, vcc, s[60:61]")
    a(f"v_cndmask_b32 v{PIX}, v14, v13, vcc")
    a(f"v_mul_u32_u24 v{D2}, 6, v{PIX}")
    srd(a, S_POS, 34, 35, 0, 150000)
    for j in range(3): a(f"buffer_load_ushort v{RW+8+j}, v{D2}, {sr(S_POS,4)}, 0 offen offset:{2*j}")
    N1 = 3 + NC
    a("v_and_b32 v12, 3, v9"); a("v_bfe_u32 v13, v9, 3, 1"); a("v_lshl_or_b32 v12, v13, 2, v12")
    node_sel(a, "v_cmp_gt_u32 vcc, 16, v9", 13, 14, 15)
    a("v_and_b32 v15, 4, v9"); a("v_lshl_or_b32 v15, v15, 1, v12")
    a("v_cmp_lt_u32 vcc, v15, v14")
    a("v_add_u32 v13, v13, v12"); a("v_lshlrev_b32 v13, 7, v13"); a("v_lshl_add_u32 v13, v10, 4, v13")
    a(f"v_mov_b32 v14, {hex(HUGE)}")
    a(f"v_cndmask_b32 v{S8}, v14, v13, vcc")
    srd(a, S_H, 32, 33, 0, 3200000)
    for s in range(4): a(f"buffer_load_dwordx4 {vr(A1+4*s,4)}, v{S8}, {sr(S_H,4)}, 0 offen offset:{32*s}")
    N1 += 4
    srd(a, 56, 42, 43, 0, 133 * 128)
    srd(a, 40, 46, 47, 0, 128 * 128)
    if opt("wpf", 1):
        a("s_lshr_b32 s4, s2, 3"); a("s_lshl_b32 s4, s4, 10"); a("s_and_b32 s5, s4, 0x3fff")
        a(f"s_cmp_lg_u32 s{S_W}, 6"); a("s_cbranch_scc1 K_NOWPF")
        a(f"buffer_load_dwordx4 {vr(PD,4)}, v11, s[56:59], s4 offen")
        a(f"buffer_load_dwordx4 {vr(PD,4)}, v11, s[40:43], s5 offen")
        a("K_NOWPF:")
    srd(a, S_POSF, 52, 53, WS_POSF, 25000, stride=16)
    srd(a, S_REC, 52, 53, 0, WS_GRAN + 256 * 4096)
    a("v_mov_b32 v14, 12")
    a(f"s_mul_i32 s54, s2, {CHS}")
    for g in range(2):
        a(f"s_waitcnt vmcnt({N1 + 7 - g})")
        if g == 0: stamp(a, 1)
        if g == 1: a("s_mov_b64 exec, s[62:63]")
        for k in range(4):
            i = 4*g + k
            a(f"v_mul_u32_u24 v{48+i}, {hex(GMUL)}, v{16+i}")
            a(f"v_lshrrev_b32 v{56+i}, 18, v{48+i}")
            a(f"v_and_b32 v{56+i}, 0x3fc, v{56+i}")
            a(f"ds_add_rtn_u32 v{64+i}, v{56+i}, v14 offset:{L_HIST}")
    a("s_mov_b64 exec, -1")
    a(f"buffer_load_dword v{RW+12}, v{ZERO}, {sr(S_ACC,4)}, 0 offen sc0 sc1")
    N1 += 1
    a("s_mov_b32 s6, 400016")
    for i in range(8):
        a(f"v_and_b32 v{16+i}, 0xffff, v{48+i}")
        a(f"v_mul_hi_u32 v{16+i}, v{16+i}, s6")
        a(f"v_bfe_u32 v{48+i}, v{48+i}, 16, 4")
        a(f"v_lshlrev_b32 v{16+i}, 3, v{16+i}")
        a(f"v_lshl_or_b32 v{16+i}, v{48+i}, 24, v{16+i}")
    a("s_waitcnt lgkmcnt(0)")
    a("s_barrier")
    stamp(a, 2)
    a(f"ds_read_b128 v[72:75], v11 offset:{L_HIST}")
    a(f"s_lshl_b32 s4, s{S_W}, 8")
    a(f"v_lshl_add_u32 v15, v{LANE}, 2, s4")
    a(f"ds_read_b32 v76, v15 offset:{L_HIST}")
    a("s_waitcnt lgkmcnt(1)")
    a("v_add_u32 v49, v72, v73"); a("v_add_u32 v50, v49, v74"); a("v_add_u32 v51, v50, v75")
    a("v_mov_b32 v52, v51")
    for sh in (1, 2, 4, 8): a(f"v_add_u32_dpp v52, v52, v52 row_shr:{sh} row_mask:0xf bank_mask:0xf bound_ctrl:0")
    a("v_add_u32_dpp v52, v52, v52 row_bcast:15 row_mask:0xa bank_mask:0xf")
    a("v_add_u32_dpp v52, v52, v52 row_bcast:31 row_mask:0xc bank_mask:0xf")
    a("v_sub_u32 v52, v52, v51"); a("v_add_u32 v53, v52, v72"); a("v_add_u32 v54, v52, v49"); a("v_add_u32 v55, v52, v50")
    a(f"ds_write_b128 v11, v[52:55] offset:{L_OFFS}")
    a("s_waitcnt lgkmcnt(0)")
    for i in range(8): a(f"ds_read_b32 v{48+i}, v{56+i} offset:{L_OFFS}")
    a(f"ds_read_b32 v77, v15 offset:{L_OFFS}")
    a(f"s_waitcnt vmcnt({N1 + 4})")
    for i in range(8): a(f"v_lshl_or_b32 v{16+i}, v{24+i}, 7, v{16+i}")
    a("s_waitcnt lgkmcnt(0)")
    for i in range(8): a(f"v_add_u32 v{48+i}, v{48+i}, v{64+i}")
    a("v_lshl_or_b32 v76, v76, 16, v77")
    for g in range(2):
        if g == 1: a("s_mov_b64 exec, s[62:63]")
        for k in range(4): a(f"ds_write_b32 v{48+4*g+k}, v{16+4*g+k} offset:{L_STG+8}")
        for k in range(4): a(f"v_add_u32 v{56+4*g+k}, {L_STG}, v{48+4*g+k}")
        a(f"s_waitcnt vmcnt({N1 + 2 - 2*g})")
        for k in range(4):
            i = 4*g + k
            a(f"ds_write2_b32 v{56+i}, v{32+2*i}, v{33+2*i} offset0:0 offset1:1")
    a("s_mov_b64 exec, -1")
    N2 = 9
    a(f"v_cmp_gt_u32 vcc, {CHS//16 - 2048}, v0")
    a(f"v_mov_b32 v12, {hex(HUGE)}")
    a("v_cndmask_b32 v12, v12, v8, vcc")
    a("s_waitcnt vmcnt(5)")
    for j in range(3): a(f"v_lshlrev_b32 v{68+j}, 16, v{RW+8+j}")
    a("v_mov_b32 v71, 0")
    a("s_mov_b64 exec, 0xffff")
    a(f"buffer_store_dwordx4 v[68:71], v{PIX}, {sr(S_POSF,4)}, 0 idxen sc1")
    a("s_mov_b64 exec, -1")
    a("s_movk_i32 s4, 0x2000")
    a(f"buffer_load_dwordx4 {vr(RW,4)}, v8, {sr(56,4)}, s4 offen")
    a("s_movk_i32 s4, 0x4000")
    a(f"buffer_load_dwordx4 {vr(RW+4,4)}, v11, {sr(56,4)}, s4 offen")
    a(f"s_lshl_b32 s5, s{S_W}, 10")
    a(f"s_add_u32 m0, s5, {L_WF + 8192}"); a("s_nop 0")
    a(f"buffer_load_dwordx4 v8, {sr(56,4)}, 0 offen lds")
    a(f"s_add_u32 m0, s5, {L_WH}"); a("s_nop 0")
    a(f"buffer_load_dwordx4 v8, s[40:43], 0 offen lds")
    a(f"s_add_u32 m0, s5, {L_WH + 8192}"); a("s_movk_i32 s4, 0x2000")
    a(f"buffer_load_dwordx4 v8, s[40:43], s4 offen lds")
    stamp(a, 3)
    a("s_waitcnt lgkmcnt(0)")
    a("s_barrier")
    for j in range(5): a(f"ds_read_b128 {vr(16+4*j,4)}, v8 offset:{L_STG + 8192*j}")
    for j in range(5):
        a(f"s_waitcnt lgkmcnt({4-j})")
        a(f"buffer_store_dwordx4 {vr(16+4*j,4)}, v{8 if j < 4 else 12}, {sr(S_REC,4)}, s54 offen sc1")
        if j < 4: a("s_add_u32 s54, s54, 8192")
    stamp(a, 4)
    srd(a, S_OUT, 48, 49, 0, 3350000)
    srd(a, S_WX, 44, 45, 0, 128)
    cursor_init(a)
    a(f"s_mov_b32 s{S_LO}, -1"); a(f"s_mov_b32 s{S_LO+1}, 0"); a(f"s_mov_b32 s{S_HI}, 0"); a(f"s_mov_b32 s{S_HI+1}, -1")
    a(f"s_mov_b32 s{S_GM}, 0x3fff80")
    a(f"s_lshl_b32 s{S_TBLA}, s{S_W}, 9"); a(f"s_add_u32 s{S_TBLA}, s{S_TBLA}, {L_TBL}"); a(f"s_add_u32 s{S_TBLB}, s{S_TBLA}, 256")
    a(f"s_lshl_b32 s{S_GB}, s{S_W}, 13"); a(f"s_add_u32 s{S_GB}, s{S_GB}, {L_GB}")
    a(f"s_mov_b32 s{S_WIN}, {32*12}"); a(f"s_mov_b32 s{S_ROUND}, 1"); a(f"s_mov_b32 s{S_PADB}, {L_PAD}"); a(f"s_mov_b32 s{S_PADE}, {L_PAD+128}")
    a(f"s_lshl_b32 s{S_ACCO}, s2, 3"); a(f"s_add_u32 s{S_ACCO}, s{S_ACCO}, s{S_W}"); a(f"s_lshl_b32 s{S_ACCO}, s{S_ACCO}, 14")
    a(f"s_mul_i32 s{S_SEG}, s{S_W}, {32*CHS}")
    a(f"v_mov_b32 v{FOUR}, 4")
    a(f"v_mul_u32_u24 v{I12}, 12, v9"); a(f"v_mul_u32_u24 v{I12H}, {CHS}, v10"); a(f"v_add_u32 v{I12H}, v{I12H}, v{I12}")
    a(f"v_lshlrev_b32 v{BPX}, 2, v10")
    a(f"s_lshl_b32 s4, s{S_W}, 11"); a(f"s_add_u32 s4, s4, {L_IMG}")
    for j in range(4): a(f"v_mov_b32 v{48+j}, 0")
    a("v_add_u32 v12, s4, v11")
    a("ds_write_b128 v12, v[48:51]"); a("ds_write_b128 v12, v[48:51] offset:1024")
    a(f"v_lshl_add_u32 v{IMGB}, v9, 6, s4")
    a(f"v_bfe_u32 v12, v{LANE}, 2, 2"); a("v_lshl_add_u32 v12, v10, 2, v12"); a("v_lshlrev_b32 v12, 6, v12")
    a(f"v_bfe_u32 v13, v{LANE}, 4, 1"); a("v_lshl_add_u32 v12, v13, 5, v12")
    a(f"v_and_b32 v13, 3, v{LANE}"); a("v_lshl_add_u32 v12, v13, 3, v12")
    a(f"v_add_u32 v{TRA}, s4, v12")
    a(f"v_and_b32 v12, 7, v{LANE}"); a("v_lshrrev_b32 v13, 1, v12"); a("v_and_b32 v14, 1, v12"); a("v_lshlrev_b32 v14, 4, v14")
    a("v_mov_b32 v60, 0x3f80"); a("v_lshlrev_b32 v14, v14, v60")
    for j in range(4):
        a(f"v_cmp_eq_u32 vcc, {j}, v13"); a(f"v_cndmask_b32 v{48+j}, 0, v14, vcc")
    a(f"v_bfe_u32 v13, v{LANE}, 3, 1"); a("v_lshlrev_b32 v13, 8, v13"); a("v_lshl_add_u32 v13, v12, 4, v13")
    a(f"v_add_u32 v{TMP}, s{S_TBLA}, v13")
    a("s_mov_b64 exec, 0xffff"); a(f"ds_write_b128 v{TMP}, v[48:51]"); a(f"ds_write_b128 v{TMP}, v[68:71] offset:128"); a("s_mov_b64 exec, -1")
    a(f"v_and_b32 v12, 7, v{LANE}"); a(f"v_bfe_u32 v13, v{LANE}, 4, 1"); a("v_lshlrev_b32 v13, 2, v13"); a("v_xor_b32 v12, v12, v13")
    for j in range(4):
        a(f"v_xor_b32 v13, {j}, v12"); a(f"v_lshlrev_b32 v{COLC+j}, 4, v13")
    a("v_and_b32 v12, 3, v9"); a("v_lshrrev_b32 v13, 2, v9"); a("v_lshl_add_u32 v13, v12, 3, v13"); a("v_lshlrev_b32 v13, 7, v13")
    a(f"v_add_u32 v13, s{S_GB}, v13")
    a("v_bfe_u32 v14, v9, 3, 1"); a("v_lshl_or_b32 v12, v14, 2, v12"); a("v_xor_b32 v12, v12, v10")
    for s in range(4):
        a(f"v_xor_b32 v14, {2*s}, v12"); a(f"v_lshl_add_u32 v{RDA+s}, v14, 4, v13")
    a(f"v_lshrrev_b32 v12, 3, v{LANE}"); a(f"v_lshlrev_b32 v{LANEQ}, 4, v12"); a(f"v_lshlrev_b32 v{LANEE}, 2, v9")
    a(f"v_mov_b32 v12, {hex(PADW)}"); a(f"v_add_u32 v13, s{S_PADB}, v{LANEE}")
    a("ds_write_b32 v13, v12"); a(f"ds_write2st64_b32 v13, v{ZERO}, v{ZERO} offset0:{PO1} offset1:{PO2}")
    a(f"v_mov_b32 v{XR+3}, 0")
    a(f"s_mov_b32 s4, {hex(NLOG2E)}"); a("s_mov_b32 s5, s4")
    a("s_waitcnt vmcnt(8)")
    for j in range(8):
        a(f"v_lshlrev_b32 v{32+2*j}, 16, v{RW+j}"); a(f"v_and_b32 v{33+2*j}, 0xffff0000, v{RW+j}")
    for j in range(8): a(f"v_pk_mul_f32 {vr(32+2*j,2)}, {vr(32+2*j,2)}, s[4:5]")
    for j in range(8): a(f"v_cvt_pk_bf16_f32 v{48+j}, v{32+2*j}, v{33+2*j}")
    a(f"v_add_u32 v16, {L_WF}, v8")
    a("ds_write_b128 v16, v[48:51]")
    for j in range(4):
        a(f"v_lshlrev_b32 v{56+2*j}, 16, v{52+j}"); a(f"v_and_b32 v{57+2*j}, 0xffff0000, v{52+j}")
    for j in range(4): a(f"v_pk_add_f32 {vr(56+2*j,2)}, {vr(40+2*j,2)}, {vr(56+2*j,2)} neg_lo:[0,1] neg_hi:[0,1]")
    for j in range(4): a(f"v_cvt_pk_bf16_f32 v{56+j}, v{56+2*j}, v{57+2*j}")
    a(f"v_add_u32 v16, {L_WF + 16384 - 128}, v11")
    a(f"v_add_u32 v17, {L_WF + 16384 + 512}, v11")
    a("s_mov_b64 exec, 0xff")
    a("ds_write_b128 v17, v[52:55]"); a("ds_write_b128 v17, v[56:59] offset:128")
    a("s_mov_b32 s6, 0xffffff00"); a("s_mov_b32 s7, 0xff0000ff"); a("s_mov_b64 exec, s[6:7]")
    a("ds_write_b128 v16, v[52:55]")
    a("s_mov_b32 s6, 0"); a("s_mov_b32 s7, 0xff000000"); a("s_mov_b64 exec, s[6:7]")
    a("ds_write_b128 v16, v[52:55] offset:128")
    a("s_mov_b64 exec, -1")
    a(f"v_bfe_u32 v18, v{LANE}, 2, 2"); a("v_lshlrev_b32 v16, 7, v18")
    a(f"v_bfe_u32 v18, v{LANE}, 4, 1"); a("v_lshl_add_u32 v16, v18, 5, v16")
    a(f"v_and_b32 v18, 3, v{LANE}"); a("v_lshl_add_u32 v16, v18, 3, v16")
    a(f"v_add_u32 v{VAL}, {L_WF + 16384}, v16")
    a("v_lshl_add_u32 v16, v10, 10, v16"); a(f"v_add_u32 v{VAL+1}, {L_WF}, v16")
    a(f"s_mov_b32 s5, {opt('spin', 200000)}")
    a("K_EPW:")
    a(f"v_readfirstlane_b32 s4, v{RW+12}")
    a("s_cmp_lg_u32 s4, 0"); a("s_cbranch_scc1 K_EPOK")
    a("s_sub_u32 s5, s5, 1"); a("s_cmp_eq_u32 s5, 0"); a("s_cbranch_scc1 K_EPOK")
    a(f"buffer_load_dword v{RW+12}, v{ZERO}, {sr(S_ACC,4)}, 0 offen sc0 sc1")
    a("s_waitcnt vmcnt(0)")
    a("s_branch K_EPW")
    a("K_EPOK:")
    srd(a, S_ACC, 52, 53, WS_ACC, 256 * 8 * 16384)
    a(f"v_mov_b32 v77, v{RW+12}")
    a("s_lshl_b32 s3, s2, 12"); a(f"s_add_u32 s3, s3, {hex(WS_GRAN)}")
    a("v_lshlrev_b32 v15, 2, v15")
    a(f"s_mov_b32 s4, {hex(TAGK)}")
    a("v_not_b32 v79, v77"); a("v_xor_b32 v14, s4, v77"); a("v_xor_b32 v78, v76, v14")
    a("v_lshlrev_b32 v13, 12, v9")
    a(f"s_lshl_b32 s5, s{S_W}, 17"); a(f"s_lshl_b32 s6, s{S_B}, 4"); a("s_add_u32 s5, s5, s6"); a(f"s_add_u32 s{S_T3}, s5, {hex(WS_GRAN)}")
    a("s_waitcnt vmcnt(0) lgkmcnt(0)")
    stamp(a, 5)
    a("s_barrier")
    a(f"s_cmp_ge_u32 s{S_W}, 4")
    a("s_cbranch_scc1 K_NOPUB")
    a(f"buffer_store_dwordx4 v[76:79], v15, {sr(S_REC,4)}, s3 offen sc1")
    a("K_NOPUB:")
    if opt("epoll", 0):
        a(f"s_mov_b64 exec, {sr(S_LO,2)}")
        a(f"buffer_load_dwordx4 v[72:75], v13, {sr(S_REC,4)}, s{S_T3} offen sc1")
        a("s_mov_b64 exec, -1")
    WT = ACCB0
    for f in range(8):
        for kk in range(2): a(f"ds_read_b64_tr_b16 {vr(WT+4*f+2*kk,2)}, v{VAL+1} offset:{8192 + (f&3)*2048 + kk*512 + (f>>2)*64}")
    a("s_waitcnt lgkmcnt(8)")
    for s in range(4): a(mfma32(ACCA0, A1+4*s, WT + 4*s, 0 if s == 0 else None))
    for nh, b in ((0, BXA0), (1, BXA1), (0, BXB0), (1, BXB1)):
        for kk in range(2): a(f"ds_read_b64_tr_b16 {vr(b+2*kk,2)}, v{VAL} offset:{kk*512 + nh*64}")
    a("s_waitcnt lgkmcnt(8)")
    for s in range(4): a(mfma32(ACCA1, A1+4*s, WT + 16 + 4*s, 0 if s == 0 else None))
    a("s_waitcnt lgkmcnt(0)")
    for f in range(8):
        for kk in range(2): a(f"ds_read_b64_tr_b16 {vr(W2F+4*f+2*kk,2)}, v{VAL+1} offset:{(f&3)*2048 + kk*512 + (f>>2)*64}")
    a(f"s_mov_b32 s4, {hex(NLOG2E)}"); a("s_mov_b32 s5, s4")
    a(f"s_mov_b64 exec, {sr(S_LO,2)}")
    for nh, d, ba, bb in ((0, ACCA0, BXA0, BXB0), (1, ACCA1, BXA1, BXB1)):
        for j in range(8): a(f"v_pk_mul_f32 {vr(d+2*j,2)}, {vr(d+2*j,2)}, s[4:5]")
        for j in range(4):
            a(f"v_cvt_pk_bf16_f32 v{ba+j}, v{d+2*j}, v{d+2*j+1}")
            a(f"v_cvt_pk_bf16_f32 v{bb+j}, v{d+8+2*j}, v{d+8+2*j+1}")
    a("s_mov_b64 exec, -1")
    for i in range(64): a(f"v_mov_b32 v{ACCA0+i}, 0")
    a(f"v_mov_b32 v{SW}, 0")
    a(f"s_mov_b64 exec, {sr(S_LO,2)}")
    a(f"s_mov_b32 s5, {opt('spin', 200000)}")
    if opt("epoll", 0): a("s_branch K_POLL2")
    a("K_POLL:")
    a(f"buffer_load_dwordx4 v[72:75], v13, {sr(S_REC,4)}, s{S_T3} offen sc1")
    a("K_POLL2:")
    a("s_waitcnt vmcnt(0)")
    a("v_xor_b32 v74, v72, v74")
    a("v_cmp_eq_u32 vcc, v73, v77"); a("v_cmp_eq_u32 s[60:61], v75, v79"); a("v_cmp_eq_u32 s[58:59], v74, v14")
    a("s_and_b64 vcc, vcc, s[60:61]"); a("s_and_b64 vcc, vcc, s[58:59]")
    a(f"v_cndmask_b32 v{SW}, v{SW}, v72, vcc")
    a("s_andn2_b64 exec, exec, vcc")
    a("s_cbranch_execz K_GOT")
    a("s_sub_u32 s5, s5, 1")
    a("s_cmp_eq_u32 s5, 0")
    a("s_cbranch_scc1 K_GOT")
    if opt("slp", 4): a(f"s_sleep {opt('slp', 4)}")
    a("s_branch K_POLL")
    a("K_GOT:")
    a("s_mov_b64 exec, -1")
    if STAMP: a("v_writelane_b32 v255, s5, 15")
    stamp(a, 6)
    a(f"v_mov_b32 v0, v{SW}")
    a(f"s_mov_b32 s{S_SUB}, 0")
    a("s_waitcnt lgkmcnt(0)")
    a("s_branch K_ROUND")
    a("K_RESET:")
    cursor_init(a)
    a(f"v_mov_b32 v0, v{SW}")
    a(f"s_mov_b32 s{S_SUB}, 1")
    a("s_waitcnt lgkmcnt(0)")
    a("s_barrier")
    a("K_ROUND:")
    for p in range(16): a(f"ds_bpermute_b32 v{16+4*p+3}, v{BPX}, v0 offset:{8*p}")
    a(f"s_mov_b32 s3, s{S_SEG}")
    for p in range(16):
        r = 16 + 4*p
        a(f"s_waitcnt lgkmcnt({15-p})")
        a(f"v_cmp_lt_u32_sdwa {sr(S_MASK+2*p,2)}, v{I12}, v{r+3} src0_sel:DWORD src1_sel:WORD_1")
        a(f"v_add_u32_sdwa v{r+3}, v{r+3}, v{I12H} dst_sel:DWORD dst_unused:UNUSED_PAD src0_sel:WORD_0 src1_sel:DWORD")
        a(f"s_or_b64 exec, {sr(S_MASK+2*p,2)}, 1")
        a(f"buffer_load_dwordx3 {vr(r,3)}, v{r+3}, {sr(S_REC,4)}, s3 offen sc1")
        a("s_mov_b64 exec, -1")
        a(f"s_add_u32 s3, s3, {2*CHS}")
    stamp(a, 7)
    a("v_lshrrev_b32 v12, 16, v0")
    a(f"v_cmp_lt_u32 vcc, s{S_WIN}, v12")
    a(f"v_min_u32 v12, s{S_WIN}, v12")
    a("v_add_u32 v0, v0, v12"); a("v_lshlrev_b32 v12, 16, v12"); a("v_sub_u32 v0, v0, v12")
    a(f"s_mov_b32 s{S_MORE}, vcc_lo")
    a(f"v_and_b32 v12, 7, v{LANE}"); a(f"v_and_b32 v13, 8, v{LANE}")
    node_sel(a, "v_cmp_eq_u32 vcc, 0, v13", 13, 14, 15)
    a("v_cmp_lt_u32 vcc, v12, v14")
    a("v_add_u32 v13, v13, v12"); a("v_lshlrev_b32 v13, 7, v13")
    a(f"v_lshrrev_b32 v14, 4, v{LANE}"); a("v_lshl_add_u32 v13, v14, 5, v13")
    a(f"v_mov_b32 v15, {hex(HUGE)}")
    a(f"v_cndmask_b32 v{HA}, v15, v13, vcc")
    a(f"v_bfe_u32 v12, v{LANE}, 2, 2"); a(f"v_lshrrev_b32 v13, 5, v{LANE}"); a("v_lshl_add_u32 v12, v12, 1, v13")
    a(f"v_and_b32 v13, 16, v{LANE}")
    node_sel(a, "v_cmp_eq_u32 vcc, 0, v13", 13, 14, 15)
    a("v_cmp_lt_u32 vcc, v12, v14")
    a("v_add_u32 v13, v13, v12"); a("v_mul_u32_u24 v13, 6, v13")
    a(f"v_and_b32 v14, 3, v{LANE}"); a("v_lshl_add_u32 v13, v14, 1, v13")
    a(f"v_cmp_gt_u32 {sr(S_T0,2)}, 3, v14")
    a(f"v_mov_b32 v15, {hex(HUGE)}")
    a(f"s_and_b64 vcc, vcc, {sr(S_T0,2)}")
    a(f"v_cndmask_b32 v{PA}, v15, v13, vcc")
    for p in range(16):
        r = 16 + 4*p
        a(f"s_waitcnt vmcnt({15-p + min(p, NPF)})")
        a(f"s_mov_b64 exec, {sr(S_MASK+2*p,2)}")
        a(f"v_bfe_u32 v{r+3}, v{r+2}, 22, 6")
        a(f"ds_add_rtn_u32 v{r+3}, v{r+3}, v{FOUR}")
        if p < NPF:
            a(f"v_and_b32 v{ADQ}, s{S_GM}, v{r+2}")
            a(f"s_or_b64 exec, {sr(S_MASK+2*p,2)}, 1")
            a(f"buffer_load_dword v{S16}, v{ADQ}, {sr(S_H,4)}, 0 offen")
        if p % 4 == 3:
            a("s_waitcnt lgkmcnt(0)")
            for q in range(p-3, p+1):
                rq = 16 + 4*q
                a(f"s_mov_b64 exec, {sr(S_MASK+2*q,2)}")
                a(f"ds_write_b32 v{rq+3}, v{rq+2}")
                a(f"ds_write2st64_b32 v{rq+3}, v{rq}, v{rq+1} offset0:{PO1} offset1:{PO2}")
    a("s_mov_b64 exec, -1")
    a(f"s_cmp_eq_u32 s{S_MORE}, 0")
    a("s_cbranch_scc1 K_BINNED")
    a(f"s_cmp_eq_u32 s{S_SUB}, 0")
    a(f"s_mov_b32 s{S_SUB}, 1")
    a("s_cbranch_scc1 K_ROUND")
    a(f"v_mov_b32 v13, {L_FLAG}")
    a(f"ds_write_b32 v13, v{FOUR}")
    a("K_BINNED:")
    stamp(a, 8)
    a(f"buffer_load_dwordx4 {vr(HB,4)}, v{HA}, {sr(S_H,4)}, 0 offen")
    a(f"buffer_load_dwordx4 {vr(HB+4,4)}, v{HA}, {sr(S_H,4)}, 0 offen offset:16")
    a(f"v_lshrrev_b32 v16, 1, v{LANEE}")
    a(f"buffer_load_ushort v{WX0}, v16, {sr(S_WX,4)}, 0 offen")
    a(f"buffer_load_ushort v{WX1}, v16, {sr(S_WX,4)}, 0 offen offset:64")
    a(f"buffer_load_ushort v{PV}, v{PA}, {sr(S_POS,4)}, 0 offen")
    for j in range(4): srd(a, S_HJ+4*j, S_H, S_H+1, -1024*j, 3200000 + 1024*j)
    for i in range(16): a(f"v_mov_b32 v{MP+i}, 0")
    a(f"v_lshlrev_b32 v17, 2, v{LANE}")
    a(f"s_lshl_b32 s4, s{S_W}, 1"); a("s_add_u32 s5, s4, 1")
    a("s_xor_b32 s48, s4, 8"); a("s_xor_b32 s49, s5, 8")
    a(f"v_readlane_b32 s{S_NEXT}, v{CURB}, s4"); a(f"v_readlane_b32 s{S_JUMP}, v{CURB}, s5")
    a(f"v_mov_b32 v19, {hex(PADW)}")
    a(f"s_mov_b32 s{S_TBL}, s{S_TBLA}")
    a("s_waitcnt lgkmcnt(0)")
    a("s_barrier")
    a("ds_read_b32 v16, v17")
    a("s_waitcnt lgkmcnt(0)")
    a(f"v_cmp_gt_u32 vcc, v16, v{CURL}")
    a(f"v_sub_u32 v18, v16, v{CURB}"); a("v_add_u32 v18, 127, v18"); a("v_lshrrev_b32 v18, 7, v18")
    a("v_med3_u32 v18, v18, 1, 10")
    a(f"v_readlane_b32 s{S_T0}, v16, s4"); a(f"v_readlane_b32 s{S_T1}, v16, s5"); a(f"v_readlane_b32 s{S_MORE}, v16, 16")
    a(f"v_readlane_b32 s{S_REM}, v18, s4"); a(f"v_readlane_b32 s{S_TB}, v18, s5")
    a("v_readlane_b32 s50, v18, s48"); a("v_readlane_b32 s51, v18, s49")
    a("s_and_b32 s6, vcc_lo, 0xffff")
    a("s_cbranch_scc0 K_FITS")
    a(f"s_cmp_le_u32 s{S_WIN}, 12")
    a("s_cbranch_scc1 K_FITS")
    a("s_barrier")
    a(f"s_lshr_b32 s{S_WIN}, s{S_WIN}, 1")
    a(f"v_mov_b32 v16, {hex(HUGE)}")
    a(f"v_cmp_gt_u32 vcc, s{S_WIN}, v{I12}")
    a(f"v_cndmask_b32 v{I12}, v16, v{I12}, vcc")
    a("s_waitcnt vmcnt(0)")
    a("s_branch K_RESET")
    a("K_FITS:")
    a(f"s_lshl_b32 s4, s{S_REM}, 7"); a(f"s_add_u32 s{S_END}, s4, s{S_NEXT}")
    a(f"s_lshl_b32 s5, s{S_TB}, 7"); a(f"s_add_u32 s{S_END2}, s5, s{S_JUMP}")
    for cur, end, m in ((S_T0, S_END, S_LO), (S_T1, S_END2, S_HI)):
        a(f"v_add_u32 v16, s{cur}, v{LANEE}")
        a(f"v_cmp_gt_u32 vcc, s{end}, v16")
        a(f"s_and_b64 exec, vcc, {sr(m,2)}")
        a("ds_write_b32 v16, v19")
        a(f"ds_write2st64_b32 v16, v{ZERO}, v{ZERO} offset0:{PO1} offset1:{PO2}")
        a("s_mov_b64 exec, -1")
    WQ2 = 20
    for t in g_reads(0, WQ2) + g_reads(1): a(t)
    a(f"v_mov_b32 v{SW}, v0")
    a("s_add_u32 s50, s50, s51"); a(f"s_add_u32 s51, s{S_REM}, s{S_TB}")
    a(f"s_mul_i32 s50, s50, {opt('fa', 125)}"); a(f"s_mul_i32 s51, s51, {opt('fb', 51)}"); a("s_sub_i32 s50, s50, s51"); a("s_add_i32 s50, s50, 128")
    a("s_ashr_i32 s50, s50, 8"); a("s_max_i32 s50, s50, 0")
    a(f"s_sub_i32 s{S_FLIP}, s{S_REM}, s50"); a(f"s_sub_i32 s{S_FLIP}, s{S_FLIP}, 1"); a(f"s_max_i32 s{S_FLIP}, s{S_FLIP}, 0")
    a(f"s_cmp_lt_u32 s{S_W}, 4"); a(f"s_cselect_b32 s{S_FLIP}, -1, s{S_FLIP}")
    a("s_waitcnt lgkmcnt(2)")
    a(f"v_bfe_u32 v{PIX}, v{W2E}, 7, 15")
    for t in g_addr(WQ2) + g_m0(0): a(t)
    a(f"s_mov_b64 exec, {sr(S_HI,2)}"); a(pos_gather()); a("s_mov_b64 exec, -1")
    for t in g_dma(WQ2): a(t)
    a("s_waitcnt lgkmcnt(0)")
    for t in g_addr() + g_m0(1) + ["s_nop 0"] + g_dma(): a(t)
    a(f"s_cmp_eq_u32 s{S_ROUND}, 1")
    a("s_cbranch_scc1 K_FILL2")
    a(f"v_lshlrev_b32 v16, 4, v{LANE}")
    a(f"s_mov_b32 s3, s{S_ACCO}")
    for i in range(16):
        a(f"buffer_load_dwordx4 {vr(ACCA0+4*i,4)}, v16, {sr(S_ACC,4)}, s3 offen offset:{(i%4)*1024} sc0 sc1")
        if i % 4 == 3: a("s_add_u32 s3, s3, 4096")
    a("s_waitcnt vmcnt(0)")
    a("K_FILL2:")
    for t in e_head(0): a(t)
    a("s_waitcnt vmcnt(4) lgkmcnt(0)")
    for t in a1_reads(0) + e_sect(0, zero=False) + g_reads(0): a(t)
    a("s_waitcnt lgkmcnt(5)")
    a(mfma32(D0, A1, W2F, 0))
    for s in range(1, 4): a(mfma32(D0, A1+4*s, W2F+4*s))
    a("s_waitcnt lgkmcnt(0)")
    a(mfma32(D0, XR, BXA0))
    for t in g_addr() + g_m0(0) + ["s_nop 0"] + g_dma(): a(t)
    a("s_nop 3")
    stamp(a, 9); stamp(a, 10, True)
    if STAMP: a(f"v_writelane_b32 v255, s{S_REM}, 12"); a(f"v_writelane_b32 v255, s{S_TB}, 13"); a("s_mov_b32 s5, 24")
    a("K_XA0:")
    phase_x(a, 0, ACCA1, BXA1, True)
    a(f"s_cmp_eq_u32 s{S_REM}, 0"); a("s_cbranch_scc1 K_YT0")
    phase_y(a, 0, ACCA0, BXA0)
    phase_x(a, 1, ACCA1, BXA1, True)
    a(f"s_cmp_eq_u32 s{S_REM}, 0"); a("s_cbranch_scc1 K_YT1")
    phase_y(a, 1, ACCA0, BXA0)
    a("s_branch K_XA0")
    a("K_YT0:")
    phase_y(a, 0, ACCA0, BXB0)
    phase_x(a, 1, ACCA1, BXB1, False)
    a("s_branch K_YB1")
    a("K_YT1:")
    phase_y(a, 1, ACCA0, BXB0)
    phase_x(a, 0, ACCA1, BXB1, False)
    a("K_YB0:")
    phase_y(a, 0, ACCB0, BXB0)
    a(f"s_sub_u32 s{S_TB}, s{S_TB}, 1"); a(f"s_cmp_eq_u32 s{S_TB}, 0"); a("s_cbranch_scc1 K_DRAIN")
    phase_x(a, 1, ACCB1, BXB1, False)
    a("K_YB1:")
    phase_y(a, 1, ACCB0, BXB0)
    a(f"s_sub_u32 s{S_TB}, s{S_TB}, 1"); a(f"s_cmp_eq_u32 s{S_TB}, 0"); a("s_cbranch_scc1 K_DRAIN")
    phase_x(a, 0, ACCB1, BXB1, False)
    a("s_branch K_YB0")
    a("K_DRAIN:")
    a(mfma32(ACCB1, A2, MP))
    a(mfma32(ACCB1, A2+4, MP+4))
    stamp(a, 16); stamp(a, 11, True)
    a(f"s_cmp_eq_u32 s{S_MORE}, 0")
    a("s_cbranch_scc1 K_EPI")
    a("s_setprio 0")
    a(f"s_mov_b64 exec, {sr(S_HI,2)}"); a(f"ds_write_b64 v{IMGA}, {vr(ZERO,2)}"); a("s_mov_b64 exec, -1")
    a(f"v_lshlrev_b32 v16, 4, v{LANE}")
    a(f"s_mov_b32 s3, s{S_ACCO}")
    a("s_nop 7")
    for i in range(16):
        a(f"buffer_store_dwordx4 {vr(ACCA0+4*i,4)}, v16, {sr(S_ACC,4)}, s3 offen offset:{(i%4)*1024} sc0 sc1")
        if i % 4 == 3: a("s_add_u32 s3, s3, 4096")
    a(f"s_mov_b32 s{S_ROUND}, 2")
    a("s_waitcnt vmcnt(0) lgkmcnt(0)")
    a("s_barrier")
    a("s_branch K_RESET")
    a("K_EPI:")
    whf = lambda f: (16 + 4*f) if f < 12 else (80 + 4*(f-12))
    MB = 108; DO = 116; AD = 100
    a(f"v_lshrrev_b32 v{AD}, 4, v{LANE}"); a(f"v_lshlrev_b32 v{AD}, 4, v{AD}")
    a(f"v_bfe_u32 v{AD+1}, v{LANE}, 2, 2"); a(f"v_add_u32 v{AD}, v{AD}, v{AD+1}"); a(f"v_lshlrev_b32 v{AD}, 7, v{AD}")
    a(f"v_and_b32 v{AD+1}, 3, v{LANE}"); a(f"v_lshl_add_u32 v{AD}, v{AD+1}, 5, v{AD}"); a(f"v_add_u32 v{AD}, {L_WH}, v{AD}")
    a(f"s_mov_b32 s4, {hex(NLN2)}")
    a(f"v_lshrrev_b32 v{AD+2}, 5, v{LANE}"); a(f"v_lshlrev_b32 v{AD+2}, 7, v{AD+2}"); a(f"v_lshrrev_b32 v{AD+3}, 1, v{LANEE}")
    a(f"v_add3_u32 v{AD+2}, v{AD+2}, v{AD+3}, s{S_GB}")
    a(f"v_and_b32 v{AD+3}, 15, v{LANE}"); a(f"v_lshlrev_b32 v{AD+3}, 7, v{AD+3}"); a(f"v_lshrrev_b32 v{AD+4}, 4, v{LANE}")
    a(f"v_lshl_add_u32 v{AD+3}, v{AD+4}, 5, v{AD+3}"); a(f"v_add_u32 v{AD+3}, s{S_GB}, v{AD+3}")
    for g, (c0, c1) in enumerate(((ACCA0, ACCA1), (ACCB0, ACCB1))):
        for q in range(4):
            a(f"v_mul_f32 v{c0+4*q}, s4, v{c0+4*q}"); a(f"v_mul_f32 v{c1+4*q}, s4, v{c1+4*q}")
            a(f"v_cvt_pk_bf16_f32 v{c0+4*q}, v{c0+4*q}, v{c1+4*q}")
    a("s_waitcnt vmcnt(0)")
    for g, (c0, c1) in enumerate(((ACCA0, ACCA1), (ACCB0, ACCB1))):
        for q in range(4):
            a(f"ds_write_b16 v{AD+2}, v{c0+4*q} offset:{g*1024 + q*256}")
            a(f"ds_write_b16_d16_hi v{AD+2}, v{c0+4*q} offset:{g*1024 + q*256 + 64}")
    a(f"ds_read_b128 {vr(MB,4)}, v{AD+3}"); a(f"ds_read_b128 {vr(MB+4,4)}, v{AD+3} offset:16")
    for s in range(4):
        for t in range(4):
            for kk in range(2):
                a(f"ds_read_b64_tr_b16 {vr(whf(t*4+s)+2*kk,2)}, v{AD} offset:{(s>>1)*8192 + (s&1)*1024 + kk*512 + t*8}")
    for w in (WX0, WX1): a(f"v_lshlrev_b32 v{w}, 16, v{w}"); a(f"v_mul_f32 v{w}, s4, v{w}")
    for (c0, c1) in ((ACCA0, ACCA1), (ACCB0, ACCB1)):
        for q in range(4):
            for k in (1, 2, 3):
                a(f"v_mul_f32 v{c0+4*q+k}, v{WX0}, v{c0+4*q+k}"); a(f"v_fmac_f32 v{c0+4*q+k}, v{WX1}, v{c1+4*q+k}")
    a("s_waitcnt lgkmcnt(0)")
    bsrc = (HB, HB+4, MB, MB+4)
    mf = []
    for s in range(4):
        for t in range(4):
            c = "0" if s == 0 else vr(DO+4*t, 4)
            mf.append(f"v_mfma_f32_16x16x32_bf16 {vr(DO+4*t,4)}, {vr(whf(t*4+s),4)}, {vr(bsrc[s],4)}, {c}")
    red = []
    for q in range(4):
        for k in (1, 2, 3): red.append(f"v_permlane16_swap_b32 v{ACCA0+4*q+k}, v{ACCB0+4*q+k}")
    for q in range(4):
        for k in (1, 2, 3): red.append(f"v_add_f32 v{ACCA0+4*q+k}, v{ACCA0+4*q+k}, v{ACCB0+4*q+k}")
    for q in range(2):
        for k in (1, 2, 3):
            red.append(f"v_add_f32_dpp v{ACCA1+4*q+k}, v{ACCA0+4*q+k}, v{ACCA0+4*q+k} row_ror:8 row_mask:0xf bank_mask:0x3")
            red.append(f"v_add_f32_dpp v{ACCA1+4*q+k}, v{ACCA0+4*q+8+k}, v{ACCA0+4*q+8+k} row_ror:8 row_mask:0xf bank_mask:0xc")
    for i, m in enumerate(mf):
        a(m)
        for t in red[2*i:2*i+2]: a(t)
    for t in red[32:]: a(t)
    for k in (1, 2, 3):
        a(f"v_add_f32_dpp v{ACCB1+k}, v{ACCA1+k}, v{ACCA1+k} row_shl:4 row_mask:0xf bank_mask:0x5")
        a(f"v_add_f32_dpp v{ACCB1+k}, v{ACCA1+4+k}, v{ACCA1+4+k} row_shr:4 row_mask:0xf bank_mask:0xa")
    for perm in ("[1,0,3,2]", "[2,3,0,1]"):
        for k in (1, 2, 3): a(f"v_add_f32_dpp v{ACCB1+k}, v{ACCB1+k}, v{ACCB1+k} quad_perm:{perm} row_mask:0xf bank_mask:0xf")
    a(f"v_cmp_eq_u32 vcc, 1, v{AD+1}"); a(f"v_lshlrev_b32 v{PV}, 16, v{PV}"); a(f"s_mov_b32 s4, {hex(NLOG2E)}")
    a(f"v_cndmask_b32 v{AD+5}, v{ACCB1+1}, v{ACCB1+2}, vcc")
    a(f"v_cmp_eq_u32 vcc, 2, v{AD+1}"); a("s_mov_b32 s5, s4"); a("s_mov_b32 s3, 3200000")
    a(f"v_cndmask_b32 v{AD+5}, v{AD+5}, v{ACCB1+3}, vcc")
    a(f"v_add_f32 v{AD+5}, v{AD+5}, v{PV}"); a(f"v_cvt_pk_bf16_f32 v{AD+5}, v{AD+5}, v{AD+5}")
    a(f"buffer_store_short v{AD+5}, v{PA}, {sr(S_OUT,4)}, s3 offen")
    E = 148
    for j in range(8): a(f"v_pk_mul_f32 {vr(E+2*j,2)}, {vr(DO+2*j,2)}, s[4:5]")
    for j in range(16): a(f"v_exp_f32 v{E+j}, v{E+j}")
    for j in range(8): a(f"v_pk_add_f32 {vr(E+2*j,2)}, {vr(E+2*j,2)}, 1.0 op_sel_hi:[1,0]")
    for j in range(16): a(f"v_rcp_f32 v{E+j}, v{E+j}")
    for j in range(8):
        a(f"v_lshlrev_b32 v{E+16+2*j}, 16, v{HB+j}"); a(f"v_and_b32 v{E+17+2*j}, 0xffff0000, v{HB+j}")
    for j in range(8): a(f"v_pk_fma_f32 {vr(E+2*j,2)}, {vr(E+2*j,2)}, {vr(DO+2*j,2)}, {vr(E+16+2*j,2)}")
    for j in range(8): a(f"v_cvt_pk_bf16_f32 v{E+32+j}, v{E+2*j}, v{E+2*j+1}")
    a(f"buffer_store_dwordx4 {vr(E+32,4)}, v{HA}, {sr(S_OUT,4)}, 0 offen")
    a(f"buffer_store_dwordx4 {vr(E+36,4)}, v{HA}, {sr(S_OUT,4)}, 0 offen offset:16")
    stamp(a, 17)
    if STAMP: a("s_waitcnt vmcnt(0)")
    stamp(a, 18)
    stamp_out(a)
    a("K_END:")
    a("s_endpgm")

def main():
    ref = open(f"cdna_kernels/{NAME}.s.ref").read().split("\n")
    head = [l for l in ref if l.startswith(";") and "@launch" not in l and not l.startswith("; Override") and not l.startswith("; grid=")]
    out = "\n".join(head) + "\n"
    if opt("aslist", 0): out += f"; @launch kernel={KN} grid=(256,1,1) block=(512,1,1) lds={LDS}\n"
    else: out += f"; @launch grid=(256,1,1) block=(512,1,1) lds={LDS}\n"
    out += '.amdgcn_target "amdgcn-amd-amdhsa--gfx950"\n.text\n'
    a = Asm(); gen(a)
    for b in a.check_edges(): print("EDGE HAZARD", b, file=sys.stderr)
    out += f".globl {KN}\n.p2align 8\n.type {KN},@function\n" + a.text()
    out += f""".section .rodata,"a"
.p2align 6
.amdhsa_kernel {KN}
  .amdhsa_next_free_vgpr 256
  .amdhsa_next_free_sgpr 102
  .amdhsa_accum_offset 256
  .amdhsa_group_segment_fixed_size 0
  .amdhsa_kernarg_size 88
  .amdhsa_user_sgpr_count 2
  .amdhsa_user_sgpr_kernarg_segment_ptr 1
  .amdhsa_system_sgpr_workgroup_id_x 1
  .amdhsa_float_denorm_mode_32 3
.end_amdhsa_kernel
"""
    open(sys.argv[1], "w").write(out)
main()
```

```python
import sys, math, struct
from asmlib import Asm

NAME = "gather_scatter__cheap_equivariant_egnn__graph"
KN = NAME + "_kernel"
def f32bits(x): return struct.unpack("<I", struct.pack("<f", x))[0]
NLOG2E = f32bits(-math.log2(math.e)); NLN2 = f32bits(-math.log(2.0))
OPT = dict(a.split("=") for a in sys.argv[2:]) if len(sys.argv) > 2 else {}
def opt(k, d): return type(d)(OPT.get(k, d))
STAMP = opt("stamp", 0)

CH = 3128; CHB = CH * 12; CHS = opt('chs', 37632); NQ = CH // 4; NQ_LAST = (800000 - 255 * CH) // 4
WS_GRAN = 0x00A00000; WS_POSF = 0x00B00000; WS_ACC = 0x01000000; WS_STAMP = 0x08000000
GMUL = 10737; GMAGIC = 51201995
L_CUR = 0; L_FLAG = 64; L_EPOCH = 68; L_TBL = 0x100; L_IMG = 0x1100; L_GB = 0x5100
L_WH = L_GB + 8 * 8192
L_REC = L_WH + 16384
PADO = 128 * 98 + 384 * 16; PLANE = 18944; PO1 = PLANE // 256; PO2 = 2 * PO1
L_PAD = L_REC + PADO
LDS = L_REC + 3 * PLANE
L_STG = L_GB; L_HIST = L_GB + 37632; L_OFFS = L_HIST + 1024; L_WF = L_GB + 40960
assert LDS <= 163840 and PADO + 128 <= PLANE and L_GB % 256 == 0
PADW = (32767 << 7) | (7 << 3)
HUGE = 0x40000000
TAGK = 0x9E3779B9

D0 = 16; D1 = 32; T = 48; MP = 64; A2 = 72; A1 = 80; XR = 96
W2F = 100; BXA0 = 132; BXA1 = 136; BXB0 = 140; BXB1 = 144
ACCA0 = 148; ACCA1 = 164; ACCB0 = 180; ACCB1 = 196
COLC = 212; RDA = 216; TRA = 220; IMGB = 221; LANEQ = 222; LANEE = 223
WQ = 224; W2E = 228; ADE = 230; PS = 232; CURB = 235; HA = 236; PA = 237; PV = 238; CURL = 239
PD = 240; WX0 = 243; VAL = 244; IMGA = 246; S8 = 247; S16 = 248; ADQ = 249
ZERO = 250; D2 = 252; PIX = 253; WX1 = 254
LANE = 1; SW = 2; I12 = 3; I12H = 4; BPX = 5; FOUR = 6; TMP = 7; HB = 8
S_H = 8; S_POSF = 12; S_REC = 16; S_POS = 20; S_OUT = 24; S_ACC = 28; S_MASK = 32; S_HJ = 32
S_W = 64; S_B = 65; S_NA = 66; S_NB = 67; S_CA = 68; S_CB = 69
S_LO = 70; S_HI = 72; S_GM = 74; S_TBL = 75; S_TBLA = 76; S_TBLB = 77
S_NEXT = 78; S_END = 79; S_JUMP = 80; S_END2 = 81; S_PADB = 82; S_PADE = 83
S_REM = 84; S_TB = 85; S_GB = 86; S_WIN = 87; S_ROUND = 88; S_MORE = 89; S_T0 = 90; S_T1 = 91; S_T3 = 92
S_SEG = 93; S_ACCO = 94; S_FLIP = 95; S_WX = 96; S_SUB = 100; S_SPIN = 101; S_PEND = 78; S_LEFT = 80

def vr(b, n): return f"v[{b}:{b+n-1}]"
def sr(b, n): return f"s[{b}:{b+n-1}]"
def srd(a, d, lo, hi, off, num, stride=0):
    if off > 0:
        a(f"s_add_u32 s{d}, s{lo}, {hex(off)}"); a(f"s_addc_u32 s{d+1}, s{hi}, 0")
    elif off < 0:
        a(f"s_sub_u32 s{d}, s{lo}, {hex(-off)}"); a(f"s_subb_u32 s{d+1}, s{hi}, 0")
    else:
        a(f"s_mov_b32 s{d}, s{lo}"); a(f"s_mov_b32 s{d+1}, s{hi}")
    if stride: a(f"s_or_b32 s{d+1}, s{d+1}, {hex(stride << 16)}")
    a(f"s_mov_b32 s{d+2}, {hex(num)}"); a(f"s_mov_b32 s{d+3}, 0x20000")
def stamp(a, idx, cyc=False):
    if not STAMP: return
    a(f"{'s_memtime' if cyc else 's_memrealtime'} s[6:7]"); a("s_waitcnt lgkmcnt(0)"); a(f"v_writelane_b32 v255, s6, {idx}")
def stamp_out(a):
    if not STAMP: return
    a("s_mov_b64 exec, -1")
    a("s_load_dwordx2 s[32:33], s[0:1], 80"); a("s_waitcnt lgkmcnt(0)")
    srd(a, 36, 32, 33, WS_STAMP, 1 << 22)
    a("s_lshl_b32 s32, s2, 4"); a(f"s_add_u32 s32, s32, s{S_W}"); a("s_lshl_b32 s32, s32, 8")
    a(f"v_lshlrev_b32 v16, 2, v{LANE}")
    a("buffer_store_dword v255, v16, s[36:39], s32 offen")

def mfma32(d, a_, b_, c=None):
    return f"v_mfma_f32_32x32x16_bf16 {vr(d,16)}, {vr(a_,4)}, {vr(b_,4)}, {'0' if c == 0 else vr(d,16)}"
def silu_main(d):
    if opt("nopk", 0):
        m = [f"v_exp_f32 v{T+j}, v{d+j}" for j in range(16)]
        m += [f"v_add_f32 v{T+2*j}, 1.0, v{T+2*j}\nv_add_f32 v{T+2*j+1}, 1.0, v{T+2*j+1}" for j in range(8)]
        m += [f"v_rcp_f32 v{T+j}, v{T+j}" for j in range(16)]
        m += [f"v_mul_f32 v{T+2*j}, v{T+2*j}, v{d+2*j}\nv_mul_f32 v{T+2*j+1}, v{T+2*j+1}, v{d+2*j+1}" for j in range(8)]
        m += [f"v_cvt_pk_bf16_f32 v{MP+j}, v{T+2*j}, v{T+2*j+1}" for j in range(8)]
        return m
    m = [f"v_exp_f32 v{T+j}, v{d+j}" for j in range(16)]
    m += [f"v_pk_add_f32 {vr(T+2*j,2)}, {vr(T+2*j,2)}, 1.0 op_sel_hi:[1,0]" for j in range(8)]
    m += [f"v_rcp_f32 v{T+j}, v{T+j}" for j in range(16)]
    m += [f"v_pk_mul_f32 {vr(T+2*j,2)}, {vr(T+2*j,2)}, {vr(d+2*j,2)}" for j in range(8)]
    m += [f"v_cvt_pk_bf16_f32 v{MP+j}, v{T+2*j}, v{T+2*j+1}" for j in range(8)]
    return m
def emit(a, main, ins):
    for t in ins.get(-1, []): a(t)
    for i, m in enumerate(main):
        a(m)
        for t in ins.get(i, []): a(t)
def gstate(isA=True):
    o = [f"s_add_u32 s{S_NEXT}, s{S_NEXT}, 128", f"s_cmp_eq_u32 s{S_NEXT}, s{S_END}",
         f"s_cselect_b32 s{S_NEXT}, s{S_JUMP}, s{S_NEXT}", f"s_cselect_b32 s{S_END}, s{S_END2}, s{S_END}"]
    if isA: o += [f"s_cselect_b32 s{S_JUMP}, s{S_PADB}, s{S_JUMP}", f"s_cselect_b32 s{S_END2}, s{S_PADE}, s{S_END2}"]
    return o
def g_reads(e, wq=WQ, isA=True):
    return [f"v_add_u32 v{ADQ}, s{S_NEXT}, v{LANEQ}", f"v_add_u32 v{ADE+e}, s{S_NEXT}, v{LANEE}",
            f"ds_read_b128 {vr(wq,4)}, v{ADQ}", f"ds_read_b32 v{W2E+e}, v{ADE+e}"] + gstate(isA)
def g_addr(wq=WQ): return [f"v_and_or_b32 v{wq+j}, v{wq+j}, s{S_GM}, v{COLC+j}" for j in range(4)]
def g_m0(e): return [f"s_add_u32 m0, s{S_GB}, {e*4096}"]
def g_dma(wq=WQ): return [f"buffer_load_dwordx4 v{wq+j}, {sr(S_HJ+4*j,4)}, 0 offen offset:{j*1024} {opt('gp', '')} lds" for j in range(4)]
def pos_gather(): return f"buffer_load_dwordx3 {vr(PS,3)}, v{PIX}, {sr(S_POSF,4)}, 0 idxen sc1"
def e_head(e):
    return [f"v_and_b32 v{S8}, 0x38, v{W2E+e}", f"v_lshl_add_u32 v{S16}, v{S8}, 1, s{S_TBL}", f"ds_read_b96 {vr(PD,3)}, v{S16} offset:128",
            f"v_bfe_u32 v{PIX}, v{W2E+1-e}, 7, 15"]
def e_sect(e, zero=True):
    o = [f"v_sub_f32 v{PD+k}, v{PD+k}, v{PS+k}" for k in range(3)]
    o += [f"v_cvt_pk_bf16_f32 v{VAL}, 1.0, v{PD}", f"v_cvt_pk_bf16_f32 v{VAL+1}, v{PD+1}, v{PD+2}",
          f"s_mov_b64 exec, {sr(S_LO,2)}", f"ds_read_b128 {vr(XR,4)}, v{S16}", f"s_mov_b64 exec, {sr(S_HI,2)}",
          f"v_dot2_f32_bf16 v{D2}, v{VAL}, v{VAL}, -1.0", f"v_dot2_f32_bf16 v{D2}, v{VAL+1}, v{VAL+1}, v{D2}",
          f"ds_read2st64_b32 {vr(XR,2)}, v{ADE+e} offset0:{PO1} offset1:{PO2}"]
    if zero: o += [f"ds_write_b64 v{IMGA}, {vr(ZERO,2)}"]
    o += [f"v_add_u32 v{IMGA}, v{S8}, v{IMGB}", f"ds_write_b64 v{IMGA}, {vr(VAL,2)}", pos_gather(),
          f"v_cvt_pk_bf16_f32 v{XR+2}, v{D2}, v{D2}", "s_mov_b64 exec, -1"]
    return o
def a1_reads(e): return [f"ds_read_b128 {vr(A1+4*s,4)}, v{RDA+s} offset:{e*4096}" for s in range(4)]
def tr_reads(): return [f"ds_read_b64_tr_b16 {vr(A2+2*k,2)}, v{TRA} offset:{k*512}" for k in range(4)]

OP = opt('op', '').replace('+', ' ')
NPF = opt('npf', 0)
PRIO = opt("prio", 2)
_lbl = [0]
def phase_x(a, p, acc1, bx1, isA):
    e = 1 - p
    ins = {}; pre = []
    if isA:
        pre += [f"s_sub_u32 s{S_REM}, s{S_REM}, 1", f"s_cmp_eq_u32 s{S_REM}, 0", f"s_cselect_b32 s{S_TBL}, s{S_TBLB}, s{S_TBLA}"]
        if PRIO == 2:
            _lbl[0] += 1; L = f"KP{_lbl[0]}"
            ins[1] = [f"s_cmp_lg_u32 s{S_REM}, s{S_FLIP}", f"s_cbranch_scc1 {L}", "s_setprio 1", f"{L}:"]
    if STAMP == 2:
        pre += ["s_memtime s[6:7]", "s_waitcnt lgkmcnt(0)", "s_mov_b32 m0, s5", "s_add_u32 s5, s5, 1", "v_writelane_b32 v255, s6, m0"]
    if STAMP == 3:
        pre += ["s_memtime s[6:7]", "s_memrealtime s[52:53]", "s_waitcnt lgkmcnt(0)", "s_mov_b32 m0, s5", "s_add_u32 s5, s5, 1", "v_writelane_b32 v255, s6, m0",
                "s_mov_b32 m0, s5", "s_add_u32 s5, s5, 1", "v_writelane_b32 v255, s52, m0"]
    ins[-1] = pre
    ins[0] = [mfma32(acc1, A2, MP)] + e_head(e)
    ins[3] = [mfma32(acc1, A2+4, MP+4)]
    tr = tr_reads()
    ins[4] = tr[:2]; ins[5] = tr[2:]
    ins[6] = [mfma32(D1, XR, bx1, 0)]
    ins[9] = [mfma32(D1, A1, W2F+16)]
    ins[12] = [mfma32(D1, A1+4, W2F+20)]
    ins[17] = ["s_waitcnt vmcnt(4) lgkmcnt(4)"] + e_sect(e)
    ins[20] = g_reads(e, isA=isA)
    ins[24] = [mfma32(D1, A1+8, W2F+24)]
    ins[27] = [mfma32(D1, A1+12, W2F+28)]
    ins[28] = a1_reads(e)
    if opt("qtest", 0):
        ins[9] = [mfma32(D1, W2F, A1+8)]; ins[12] = [mfma32(D1, W2F+4, A1+12)]
        del ins[24]; del ins[27]
        ins[13] = [f"ds_read_b64_tr_b16 {vr(A1+8+2*k,2)}, v{RDA+k} offset:{e*4096}" for k in range(4)]
        ins[28] = [f"ds_read_b64_tr_b16 {vr(A1+2*k,2)}, v{RDA+k} offset:{e*4096+64}" for k in range(4)]
        ins[17][0] = "s_waitcnt vmcnt(4) lgkmcnt(8)"
    emit(a, silu_main(D0), ins)

def phase_y(a, p, acc0, bx0):
    e = 1 - p
    ins = {}
    ins[-1] = ["s_waitcnt lgkmcnt(10)"]
    ins[0] = [mfma32(acc0, A2, MP)] + g_m0(e)
    ins[1] = ["s_waitcnt lgkmcnt(5)"] + g_addr()
    ins[3] = [mfma32(acc0, A2+4, MP+4)]
    gd = g_dma()
    ins[6] = ["s_waitcnt lgkmcnt(0)", mfma32(D0, A1, W2F, 0)]
    ins[7] = gd[0:1]; ins[8] = gd[1:2]
    ins[9] = [mfma32(D0, A1+4, W2F+4)]
    ins[10] = gd[2:3]; ins[11] = gd[3:4]
    ins[12] = [mfma32(D0, A1+8, W2F+8)]
    ins[24] = [mfma32(D0, A1+12, W2F+12)]
    ins[27] = [mfma32(D0, XR, bx0)]
    if opt("qtest", 0):
        ins[6] = ["s_waitcnt lgkmcnt(0)", mfma32(D0, W2F, A1, 0)]; ins[9] = [mfma32(D0, W2F+4, A1+4)]; ins[12] = [mfma32(D0, XR, bx0)]
        del ins[24]; del ins[27]
    emit(a, silu_main(D1), ins)

def node_sel(a, cond, vnode, vcnt, vtmp):
    a(cond)
    a(f"v_mov_b32 v{vnode}, s{S_NB}"); a(f"v_mov_b32 v{vcnt}, s{S_NA}")
    a(f"v_cndmask_b32 v{vnode}, v{vnode}, v{vcnt}, vcc")
    a(f"v_mov_b32 v{vcnt}, s{S_CB}"); a(f"v_mov_b32 v{vtmp}, s{S_CA}")
    a(f"v_cndmask_b32 v{vcnt}, v{vcnt}, v{vtmp}, vcc")

def cursor_init(a):
    a(f"v_lshlrev_b32 v13, 2, v{LANE}")
    a("s_mov_b64 exec, 0x1ffff"); a(f"ds_write_b32 v13, v{CURB}"); a("s_mov_b64 exec, -1")

def gen(a):
    a(f"{KN}:")
    a("s_cmp_ge_u32 s2, 256")
    a("s_cbranch_scc1 K_END")
    a("s_load_dwordx16 s[32:47], s[0:1], 0")
    a("s_load_dwordx4 s[48:51], s[0:1], 64")
    a("s_load_dwordx2 s[52:53], s[0:1], 80")
    if opt("cpf", 0) == 2:
        a("s_getpc_b64 s[4:5]")
        a("K_PC:")
        a("s_mov_b32 s3, K_END-K_PC-16")
        a("v_lshlrev_b32 v8, 4, v0")
        for k in range(2):
            a(f"v_add_u32 v12, {8192*k}, v8"); a("v_min_u32 v12, s3, v12")
            a(f"global_load_dwordx4 {vr(PD,4)}, v12, s[4:5]")
    stamp(a, 0); stamp(a, 14, True)
    a("s_cmp_eq_u32 s2, 255")
    a(f"s_movk_i32 s4, {NQ - 512}")
    a(f"s_cselect_b32 s4, {NQ_LAST - 512}, s4")
    a(f"s_mul_i32 s3, s2, {CH*4}")
    a("s_lshl_b32 s5, s3, 1")
    a("v_lshlrev_b32 v8, 4, v0")
    a("v_lshlrev_b32 v9, 5, v0")
    a("v_cmp_gt_u32 s[62:63], s4, v0")
    a(f"v_mov_b32 v12, {hex(HUGE)}")
    a("v_add_u32 v10, 0x2000, v8")
    a("v_add_u32 v11, 0x4000, v9")
    a("v_cndmask_b32 v10, v12, v10, s[62:63]")
    a("v_cndmask_b32 v11, v12, v11, s[62:63]")
    a("v_and_b32 v12, 0xff, v0")
    a("v_lshlrev_b32 v12, 2, v12")
    a(f"v_mov_b32 v{ZERO}, 0")
    a(f"ds_write_b32 v12, v{ZERO} offset:{L_HIST}")
    a("s_waitcnt lgkmcnt(0)")
    srd(a, 8, 40, 41, 0, 3200000)
    srd(a, 12, 38, 39, 0, 3200000)
    srd(a, 16, 36, 37, 0, 6400000)
    nt = " nt" if opt("k1nt", 1) else ""
    a(f"buffer_load_dwordx4 v[16:19], v8, s[8:11], s3 offen{nt}")
    a(f"buffer_load_dwordx4 v[20:23], v10, s[8:11], s3 offen{nt}")
    if opt("dstfirst", 0): a("s_barrier")
    a(f"buffer_load_dwordx4 v[24:27], v8, s[12:15], s3 offen{nt}")
    a(f"buffer_load_dwordx4 v[28:31], v10, s[12:15], s3 offen{nt}")
    a(f"buffer_load_dwordx4 v[32:35], v9, s[16:19], s5 offen{nt}")
    a(f"buffer_load_dwordx4 v[36:39], v9, s[16:19], s5 offen offset:16{nt}")
    a(f"buffer_load_dwordx4 v[40:43], v11, s[16:19], s5 offen{nt}")
    a(f"buffer_load_dwordx4 v[44:47], v11, s[16:19], s5 offen offset:16{nt}")
    NC = 0
    if opt("cpf", 0) == 1:
        a("s_getpc_b64 s[4:5]")
        a("K_PC:")
        a("s_mov_b32 s3, K_END-K_PC-16")
        for k in range(2):
            a(f"v_add_u32 v12, {8192*k}, v8"); a("v_min_u32 v12, s3, v12")
            a(f"global_load_dwordx4 {vr(PD,4)}, v12, s[4:5]")
        NC = 2
    if not opt("dstfirst", 0): a("s_barrier")
    a(f"v_and_b32 v{LANE}, 63, v0")
    a("v_lshrrev_b32 v12, 6, v0")
    a(f"v_readfirstlane_b32 s{S_W}, v12")
    RW = 148
    srd(a, S_ACC, 50, 51, 0, 256)
    a("v_mov_b32 v12, 0")
    a("s_cmp_lg_u32 s2, 0"); a("s_cbranch_scc1 K_NOEP")
    a(f"s_cmp_lg_u32 s{S_W}, 7"); a("s_cbranch_scc1 K_NOEP")
    a("s_memrealtime s[4:5]")
    a("s_waitcnt lgkmcnt(0)")
    a("s_or_b32 s4, s4, 1")
    a("v_mov_b32 v13, s4")
    a("s_mov_b64 exec, 1")
    a(f"buffer_store_dword v13, v12, {sr(S_ACC,4)}, 0 offen sc0 sc1")
    a("s_mov_b64 exec, -1")
    a("K_NOEP:")
    a(f"v_mov_b32 v{ZERO+1}, 0")
    a("s_and_b32 s3, s2, 7"); a("s_lshl_b32 s3, s3, 5")
    a(f"s_lshr_b32 s{S_B}, s2, 3"); a(f"s_add_u32 s{S_B}, s{S_B}, s3")
    a(f"s_lshl_b32 s4, s{S_B}, 20"); a(f"s_add_u32 s4, s4, {GMUL-1}")
    a(f"s_mov_b32 s7, {GMAGIC}")
    a(f"v_lshl_add_u32 v12, v{LANE}, 16, s4")
    a("v_add_u32 v13, 0x10000, v12")
    a("v_mul_hi_u32 v12, v12, s7"); a("v_mul_hi_u32 v13, v13, s7")
    a("v_lshrrev_b32 v12, 7, v12"); a("v_lshrrev_b32 v13, 7, v13")
    a("v_min_u32 v13, 25000, v13")
    a(f"s_lshl_b32 s4, s{S_W}, 1"); a("s_add_u32 s5, s4, 1")
    a("v_readlane_b32 s3, v12, 0")
    a(f"v_readlane_b32 s{S_NA}, v12, s4"); a(f"v_readlane_b32 s{S_NB}, v12, s5"); a(f"v_readlane_b32 s{S_CB}, v13, s5")
    a(f"v_mul_u32_u24 v14, 384, v{LANE}")
    a("s_lshl_b32 s3, s3, 7"); a(f"s_sub_u32 s3, {L_REC}, s3")
    a(f"v_lshl_add_u32 v{CURB}, v12, 7, v14"); a(f"v_add_u32 v{CURB}, s3, v{CURB}")
    a(f"v_lshl_add_u32 v{CURL}, v13, 7, v14"); a("s_add_u32 s3, s3, 384"); a(f"v_add_u32 v{CURL}, s3, v{CURL}")
    a(f"v_cmp_gt_u32 vcc, 16, v{LANE}")
    a(f"s_sub_u32 s{S_CB}, s{S_CB}, s{S_NB}"); a(f"s_sub_u32 s{S_CA}, s{S_NB}, s{S_NA}")
    a(f"v_cndmask_b32 v{CURB}, 0, v{CURB}, vcc")
    a(f"v_and_b32 v9, 31, v{LANE}")
    a(f"v_lshrrev_b32 v10, 5, v{LANE}")
    a(f"v_lshlrev_b32 v11, 4, v{LANE}")
    a(f"v_and_b32 v12, 7, v{LANE}")
    node_sel(a, f"v_cmp_gt_u32 vcc, 8, v{LANE}", 13, 14, 15)
    a("v_cmp_lt_u32 vcc, v12, v14")
    a(f"v_cmp_gt_u32 s[60:61], 16, v{LANE}")
    a("v_add_u32 v13, v13, v12"); a("v_mov_b32 v14, 0x7fff")
    a("s_and_b64 vcc, vcc, s[60:61]")
    a(f"v_cndmask_b32 v{PIX}, v14, v13, vcc")
    a(f"v_mul_u32_u24 v{D2}, 6, v{PIX}")
    srd(a, S_POS, 34, 35, 0, 150000)
    N1 = NC
    a("v_and_b32 v12, 3, v9"); a("v_bfe_u32 v13, v9, 3, 1"); a("v_lshl_or_b32 v12, v13, 2, v12")
    node_sel(a, "v_cmp_gt_u32 vcc, 16, v9", 13, 14, 15)
    a("v_and_b32 v15, 4, v9"); a("v_lshl_or_b32 v15, v15, 1, v12")
    a("v_cmp_lt_u32 vcc, v15, v14")
    a("v_add_u32 v13, v13, v12"); a("v_lshlrev_b32 v13, 7, v13"); a("v_lshl_add_u32 v13, v10, 4, v13")
    a(f"v_mov_b32 v14, {hex(HUGE)}")
    a(f"v_cndmask_b32 v{S8}, v14, v13, vcc")
    srd(a, S_H, 32, 33, 0, 3200000)
    srd(a, 56, 42, 43, 0, 133 * 128)
    srd(a, 40, 46, 47, 0, 128 * 128)
    srd(a, S_POSF, 52, 53, WS_POSF, 25000, stride=16)
    srd(a, S_REC, 52, 53, 0, WS_GRAN + 256 * 4096)
    if opt("tlb", 0):
        srd(a, S_OUT, 48, 49, 0, 3350000)
        srd(a, S_WX, 52, 53, 0, WS_POSF + 400000)
        a(f"s_cmp_lg_u32 s{S_W}, 5"); a("s_cbranch_scc1 K_NOTLB")
        a(f"v_lshlrev_b32 v12, {opt('tlb', 0)}, v{LANE}")
        a(f"buffer_load_dword v{PD}, v12, {sr(S_WX,4)}, 0 offen")
        a(f"buffer_load_dword v{PD}, v12, {sr(S_H,4)}, 0 offen")
        a(f"buffer_load_dword v{PD}, v12, {sr(S_OUT,4)}, 0 offen")
        a("K_NOTLB:")
    a("v_mov_b32 v14, 12")
    a(f"s_mul_i32 s54, s2, {CHS}")
    for g in range(2):
        a(f"s_waitcnt vmcnt({N1 + 7 - g})")
        if g == 0: stamp(a, 1)
        if g == 1: a("s_mov_b64 exec, s[62:63]")
        for k in range(4):
            i = 4*g + k
            a(f"v_mul_u32_u24 v{48+i}, {hex(GMUL)}, v{16+i}")
            a(f"v_lshrrev_b32 v{56+i}, 18, v{48+i}")
            a(f"v_and_b32 v{56+i}, 0x3fc, v{56+i}")
            a(f"ds_add_rtn_u32 v{64+i}, v{56+i}, v14 offset:{L_HIST}")
    a("s_mov_b64 exec, -1")
    for j in range(3): a(f"buffer_load_ushort v{RW+8+j}, v{D2}, {sr(S_POS,4)}, 0 offen offset:{2*j}")
    a(f"buffer_load_dword v{RW+12}, v{ZERO}, {sr(S_ACC,4)}, 0 offen sc0 sc1")
    for s in range(4): a(f"buffer_load_dwordx4 {vr(A1+4*s,4)}, v{S8}, {sr(S_H,4)}, 0 offen offset:{32*s}")
    N1 += 8
    if opt("wpf", 1):
        a("s_lshr_b32 s4, s2, 3"); a("s_lshl_b32 s4, s4, 10"); a("s_and_b32 s5, s4, 0x3fff")
        a(f"s_cmp_lg_u32 s{S_W}, 6"); a("s_cbranch_scc1 K_NOWPF")
        a(f"buffer_load_dwordx4 {vr(PD,4)}, v11, s[56:59], s4 offen")
        a(f"buffer_load_dwordx4 {vr(PD,4)}, v11, s[40:43], s5 offen")
        a("K_NOWPF:")
    a("s_mov_b32 s6, 400016")
    for i in range(8):
        a(f"v_and_b32 v{16+i}, 0xffff, v{48+i}")
        a(f"v_mul_hi_u32 v{16+i}, v{16+i}, s6")
        a(f"v_bfe_u32 v{48+i}, v{48+i}, 16, 4")
        a(f"v_lshlrev_b32 v{16+i}, 3, v{16+i}")
        a(f"v_lshl_or_b32 v{16+i}, v{48+i}, 24, v{16+i}")
    a("s_waitcnt lgkmcnt(0)")
    a("s_barrier")
    stamp(a, 2)
    a(f"ds_read_b128 v[72:75], v11 offset:{L_HIST}")
    a(f"s_lshl_b32 s4, s{S_W}, 8")
    a(f"v_lshl_add_u32 v15, v{LANE}, 2, s4")
    a(f"ds_read_b32 v76, v15 offset:{L_HIST}")
    a("s_waitcnt lgkmcnt(1)")
    a("v_add_u32 v49, v72, v73"); a("v_add_u32 v50, v49, v74"); a("v_add_u32 v51, v50, v75")
    a("v_mov_b32 v52, v51")
    for sh in (1, 2, 4, 8): a(f"v_add_u32_dpp v52, v52, v52 row_shr:{sh} row_mask:0xf bank_mask:0xf bound_ctrl:0")
    a("v_add_u32_dpp v52, v52, v52 row_bcast:15 row_mask:0xa bank_mask:0xf")
    a("v_add_u32_dpp v52, v52, v52 row_bcast:31 row_mask:0xc bank_mask:0xf")
    a("v_sub_u32 v52, v52, v51"); a("v_add_u32 v53, v52, v72"); a("v_add_u32 v54, v52, v49"); a("v_add_u32 v55, v52, v50")
    a(f"ds_write_b128 v11, v[52:55] offset:{L_OFFS}")
    a("s_waitcnt lgkmcnt(0)")
    for i in range(8): a(f"ds_read_b32 v{48+i}, v{56+i} offset:{L_OFFS}")
    a(f"ds_read_b32 v77, v15 offset:{L_OFFS}")
    a(f"s_waitcnt vmcnt({N1 + 4})")
    for i in range(8): a(f"v_lshl_or_b32 v{16+i}, v{24+i}, 7, v{16+i}")
    a("s_waitcnt lgkmcnt(0)")
    for i in range(8): a(f"v_add_u32 v{48+i}, v{48+i}, v{64+i}")
    a("v_lshl_or_b32 v76, v76, 16, v77")
    for g in range(2):
        if g == 1: a("s_mov_b64 exec, s[62:63]")
        for k in range(4): a(f"ds_write_b32 v{48+4*g+k}, v{16+4*g+k} offset:{L_STG+8}")
        for k in range(4): a(f"v_add_u32 v{56+4*g+k}, {L_STG}, v{48+4*g+k}")
        a(f"s_waitcnt vmcnt({N1 + 2 - 2*g})")
        for k in range(4):
            i = 4*g + k
            a(f"ds_write2_b32 v{56+i}, v{32+2*i}, v{33+2*i} offset0:0 offset1:1")
    a("s_mov_b64 exec, -1")
    N2 = 9
    a(f"v_cmp_gt_u32 vcc, {CHS//16 - 2048}, v0")
    a(f"v_mov_b32 v12, {hex(HUGE)}")
    a("v_cndmask_b32 v12, v12, v8, vcc")
    a("s_waitcnt vmcnt(5)")
    for j in range(3): a(f"v_lshlrev_b32 v{68+j}, 16, v{RW+8+j}")
    a("v_mov_b32 v71, 0")
    a("s_mov_b64 exec, 0xffff")
    a(f"buffer_store_dwordx4 v[68:71], v{PIX}, {sr(S_POSF,4)}, 0 idxen sc1")
    a("s_mov_b64 exec, -1")
    a("s_movk_i32 s4, 0x2000")
    a(f"buffer_load_dwordx4 {vr(RW,4)}, v8, {sr(56,4)}, s4 offen")
    a("s_movk_i32 s4, 0x4000")
    a(f"buffer_load_dwordx4 {vr(RW+4,4)}, v11, {sr(56,4)}, s4 offen")
    a(f"s_lshl_b32 s5, s{S_W}, 10")
    a(f"s_add_u32 m0, s5, {L_WF + 8192}"); a("s_nop 0")
    a(f"buffer_load_dwordx4 v8, {sr(56,4)}, 0 offen lds")
    a(f"s_add_u32 m0, s5, {L_WH}"); a("s_nop 0")
    a(f"buffer_load_dwordx4 v8, s[40:43], 0 offen lds")
    a(f"s_add_u32 m0, s5, {L_WH + 8192}"); a("s_movk_i32 s4, 0x2000")
    a(f"buffer_load_dwordx4 v8, s[40:43], s4 offen lds")
    stamp(a, 3)
    a("s_waitcnt lgkmcnt(0)")
    a("s_barrier")
    for j in range(5): a(f"ds_read_b128 {vr(16+4*j,4)}, v8 offset:{L_STG + 8192*j}")
    for j in range(5):
        a(f"s_waitcnt lgkmcnt({4-j})")
        a(f"buffer_store_dwordx4 {vr(16+4*j,4)}, v{8 if j < 4 else 12}, {sr(S_REC,4)}, s54 offen {opt('stp', 'sc1').replace('+', ' ')}")
        if j < 4: a("s_add_u32 s54, s54, 8192")
    stamp(a, 4)
    srd(a, S_OUT, 48, 49, 0, 3350000)
    srd(a, S_WX, 44, 45, 0, 128)
    cursor_init(a)
    a(f"s_mov_b32 s{S_LO}, -1"); a(f"s_mov_b32 s{S_LO+1}, 0"); a(f"s_mov_b32 s{S_HI}, 0"); a(f"s_mov_b32 s{S_HI+1}, -1")
    a(f"s_mov_b32 s{S_GM}, 0x3fff80")
    a(f"s_lshl_b32 s{S_TBLA}, s{S_W}, 9"); a(f"s_add_u32 s{S_TBLA}, s{S_TBLA}, {L_TBL}"); a(f"s_add_u32 s{S_TBLB}, s{S_TBLA}, 256")
    a(f"s_lshl_b32 s{S_GB}, s{S_W}, 13"); a(f"s_add_u32 s{S_GB}, s{S_GB}, {L_GB}")
    a(f"s_mov_b32 s{S_WIN}, {32*12}"); a(f"s_mov_b32 s{S_ROUND}, 1"); a(f"s_mov_b32 s{S_PADB}, {L_PAD}"); a(f"s_mov_b32 s{S_PADE}, {L_PAD+128}")
    a(f"s_lshl_b32 s{S_ACCO}, s2, 3"); a(f"s_add_u32 s{S_ACCO}, s{S_ACCO}, s{S_W}"); a(f"s_lshl_b32 s{S_ACCO}, s{S_ACCO}, 14")
    a(f"s_mul_i32 s{S_SEG}, s{S_W}, {32*CHS}")
    a(f"v_mov_b32 v{FOUR}, 4")
    a(f"v_mul_u32_u24 v{I12}, 12, v9"); a(f"v_mul_u32_u24 v{I12H}, {CHS}, v10"); a(f"v_add_u32 v{I12H}, v{I12H}, v{I12}")
    a(f"v_lshlrev_b32 v{BPX}, 2, v10")
    a(f"s_lshl_b32 s4, s{S_W}, 11"); a(f"s_add_u32 s4, s4, {L_IMG}")
    for j in range(4): a(f"v_mov_b32 v{48+j}, 0")
    a("v_add_u32 v12, s4, v11")
    a("ds_write_b128 v12, v[48:51]"); a("ds_write_b128 v12, v[48:51] offset:1024")
    a(f"v_lshl_add_u32 v{IMGB}, v9, 6, s4")
    a(f"v_bfe_u32 v12, v{LANE}, 2, 2"); a("v_lshl_add_u32 v12, v10, 2, v12"); a("v_lshlrev_b32 v12, 6, v12")
    a(f"v_bfe_u32 v13, v{LANE}, 4, 1"); a("v_lshl_add_u32 v12, v13, 5, v12")
    a(f"v_and_b32 v13, 3, v{LANE}"); a("v_lshl_add_u32 v12, v13, 3, v12")
    a(f"v_add_u32 v{TRA}, s4, v12")
    a(f"v_and_b32 v12, 7, v{LANE}"); a("v_lshrrev_b32 v13, 1, v12"); a("v_and_b32 v14, 1, v12"); a("v_lshlrev_b32 v14, 4, v14")
    a("v_mov_b32 v60, 0x3f80"); a("v_lshlrev_b32 v14, v14, v60")
    for j in range(4):
        a(f"v_cmp_eq_u32 vcc, {j}, v13"); a(f"v_cndmask_b32 v{48+j}, 0, v14, vcc")
    a(f"v_bfe_u32 v13, v{LANE}, 3, 1"); a("v_lshlrev_b32 v13, 8, v13"); a("v_lshl_add_u32 v13, v12, 4, v13")
    a(f"v_add_u32 v{TMP}, s{S_TBLA}, v13")
    a("s_mov_b64 exec, 0xffff"); a(f"ds_write_b128 v{TMP}, v[48:51]"); a(f"ds_write_b128 v{TMP}, v[68:71] offset:128"); a("s_mov_b64 exec, -1")
    a(f"v_and_b32 v12, 7, v{LANE}"); a(f"v_bfe_u32 v13, v{LANE}, 4, 1"); a("v_lshlrev_b32 v13, 2, v13"); a("v_xor_b32 v12, v12, v13")
    for j in range(4):
        a(f"v_xor_b32 v13, {j}, v12"); a(f"v_lshlrev_b32 v{COLC+j}, 4, v13")
    a("v_and_b32 v12, 3, v9"); a("v_lshrrev_b32 v13, 2, v9"); a("v_lshl_add_u32 v13, v12, 3, v13"); a("v_lshlrev_b32 v13, 7, v13")
    a(f"v_add_u32 v13, s{S_GB}, v13")
    a("v_bfe_u32 v14, v9, 3, 1"); a("v_lshl_or_b32 v12, v14, 2, v12"); a("v_xor_b32 v12, v12, v10")
    for s in range(4):
        a(f"v_xor_b32 v14, {2*s}, v12"); a(f"v_lshl_add_u32 v{RDA+s}, v14, 4, v13")
    a(f"v_lshrrev_b32 v12, 3, v{LANE}"); a(f"v_lshlrev_b32 v{LANEQ}, 4, v12"); a(f"v_lshlrev_b32 v{LANEE}, 2, v9")
    a(f"v_mov_b32 v12, {hex(PADW)}"); a(f"v_add_u32 v13, s{S_PADB}, v{LANEE}")
    a("ds_write_b32 v13, v12"); a(f"ds_write2st64_b32 v13, v{ZERO}, v{ZERO} offset0:{PO1} offset1:{PO2}")
    a(f"v_mov_b32 v{XR+3}, 0")
    a(f"s_mov_b32 s4, {hex(NLOG2E)}"); a("s_mov_b32 s5, s4")
    a("s_waitcnt vmcnt(8)")
    for j in range(8):
        a(f"v_lshlrev_b32 v{32+2*j}, 16, v{RW+j}"); a(f"v_and_b32 v{33+2*j}, 0xffff0000, v{RW+j}")
    for j in range(8): a(f"v_pk_mul_f32 {vr(32+2*j,2)}, {vr(32+2*j,2)}, s[4:5]")
    for j in range(8): a(f"v_cvt_pk_bf16_f32 v{48+j}, v{32+2*j}, v{33+2*j}")
    a(f"v_add_u32 v16, {L_WF}, v8")
    a("ds_write_b128 v16, v[48:51]")
    for j in range(4):
        a(f"v_lshlrev_b32 v{56+2*j}, 16, v{52+j}"); a(f"v_and_b32 v{57+2*j}, 0xffff0000, v{52+j}")
    for j in range(4): a(f"v_pk_add_f32 {vr(56+2*j,2)}, {vr(40+2*j,2)}, {vr(56+2*j,2)} neg_lo:[0,1] neg_hi:[0,1]")
    for j in range(4): a(f"v_cvt_pk_bf16_f32 v{56+j}, v{56+2*j}, v{57+2*j}")
    a(f"v_add_u32 v16, {L_WF + 16384 - 128}, v11")
    a(f"v_add_u32 v17, {L_WF + 16384 + 512}, v11")
    a("s_mov_b64 exec, 0xff")
    a("ds_write_b128 v17, v[52:55]"); a("ds_write_b128 v17, v[56:59] offset:128")
    a("s_mov_b32 s6, 0xffffff00"); a("s_mov_b32 s7, 0xff0000ff"); a("s_mov_b64 exec, s[6:7]")
    a("ds_write_b128 v16, v[52:55]")
    a("s_mov_b32 s6, 0"); a("s_mov_b32 s7, 0xff000000"); a("s_mov_b64 exec, s[6:7]")
    a("ds_write_b128 v16, v[52:55] offset:128")
    a("s_mov_b64 exec, -1")
    a(f"v_bfe_u32 v18, v{LANE}, 2, 2"); a("v_lshlrev_b32 v16, 7, v18")
    a(f"v_bfe_u32 v18, v{LANE}, 4, 1"); a("v_lshl_add_u32 v16, v18, 5, v16")
    a(f"v_and_b32 v18, 3, v{LANE}"); a("v_lshl_add_u32 v16, v18, 3, v16")
    a(f"v_add_u32 v{VAL}, {L_WF + 16384}, v16")
    a("v_lshl_add_u32 v16, v10, 10, v16"); a(f"v_add_u32 v{VAL+1}, {L_WF}, v16")
    a(f"s_mov_b32 s5, {opt('spin', 200000)}")
    a("K_EPW:")
    a(f"v_readfirstlane_b32 s4, v{RW+12}")
    a("s_cmp_lg_u32 s4, 0"); a("s_cbranch_scc1 K_EPOK")
    a("s_sub_u32 s5, s5, 1"); a("s_cmp_eq_u32 s5, 0"); a("s_cbranch_scc1 K_EPOK")
    a(f"buffer_load_dword v{RW+12}, v{ZERO}, {sr(S_ACC,4)}, 0 offen sc0 sc1")
    a("s_waitcnt vmcnt(0)")
    a("s_branch K_EPW")
    a("K_EPOK:")
    srd(a, S_ACC, 52, 53, WS_ACC, 256 * 8 * 16384)
    a(f"v_mov_b32 v77, v{RW+12}")
    a("s_lshl_b32 s3, s2, 12"); a(f"s_add_u32 s3, s3, {hex(WS_GRAN)}")
    a("v_lshlrev_b32 v15, 2, v15")
    a(f"s_mov_b32 s4, {hex(TAGK)}")
    a("v_not_b32 v79, v77"); a(f"v_xor_b32 v{PS+2}, s4, v77"); a(f"v_xor_b32 v78, v76, v{PS+2}")
    a(f"v_mov_b32 v{PS}, v77"); a(f"v_mov_b32 v{PS+1}, v79")
    a(f"v_lshlrev_b32 v{IMGA}, 12, v9")
    a(f"s_lshl_b32 s5, s{S_W}, 17"); a(f"s_lshl_b32 s6, s{S_B}, 4"); a("s_add_u32 s5, s5, s6"); a(f"s_add_u32 s{S_T3}, s5, {hex(WS_GRAN)}")
    a("s_waitcnt vmcnt(0) lgkmcnt(0)")
    stamp(a, 5)
    a("s_barrier")
    a(f"s_cmp_ge_u32 s{S_W}, 4")
    a("s_cbranch_scc1 K_NOPUB")
    a(f"buffer_store_dwordx4 v[76:79], v15, {sr(S_REC,4)}, s3 offen sc1")
    a("K_NOPUB:")
    HPF = opt("hpf", 0)
    if HPF:
        a("s_lshr_b32 s3, s2, 3"); a("s_mul_i32 s3, s3, 100000")
        for k in range(HPF):
            a(f"buffer_load_dwordx4 {vr(PD,4)}, v8, {sr(S_H,4)}, s3 offen")
            a("s_add_u32 s3, s3, 8192")
    WT = ACCB0
    for f in range(8):
        for kk in range(2): a(f"ds_read_b64_tr_b16 {vr(WT+4*f+2*kk,2)}, v{VAL+1} offset:{8192 + (f&3)*2048 + kk*512 + (f>>2)*64}")
    a("s_waitcnt lgkmcnt(8)")
    for s in range(4): a(mfma32(ACCA0, A1+4*s, WT + 4*s, 0 if s == 0 else None))
    for nh, b in ((0, BXA0), (1, BXA1), (0, BXB0), (1, BXB1)):
        for kk in range(2): a(f"ds_read_b64_tr_b16 {vr(b+2*kk,2)}, v{VAL} offset:{kk*512 + nh*64}")
    a("s_waitcnt lgkmcnt(8)")
    for s in range(4): a(mfma32(ACCA1, A1+4*s, WT + 16 + 4*s, 0 if s == 0 else None))
    a("s_waitcnt lgkmcnt(0)")
    for f in range(8):
        for kk in range(2): a(f"ds_read_b64_tr_b16 {vr(W2F+4*f+2*kk,2)}, v{VAL+1} offset:{(f&3)*2048 + kk*512 + (f>>2)*64}")
    a(f"s_mov_b32 s4, {hex(NLOG2E)}"); a("s_mov_b32 s5, s4")
    a(f"s_mov_b64 exec, {sr(S_LO,2)}")
    for nh, d, ba, bb in ((0, ACCA0, BXA0, BXB0), (1, ACCA1, BXA1, BXB1)):
        for j in range(8): a(f"v_pk_mul_f32 {vr(d+2*j,2)}, {vr(d+2*j,2)}, s[4:5]")
        for j in range(4):
            a(f"v_cvt_pk_bf16_f32 v{ba+j}, v{d+2*j}, v{d+2*j+1}")
            a(f"v_cvt_pk_bf16_f32 v{bb+j}, v{d+8+2*j}, v{d+8+2*j+1}")
    a("s_mov_b64 exec, -1")
    for i in range(64): a(f"v_mov_b32 v{ACCA0+i}, 0")
    stamp(a, 22)
    a(f"v_and_b32 v12, 7, v{LANE}"); a(f"v_and_b32 v13, 8, v{LANE}")
    node_sel(a, "v_cmp_eq_u32 vcc, 0, v13", 13, 14, 15)
    a("v_cmp_lt_u32 vcc, v12, v14")
    a("v_add_u32 v13, v13, v12"); a("v_lshlrev_b32 v13, 7, v13")
    a(f"v_lshrrev_b32 v14, 4, v{LANE}"); a("v_lshl_add_u32 v13, v14, 5, v13")
    a(f"v_mov_b32 v15, {hex(HUGE)}")
    a(f"v_cndmask_b32 v{HA}, v15, v13, vcc")
    a(f"v_bfe_u32 v12, v{LANE}, 2, 2"); a(f"v_lshrrev_b32 v13, 5, v{LANE}"); a("v_lshl_add_u32 v12, v12, 1, v13")
    a(f"v_and_b32 v13, 16, v{LANE}")
    node_sel(a, "v_cmp_eq_u32 vcc, 0, v13", 13, 14, 15)
    a("v_cmp_lt_u32 vcc, v12, v14")
    a("v_add_u32 v13, v13, v12"); a("v_mul_u32_u24 v13, 6, v13")
    a(f"v_and_b32 v14, 3, v{LANE}"); a("v_lshl_add_u32 v13, v14, 1, v13")
    a(f"v_cmp_gt_u32 {sr(S_T0,2)}, 3, v14")
    a(f"v_mov_b32 v15, {hex(HUGE)}")
    a(f"s_and_b64 vcc, vcc, {sr(S_T0,2)}")
    a(f"v_cndmask_b32 v{PA}, v15, v13, vcc")
    VL = S8
    a(f"v_mov_b32 v{SW}, 0"); a("v_mov_b32 v0, 0"); a(f"v_mov_b32 v{VL}, 0")
    a(f"s_mov_b32 s{S_PEND}, -1"); a(f"s_mov_b32 s{S_PEND+1}, 0"); a(f"s_mov_b32 s{S_LEFT}, 0")
    a(f"s_mov_b32 s{S_SPIN}, {opt('spin', 200000)}")
    a(f"s_mov_b32 s{S_SUB}, 0")
    a("s_waitcnt lgkmcnt(0)")
    a("K_POLL:")
    a(f"s_mov_b64 exec, {sr(S_PEND,2)}")
    a(f"buffer_load_dwordx4 {vr(PD,4)}, v{IMGA}, {sr(S_REC,4)}, s{S_T3} offen sc1")
    a("s_waitcnt vmcnt(0)")
    a(f"v_xor_b32 v{PD+2}, v{PD}, v{PD+2}")
    a(f"v_cmp_eq_u32 vcc, v{PD+1}, v{PS}"); a(f"v_cmp_eq_u32 s[60:61], v{PD+3}, v{PS+1}"); a(f"v_cmp_eq_u32 s[58:59], v{PD+2}, v{PS+2}")
    a("s_and_b64 vcc, vcc, s[60:61]"); a("s_and_b64 vcc, vcc, s[58:59]")
    a(f"v_cndmask_b32 v{SW}, v{SW}, v{PD}, vcc")
    a(f"v_cndmask_b32 v0, v0, v{PD}, vcc")
    a("s_mov_b64 exec, -1")
    a(f"s_andn2_b32 s{S_PEND}, s{S_PEND}, vcc_lo")
    a("s_cbranch_scc0 K_ALLIN")
    a(f"s_bcnt1_i32_b32 s4, s{S_PEND}")
    a(f"s_cmp_le_u32 s4, {opt('pth', 0)}")
    a("s_cbranch_scc0 K_PWAIT")
    a("v_cmp_ne_u32 vcc, 0, v0")
    a("s_cmp_lg_u32 vcc_lo, 0")
    a("s_cbranch_scc1 K_ROUND")
    a("K_PWAIT:")
    a(f"s_sub_u32 s{S_SPIN}, s{S_SPIN}, 1")
    a(f"s_cmp_eq_u32 s{S_SPIN}, 0")
    a(f"s_cselect_b32 s{S_PEND}, 0, s{S_PEND}")
    a("s_cbranch_scc1 K_ALLIN")
    if opt("slp", 4): a(f"s_sleep {opt('slp', 4)}")
    a("s_branch K_POLL")
    a("K_ALLIN:")
    if STAMP: a(f"v_writelane_b32 v255, s{S_SPIN}, 15")
    stamp(a, 6)
    a("s_branch K_ROUND")
    a("K_RESET:")
    cursor_init(a)
    a(f"v_mov_b32 v0, v{SW}")
    a(f"s_mov_b32 s{S_SUB}, 1")
    a("s_waitcnt lgkmcnt(0)")
    a("s_barrier")
    a("K_ROUND:")
    for p in range(16): a(f"ds_bpermute_b32 v{16+4*p+3}, v{BPX}, v0 offset:{8*p}")
    a(f"s_mov_b32 s3, s{S_SEG}")
    for p in range(16):
        r = 16 + 4*p
        a(f"s_waitcnt lgkmcnt({15-p})")
        a(f"v_cmp_lt_u32_sdwa {sr(S_MASK+2*p,2)}, v{I12}, v{r+3} src0_sel:DWORD src1_sel:WORD_1")
        a(f"v_add_u32_sdwa v{r+3}, v{r+3}, v{I12H} dst_sel:DWORD dst_unused:UNUSED_PAD src0_sel:WORD_0 src1_sel:DWORD")
        a(f"s_or_b64 exec, {sr(S_MASK+2*p,2)}, 1")
        a(f"buffer_load_dwordx3 {vr(r,3)}, v{r+3}, {sr(S_REC,4)}, s3 offen {opt('ldp', 'sc1').replace('+', ' ')}")
        a("s_mov_b64 exec, -1")
        a(f"s_add_u32 s3, s3, {2*CHS}")
    stamp(a, 7)
    a("v_lshrrev_b32 v12, 16, v0")
    a(f"v_cmp_lt_u32 vcc, s{S_WIN}, v12")
    a(f"v_min_u32 v12, s{S_WIN}, v12")
    a("v_add_u32 v0, v0, v12"); a("v_lshlrev_b32 v12, 16, v12"); a("v_sub_u32 v0, v0, v12")
    a(f"s_mov_b32 s{S_MORE}, vcc_lo")
    a(f"v_cndmask_b32 v{VL}, v{VL}, v0, vcc")
    for p in range(16):
        r = 16 + 4*p
        a(f"s_waitcnt vmcnt({15-p + min(p, NPF)})")
        a(f"s_mov_b64 exec, {sr(S_MASK+2*p,2)}")
        a(f"v_bfe_u32 v{r+3}, v{r+2}, 22, 6")
        a(f"ds_add_rtn_u32 v{r+3}, v{r+3}, v{FOUR}")
        if p < NPF:
            a(f"v_and_b32 v{ADQ}, s{S_GM}, v{r+2}")
            a(f"s_or_b64 exec, {sr(S_MASK+2*p,2)}, 1")
            a(f"buffer_load_dword v{S16}, v{ADQ}, {sr(S_H,4)}, 0 offen")
        if p % 4 == 3:
            a("s_waitcnt lgkmcnt(0)")
            for q in range(p-3, p+1):
                rq = 16 + 4*q
                a(f"s_mov_b64 exec, {sr(S_MASK+2*q,2)}")
                a(f"ds_write_b32 v{rq+3}, v{rq+2}")
                a(f"ds_write2st64_b32 v{rq+3}, v{rq}, v{rq+1} offset0:{PO1} offset1:{PO2}")
    a("s_mov_b64 exec, -1")
    a(f"s_cmp_lg_u32 s{S_SUB}, 0")
    a("s_cbranch_scc1 K_LAST")
    a(f"s_or_b32 s{S_LEFT}, s{S_LEFT}, s{S_MORE}")
    a("v_mov_b32 v0, 0")
    a(f"s_cmp_lg_u32 s{S_PEND}, 0")
    a("s_cbranch_scc1 K_POLL")
    a(f"s_cmp_eq_u32 s{S_LEFT}, 0")
    a("s_cbranch_scc1 K_BINNED")
    a(f"v_mov_b32 v0, v{VL}")
    a(f"s_mov_b32 s{S_SUB}, 1")
    a("s_branch K_ROUND")
    a("K_LAST:")
    a(f"s_cmp_eq_u32 s{S_MORE}, 0")
    a("s_cbranch_scc1 K_BINNED")
    a(f"v_mov_b32 v13, {L_FLAG}")
    a(f"ds_write_b32 v13, v{FOUR}")
    a("K_BINNED:")
    stamp(a, 8)
    a(f"buffer_load_dwordx4 {vr(HB,4)}, v{HA}, {sr(S_H,4)}, 0 offen")
    a(f"buffer_load_dwordx4 {vr(HB+4,4)}, v{HA}, {sr(S_H,4)}, 0 offen offset:16")
    a(f"v_lshrrev_b32 v16, 1, v{LANEE}")
    a(f"buffer_load_ushort v{WX0}, v16, {sr(S_WX,4)}, 0 offen")
    a(f"buffer_load_ushort v{WX1}, v16, {sr(S_WX,4)}, 0 offen offset:64")
    a(f"buffer_load_ushort v{PV}, v{PA}, {sr(S_POS,4)}, 0 offen")
    for j in range(4): srd(a, S_HJ+4*j, S_H, S_H+1, -1024*j, 3200000 + 1024*j)
    for i in range(16): a(f"v_mov_b32 v{MP+i}, 0")
    a(f"v_lshlrev_b32 v17, 2, v{LANE}")
    a(f"s_lshl_b32 s4, s{S_W}, 1"); a("s_add_u32 s5, s4, 1")
    a("s_xor_b32 s48, s4, 8"); a("s_xor_b32 s49, s5, 8")
    a(f"v_readlane_b32 s{S_NEXT}, v{CURB}, s4"); a(f"v_readlane_b32 s{S_JUMP}, v{CURB}, s5")
    a(f"v_mov_b32 v19, {hex(PADW)}")
    a(f"s_mov_b32 s{S_TBL}, s{S_TBLA}")
    a("s_waitcnt lgkmcnt(0)")
    a("s_barrier")
    stamp(a, 19)
    a("ds_read_b32 v16, v17")
    a("s_waitcnt lgkmcnt(0)")
    a(f"v_cmp_gt_u32 vcc, v16, v{CURL}")
    a(f"v_sub_u32 v18, v16, v{CURB}"); a("v_add_u32 v18, 127, v18"); a("v_lshrrev_b32 v18, 7, v18")
    a("v_med3_u32 v18, v18, 1, 10")
    a(f"v_readlane_b32 s{S_T0}, v16, s4"); a(f"v_readlane_b32 s{S_T1}, v16, s5"); a(f"v_readlane_b32 s{S_MORE}, v16, 16")
    a(f"v_readlane_b32 s{S_REM}, v18, s4"); a(f"v_readlane_b32 s{S_TB}, v18, s5")
    a("v_readlane_b32 s50, v18, s48"); a("v_readlane_b32 s51, v18, s49")
    a("s_and_b32 s6, vcc_lo, 0xffff")
    a("s_cbranch_scc0 K_FITS")
    a(f"s_cmp_le_u32 s{S_WIN}, 12")
    a("s_cbranch_scc1 K_FITS")
    a("s_barrier")
    a(f"s_lshr_b32 s{S_WIN}, s{S_WIN}, 1")
    a(f"v_mov_b32 v16, {hex(HUGE)}")
    a(f"v_cmp_gt_u32 vcc, s{S_WIN}, v{I12}")
    a(f"v_cndmask_b32 v{I12}, v16, v{I12}, vcc")
    a("s_waitcnt vmcnt(0)")
    a("s_branch K_RESET")
    a("K_FITS:")
    a(f"s_lshl_b32 s4, s{S_REM}, 7"); a(f"s_add_u32 s{S_END}, s4, s{S_NEXT}")
    a(f"s_lshl_b32 s5, s{S_TB}, 7"); a(f"s_add_u32 s{S_END2}, s5, s{S_JUMP}")
    for cur, end, m in ((S_T0, S_END, S_LO), (S_T1, S_END2, S_HI)):
        a(f"v_add_u32 v16, s{cur}, v{LANEE}")
        a(f"v_cmp_gt_u32 vcc, s{end}, v16")
        a(f"s_and_b64 exec, vcc, {sr(m,2)}")
        a("ds_write_b32 v16, v19")
        a(f"ds_write2st64_b32 v16, v{ZERO}, v{ZERO} offset0:{PO1} offset1:{PO2}")
        a("s_mov_b64 exec, -1")
    WQ2 = 20
    for t in g_reads(0, WQ2) + g_reads(1): a(t)
    a(f"v_mov_b32 v{SW}, v0")
    a("s_add_u32 s50, s50, s51"); a(f"s_add_u32 s51, s{S_REM}, s{S_TB}")
    a(f"s_mul_i32 s50, s50, {opt('fa', 125)}"); a(f"s_mul_i32 s51, s51, {opt('fb', 51)}"); a("s_sub_i32 s50, s50, s51"); a("s_add_i32 s50, s50, 128")
    a("s_ashr_i32 s50, s50, 8"); a("s_max_i32 s50, s50, 0")
    a(f"s_sub_i32 s{S_FLIP}, s{S_REM}, s50"); a(f"s_sub_i32 s{S_FLIP}, s{S_FLIP}, 1"); a(f"s_max_i32 s{S_FLIP}, s{S_FLIP}, 0")
    a(f"s_cmp_lt_u32 s{S_W}, 4"); a(f"s_cselect_b32 s{S_FLIP}, -1, s{S_FLIP}")
    a("s_waitcnt lgkmcnt(2)")
    a(f"v_bfe_u32 v{PIX}, v{W2E}, 7, 15")
    for t in g_addr(WQ2) + g_m0(0): a(t)
    a(f"s_mov_b64 exec, {sr(S_HI,2)}"); a(pos_gather()); a("s_mov_b64 exec, -1")
    for t in g_dma(WQ2): a(t)
    a("s_waitcnt lgkmcnt(0)")
    for t in g_addr() + g_m0(1) + ["s_nop 0"] + g_dma(): a(t)
    stamp(a, 20)
    a(f"s_cmp_eq_u32 s{S_ROUND}, 1")
    a("s_cbranch_scc1 K_FILL2")
    a(f"v_lshlrev_b32 v16, 4, v{LANE}")
    a(f"s_mov_b32 s3, s{S_ACCO}")
    for i in range(16):
        a(f"buffer_load_dwordx4 {vr(ACCA0+4*i,4)}, v16, {sr(S_ACC,4)}, s3 offen offset:{(i%4)*1024} sc0 sc1")
        if i % 4 == 3: a("s_add_u32 s3, s3, 4096")
    a("s_waitcnt vmcnt(0)")
    a("K_FILL2:")
    for t in e_head(0): a(t)
    a("s_waitcnt vmcnt(4) lgkmcnt(0)")
    stamp(a, 21)
    for t in a1_reads(0) + e_sect(0, zero=False) + g_reads(0): a(t)
    a("s_waitcnt lgkmcnt(5)")
    a(mfma32(D0, A1, W2F, 0))
    for s in range(1, 4): a(mfma32(D0, A1+4*s, W2F+4*s))
    a("s_waitcnt lgkmcnt(0)")
    a(mfma32(D0, XR, BXA0))
    for t in g_addr() + g_m0(0) + ["s_nop 0"] + g_dma(): a(t)
    a("s_nop 3")
    if opt("qtest", 0):
        for j in range(8): a(f"v_mov_b32 v{W2F+j}, 0")
        a(f"v_mov_b32 v{W2F+1}, 0x3f80"); a(f"v_mov_b32 v{W2F+6}, 0x3f80")
    stamp(a, 9); stamp(a, 10, True)
    if STAMP: a(f"v_writelane_b32 v255, s{S_REM}, 12"); a(f"v_writelane_b32 v255, s{S_TB}, 13"); a("s_mov_b32 s5, 24")
    a("K_XA0:")
    phase_x(a, 0, ACCA1, BXA1, True)
    a(f"s_cmp_eq_u32 s{S_REM}, 0"); a("s_cbranch_scc1 K_YT0")
    phase_y(a, 0, ACCA0, BXA0)
    phase_x(a, 1, ACCA1, BXA1, True)
    a(f"s_cmp_eq_u32 s{S_REM}, 0"); a("s_cbranch_scc1 K_YT1")
    phase_y(a, 1, ACCA0, BXA0)
    a("s_branch K_XA0")
    a("K_YT0:")
    phase_y(a, 0, ACCA0, BXB0)
    phase_x(a, 1, ACCA1, BXB1, False)
    a("s_branch K_YB1")
    a("K_YT1:")
    phase_y(a, 1, ACCA0, BXB0)
    phase_x(a, 0, ACCA1, BXB1, False)
    a("K_YB0:")
    phase_y(a, 0, ACCB0, BXB0)
    a(f"s_sub_u32 s{S_TB}, s{S_TB}, 1"); a(f"s_cmp_eq_u32 s{S_TB}, 0"); a("s_cbranch_scc1 K_DRAIN")
    phase_x(a, 1, ACCB1, BXB1, False)
    a("K_YB1:")
    phase_y(a, 1, ACCB0, BXB0)
    a(f"s_sub_u32 s{S_TB}, s{S_TB}, 1"); a(f"s_cmp_eq_u32 s{S_TB}, 0"); a("s_cbranch_scc1 K_DRAIN")
    phase_x(a, 0, ACCB1, BXB1, False)
    a("s_branch K_YB0")
    a("K_DRAIN:")
    a(mfma32(ACCB1, A2, MP))
    a(mfma32(ACCB1, A2+4, MP+4))
    stamp(a, 16); stamp(a, 11, True)
    a(f"s_cmp_eq_u32 s{S_MORE}, 0")
    a("s_cbranch_scc1 K_EPI")
    a("s_setprio 0")
    a(f"s_mov_b64 exec, {sr(S_HI,2)}"); a(f"ds_write_b64 v{IMGA}, {vr(ZERO,2)}"); a("s_mov_b64 exec, -1")
    a(f"v_lshlrev_b32 v16, 4, v{LANE}")
    a(f"s_mov_b32 s3, s{S_ACCO}")
    a("s_nop 7")
    for i in range(16):
        a(f"buffer_store_dwordx4 {vr(ACCA0+4*i,4)}, v16, {sr(S_ACC,4)}, s3 offen offset:{(i%4)*1024} sc0 sc1")
        if i % 4 == 3: a("s_add_u32 s3, s3, 4096")
    a(f"s_mov_b32 s{S_ROUND}, 2")
    a("s_waitcnt vmcnt(0) lgkmcnt(0)")
    a("s_barrier")
    a("s_branch K_RESET")
    a("K_EPI:")
    whf = lambda f: (16 + 4*f) if f < 12 else (80 + 4*(f-12))
    MB = 108; DO = 116; AD = 100
    a(f"v_lshrrev_b32 v{AD}, 4, v{LANE}"); a(f"v_lshlrev_b32 v{AD}, 4, v{AD}")
    a(f"v_bfe_u32 v{AD+1}, v{LANE}, 2, 2"); a(f"v_add_u32 v{AD}, v{AD}, v{AD+1}"); a(f"v_lshlrev_b32 v{AD}, 7, v{AD}")
    a(f"v_and_b32 v{AD+1}, 3, v{LANE}"); a(f"v_lshl_add_u32 v{AD}, v{AD+1}, 5, v{AD}"); a(f"v_add_u32 v{AD}, {L_WH}, v{AD}")
    a(f"s_mov_b32 s4, {hex(NLN2)}")
    a(f"v_lshrrev_b32 v{AD+2}, 5, v{LANE}"); a(f"v_lshlrev_b32 v{AD+2}, 7, v{AD+2}"); a(f"v_lshrrev_b32 v{AD+3}, 1, v{LANEE}")
    a(f"v_add3_u32 v{AD+2}, v{AD+2}, v{AD+3}, s{S_GB}")
    a(f"v_and_b32 v{AD+3}, 15, v{LANE}"); a(f"v_lshlrev_b32 v{AD+3}, 7, v{AD+3}"); a(f"v_lshrrev_b32 v{AD+4}, 4, v{LANE}")
    a(f"v_lshl_add_u32 v{AD+3}, v{AD+4}, 5, v{AD+3}"); a(f"v_add_u32 v{AD+3}, s{S_GB}, v{AD+3}")
    for g, (c0, c1) in enumerate(((ACCA0, ACCA1), (ACCB0, ACCB1))):
        for q in range(4):
            a(f"v_mul_f32 v{c0+4*q}, s4, v{c0+4*q}"); a(f"v_mul_f32 v{c1+4*q}, s4, v{c1+4*q}")
            a(f"v_cvt_pk_bf16_f32 v{c0+4*q}, v{c0+4*q}, v{c1+4*q}")
    a("s_waitcnt vmcnt(0)")
    for g, (c0, c1) in enumerate(((ACCA0, ACCA1), (ACCB0, ACCB1))):
        for q in range(4):
            a(f"ds_write_b16 v{AD+2}, v{c0+4*q} offset:{g*1024 + q*256}")
            a(f"ds_write_b16_d16_hi v{AD+2}, v{c0+4*q} offset:{g*1024 + q*256 + 64}")
    a(f"ds_read_b128 {vr(MB,4)}, v{AD+3}"); a(f"ds_read_b128 {vr(MB+4,4)}, v{AD+3} offset:16")
    for s in range(4):
        for t in range(4):
            for kk in range(2):
                a(f"ds_read_b64_tr_b16 {vr(whf(t*4+s)+2*kk,2)}, v{AD} offset:{(s>>1)*8192 + (s&1)*1024 + kk*512 + t*8}")
    for w in (WX0, WX1): a(f"v_lshlrev_b32 v{w}, 16, v{w}"); a(f"v_mul_f32 v{w}, s4, v{w}")
    for (c0, c1) in ((ACCA0, ACCA1), (ACCB0, ACCB1)):
        for q in range(4):
            for k in (1, 2, 3):
                a(f"v_mul_f32 v{c0+4*q+k}, v{WX0}, v{c0+4*q+k}"); a(f"v_fmac_f32 v{c0+4*q+k}, v{WX1}, v{c1+4*q+k}")
    a("s_waitcnt lgkmcnt(0)")
    bsrc = (HB, HB+4, MB, MB+4)
    mf = []
    for s in range(4):
        for t in range(4):
            c = "0" if s == 0 else vr(DO+4*t, 4)
            mf.append(f"v_mfma_f32_16x16x32_bf16 {vr(DO+4*t,4)}, {vr(whf(t*4+s),4)}, {vr(bsrc[s],4)}, {c}")
    red = []
    for q in range(4):
        for k in (1, 2, 3): red.append(f"v_permlane16_swap_b32 v{ACCA0+4*q+k}, v{ACCB0+4*q+k}")
    for q in range(4):
        for k in (1, 2, 3): red.append(f"v_add_f32 v{ACCA0+4*q+k}, v{ACCA0+4*q+k}, v{ACCB0+4*q+k}")
    for q in range(2):
        for k in (1, 2, 3):
            red.append(f"v_add_f32_dpp v{ACCA1+4*q+k}, v{ACCA0+4*q+k}, v{ACCA0+4*q+k} row_ror:8 row_mask:0xf bank_mask:0x3")
            red.append(f"v_add_f32_dpp v{ACCA1+4*q+k}, v{ACCA0+4*q+8+k}, v{ACCA0+4*q+8+k} row_ror:8 row_mask:0xf bank_mask:0xc")
    for i, m in enumerate(mf):
        a(m)
        for t in red[2*i:2*i+2]: a(t)
    for t in red[32:]: a(t)
    for k in (1, 2, 3):
        a(f"v_add_f32_dpp v{ACCB1+k}, v{ACCA1+k}, v{ACCA1+k} row_shl:4 row_mask:0xf bank_mask:0x5")
        a(f"v_add_f32_dpp v{ACCB1+k}, v{ACCA1+4+k}, v{ACCA1+4+k} row_shr:4 row_mask:0xf bank_mask:0xa")
    for perm in ("[1,0,3,2]", "[2,3,0,1]"):
        for k in (1, 2, 3): a(f"v_add_f32_dpp v{ACCB1+k}, v{ACCB1+k}, v{ACCB1+k} quad_perm:{perm} row_mask:0xf bank_mask:0xf")
    a(f"v_cmp_eq_u32 vcc, 1, v{AD+1}"); a(f"v_lshlrev_b32 v{PV}, 16, v{PV}"); a(f"s_mov_b32 s4, {hex(NLOG2E)}")
    a(f"v_cndmask_b32 v{AD+5}, v{ACCB1+1}, v{ACCB1+2}, vcc")
    a(f"v_cmp_eq_u32 vcc, 2, v{AD+1}"); a("s_mov_b32 s5, s4"); a("s_mov_b32 s3, 3200000")
    a(f"v_cndmask_b32 v{AD+5}, v{AD+5}, v{ACCB1+3}, vcc")
    a(f"v_add_f32 v{AD+5}, v{AD+5}, v{PV}"); a(f"v_cvt_pk_bf16_f32 v{AD+5}, v{AD+5}, v{AD+5}")
    a(f"buffer_store_short v{AD+5}, v{PA}, {sr(S_OUT,4)}, s3 offen {OP}")
    E = 148
    for j in range(8): a(f"v_pk_mul_f32 {vr(E+2*j,2)}, {vr(DO+2*j,2)}, s[4:5]")
    for j in range(16): a(f"v_exp_f32 v{E+j}, v{E+j}")
    for j in range(8): a(f"v_pk_add_f32 {vr(E+2*j,2)}, {vr(E+2*j,2)}, 1.0 op_sel_hi:[1,0]")
    for j in range(16): a(f"v_rcp_f32 v{E+j}, v{E+j}")
    for j in range(8):
        a(f"v_lshlrev_b32 v{E+16+2*j}, 16, v{HB+j}"); a(f"v_and_b32 v{E+17+2*j}, 0xffff0000, v{HB+j}")
    for j in range(8): a(f"v_pk_fma_f32 {vr(E+2*j,2)}, {vr(E+2*j,2)}, {vr(DO+2*j,2)}, {vr(E+16+2*j,2)}")
    for j in range(8): a(f"v_cvt_pk_bf16_f32 v{E+32+j}, v{E+2*j}, v{E+2*j+1}")
    a(f"buffer_store_dwordx4 {vr(E+32,4)}, v{HA}, {sr(S_OUT,4)}, 0 offen {OP}")
    a(f"buffer_store_dwordx4 {vr(E+36,4)}, v{HA}, {sr(S_OUT,4)}, 0 offen offset:16 {OP}")
    stamp(a, 17)
    if STAMP: a("s_waitcnt vmcnt(0)")
    stamp(a, 18)
    stamp_out(a)
    a("K_END:")
    a("s_endpgm")

def main():
    ref = open(f"cdna_kernels/{NAME}.s.ref").read().split("\n")
    head = [l for l in ref if l.startswith(";") and "@launch" not in l and not l.startswith("; Override") and not l.startswith("; grid=")]
    out = "\n".join(head) + "\n"
    if opt("aslist", 0): out += f"; @launch kernel={KN} grid=(256,1,1) block=(512,1,1) lds={LDS}\n"
    else: out += f"; @launch grid=(256,1,1) block=(512,1,1) lds={LDS}\n"
    out += '.amdgcn_target "amdgcn-amd-amdhsa--gfx950"\n.text\n'
    a = Asm(); gen(a)
    for b in a.check_edges(): print("EDGE HAZARD", b, file=sys.stderr)
    out += f".globl {KN}\n.p2align 8\n.type {KN},@function\n" + a.text()
    out += f""".section .rodata,"a"
.p2align 6
.amdhsa_kernel {KN}
  .amdhsa_next_free_vgpr 256
  .amdhsa_next_free_sgpr 102
  .amdhsa_accum_offset 256
  .amdhsa_group_segment_fixed_size 0
  .amdhsa_kernarg_size 88
  .amdhsa_user_sgpr_count 2
  .amdhsa_user_sgpr_kernarg_segment_ptr 1
  .amdhsa_system_sgpr_workgroup_id_x 1
  .amdhsa_float_denorm_mode_32 3
.end_amdhsa_kernel
"""
    open(sys.argv[1], "w").write(out)
main()
```

```python
import sys, math, struct
from asmlib import Asm

NAME = "gather_scatter__cheap_equivariant_egnn__graph"
KN = NAME + "_kernel"
def f32bits(x): return struct.unpack("<I", struct.pack("<f", x))[0]
NLOG2E = f32bits(-math.log2(math.e)); NLN2 = f32bits(-math.log(2.0))
OPT = dict(a.split("=") for a in sys.argv[2:]) if len(sys.argv) > 2 else {}
def opt(k, d): return type(d)(OPT.get(k, d))
STAMP = opt("stamp", 0)

CH = 3128; CHB = CH * 12; CHS = opt('chs', 37632); NQ = CH // 4; NQ_LAST = (800000 - 255 * CH) // 4
WS_GRAN = 0x00A00000; WS_POSF = 0x00B00000; WS_ACC = 0x01000000; WS_STAMP = 0x08000000
GMUL = 10737; GMAGIC = 51201995
L_CUR = 0; L_FLAG = 64; L_EPOCH = 68; L_TBL = 0x100; L_IMG = 0x1100; L_GB = 0x5100
L_WH = L_GB + 8 * 8192
L_REC = L_WH + 16384
PADO = 128 * 98 + 384 * 16; PLANE = 18944; PO1 = PLANE // 256; PO2 = 2 * PO1
L_PAD = L_REC + PADO
LDS = L_REC + 3 * PLANE
L_STG = L_GB; L_HIST = L_GB + 37632; L_OFFS = L_HIST + 1024; L_WF = L_GB + 40960
assert LDS <= 163840 and PADO + 128 <= PLANE and L_GB % 256 == 0
PADW = (32767 << 7) | (7 << 3)
HUGE = 0x40000000
TAGK = 0x9E3779B9

D0 = 16; D1 = 32; T = 48; MP = 64; A2 = 72; A1 = 80; XR = 96
W2F = 100; BXA0 = 132; BXA1 = 136; BXB0 = 140; BXB1 = 144
ACCA0 = 148; ACCA1 = 164; ACCB0 = 180; ACCB1 = 196
COLC = 212; RDA = 216; TRA = 220; IMGB = 221; LANEQ = 222; LANEE = 223
WQ = 224; W2E = 228; ADE = 230; PS = 232; CURB = 235; HA = 236; PA = 237; PV = 238; CURL = 239
PD = 240; WX0 = 243; VAL = 244; IMGA = 246; S8 = 247; S16 = 248; ADQ = 249
ZERO = 250; D2 = 252; PIX = 253; WX1 = 254
LANE = 1; SW = 2; I12 = 3; I12H = 4; BPX = 5; FOUR = 6; TMP = 7; HB = 8
S_H = 8; S_POSF = 12; S_REC = 16; S_POS = 20; S_OUT = 24; S_ACC = 28; S_MASK = 32; S_HJ = 32
S_W = 64; S_B = 65; S_NA = 66; S_NB = 67; S_CA = 68; S_CB = 69
S_LO = 70; S_HI = 72; S_GM = 74; S_TBL = 75; S_TBLA = 76; S_TBLB = 77
S_NEXT = 78; S_END = 79; S_JUMP = 80; S_END2 = 81; S_PADB = 82; S_PADE = 83
S_REM = 84; S_TB = 85; S_GB = 86; S_WIN = 87; S_ROUND = 88; S_MORE = 89; S_T0 = 90; S_T1 = 91; S_T3 = 92
S_SEG = 93; S_ACCO = 94; S_FLIP = 95; S_WX = 96; S_SUB = 100; S_SPIN = 101; S_PEND = 78; S_LEFT = 80

def vr(b, n): return f"v[{b}:{b+n-1}]"
def sr(b, n): return f"s[{b}:{b+n-1}]"
def srd(a, d, lo, hi, off, num, stride=0):
    if off > 0:
        a(f"s_add_u32 s{d}, s{lo}, {hex(off)}"); a(f"s_addc_u32 s{d+1}, s{hi}, 0")
    elif off < 0:
        a(f"s_sub_u32 s{d}, s{lo}, {hex(-off)}"); a(f"s_subb_u32 s{d+1}, s{hi}, 0")
    else:
        a(f"s_mov_b32 s{d}, s{lo}"); a(f"s_mov_b32 s{d+1}, s{hi}")
    if stride: a(f"s_or_b32 s{d+1}, s{d+1}, {hex(stride << 16)}")
    a(f"s_mov_b32 s{d+2}, {hex(num)}"); a(f"s_mov_b32 s{d+3}, 0x20000")
def stamp(a, idx, cyc=False):
    if not STAMP: return
    if STAMP == 4:
        if cyc or idx in (0, 18, 20, 21, 22): return
        idx = {16: 10, 17: 11, 19: 12}.get(idx, idx)
    a(f"{'s_memtime' if cyc else 's_memrealtime'} s[6:7]"); a("s_waitcnt lgkmcnt(0)"); a(f"v_writelane_b32 v255, s6, {idx}")
def stamp_out(a):
    if not STAMP: return
    if STAMP == 4:
        a("s_mov_b64 exec, -1")
        a("s_load_dwordx2 s[32:33], s[0:1], 72"); a("s_waitcnt lgkmcnt(0)")
        srd(a, 36, 32, 33, 0, 256)
        a(f"buffer_load_dword v17, v{ZERO}, s[36:39], 0 offen sc0 sc1")
        a("v_readlane_b32 s4, v255, 9"); a("v_readlane_b32 s5, v255, 10"); a("v_readlane_b32 s6, v255, 6")
        a("s_waitcnt vmcnt(0)")
        a("v_readfirstlane_b32 s7, v17")
        a("s_lshl_b32 s32, s7, 1"); a("s_add_u32 s32, s32, 10000")
        a("s_sub_u32 s4, s32, s4"); a("s_sub_u32 s5, s32, s5"); a("s_sub_u32 s6, s32, s6")
        a("v_writelane_b32 v255, s4, 13"); a("v_writelane_b32 v255, s5, 14"); a("v_writelane_b32 v255, s6, 15")
        a("v_sub_u32 v255, v255, v17")
        a(f"v_lshlrev_b32 v16, 2, v{LANE}")
        a("s_mov_b64 exec, 0xfffe")
        a("buffer_atomic_umax v255, v16, s[36:39], 0 offen sc1")
        return
    a("s_mov_b64 exec, -1")
    a("s_load_dwordx2 s[32:33], s[0:1], 80"); a("s_waitcnt lgkmcnt(0)")
    srd(a, 36, 32, 33, WS_STAMP, 1 << 22)
    a("s_lshl_b32 s32, s2, 4"); a(f"s_add_u32 s32, s32, s{S_W}"); a("s_lshl_b32 s32, s32, 8")
    a(f"v_lshlrev_b32 v16, 2, v{LANE}")
    a("buffer_store_dword v255, v16, s[36:39], s32 offen")

def mfma32(d, a_, b_, c=None):
    return f"v_mfma_f32_32x32x16_bf16 {vr(d,16)}, {vr(a_,4)}, {vr(b_,4)}, {'0' if c == 0 else vr(d,16)}"
def silu_main(d):
    if opt("nopk", 0):
        m = [f"v_exp_f32 v{T+j}, v{d+j}" for j in range(16)]
        m += [f"v_add_f32 v{T+2*j}, 1.0, v{T+2*j}\nv_add_f32 v{T+2*j+1}, 1.0, v{T+2*j+1}" for j in range(8)]
        m += [f"v_rcp_f32 v{T+j}, v{T+j}" for j in range(16)]
        m += [f"v_mul_f32 v{T+2*j}, v{T+2*j}, v{d+2*j}\nv_mul_f32 v{T+2*j+1}, v{T+2*j+1}, v{d+2*j+1}" for j in range(8)]
        m += [f"v_cvt_pk_bf16_f32 v{MP+j}, v{T+2*j}, v{T+2*j+1}" for j in range(8)]
        return m
    m = [f"v_exp_f32 v{T+j}, v{d+j}" for j in range(16)]
    m += [f"v_pk_add_f32 {vr(T+2*j,2)}, {vr(T+2*j,2)}, 1.0 op_sel_hi:[1,0]" for j in range(8)]
    m += [f"v_rcp_f32 v{T+j}, v{T+j}" for j in range(16)]
    m += [f"v_pk_mul_f32 {vr(T+2*j,2)}, {vr(T+2*j,2)}, {vr(d+2*j,2)}" for j in range(8)]
    m += [f"v_cvt_pk_bf16_f32 v{MP+j}, v{T+2*j}, v{T+2*j+1}" for j in range(8)]
    return m
def emit(a, main, ins):
    for t in ins.get(-1, []): a(t)
    for i, m in enumerate(main):
        a(m)
        for t in ins.get(i, []): a(t)
def gstate(isA=True):
    o = [f"s_add_u32 s{S_NEXT}, s{S_NEXT}, 128", f"s_cmp_eq_u32 s{S_NEXT}, s{S_END}",
         f"s_cselect_b32 s{S_NEXT}, s{S_JUMP}, s{S_NEXT}", f"s_cselect_b32 s{S_END}, s{S_END2}, s{S_END}"]
    if isA: o += [f"s_cselect_b32 s{S_JUMP}, s{S_PADB}, s{S_JUMP}", f"s_cselect_b32 s{S_END2}, s{S_PADE}, s{S_END2}"]
    return o
def g_reads(e, wq=WQ, isA=True):
    return [f"v_add_u32 v{ADQ}, s{S_NEXT}, v{LANEQ}", f"v_add_u32 v{ADE+e}, s{S_NEXT}, v{LANEE}",
            f"ds_read_b128 {vr(wq,4)}, v{ADQ}", f"ds_read_b32 v{W2E+e}, v{ADE+e}"] + gstate(isA)
def g_addr(wq=WQ): return [f"v_and_or_b32 v{wq+j}, v{wq+j}, s{S_GM}, v{COLC+j}" for j in range(4)]
def g_m0(e): return [f"s_add_u32 m0, s{S_GB}, {e*4096}"]
def g_dma(wq=WQ): return [f"buffer_load_dwordx4 v{wq+j}, {sr(S_HJ+4*j,4)}, 0 offen offset:{j*1024} {opt('gp', '')} lds" for j in range(4)]
def pos_gather(): return f"buffer_load_dwordx3 {vr(PS,3)}, v{PIX}, {sr(S_POSF,4)}, 0 idxen sc1"
def e_head(e):
    return [f"v_and_b32 v{S8}, 0x38, v{W2E+e}", f"v_lshl_add_u32 v{S16}, v{S8}, 1, s{S_TBL}", f"ds_read_b96 {vr(PD,3)}, v{S16} offset:128",
            f"v_bfe_u32 v{PIX}, v{W2E+1-e}, 7, 15"]
def e_sect(e, zero=True):
    o = [f"v_sub_f32 v{PD+k}, v{PD+k}, v{PS+k}" for k in range(3)]
    o += [f"v_cvt_pk_bf16_f32 v{VAL}, 1.0, v{PD}", f"v_cvt_pk_bf16_f32 v{VAL+1}, v{PD+1}, v{PD+2}",
          f"s_mov_b64 exec, {sr(S_LO,2)}", f"ds_read_b128 {vr(XR,4)}, v{S16}", f"s_mov_b64 exec, {sr(S_HI,2)}",
          f"v_dot2_f32_bf16 v{D2}, v{VAL}, v{VAL}, -1.0", f"v_dot2_f32_bf16 v{D2}, v{VAL+1}, v{VAL+1}, v{D2}",
          f"ds_read2st64_b32 {vr(XR,2)}, v{ADE+e} offset0:{PO1} offset1:{PO2}"]
    if zero: o += [f"ds_write_b64 v{IMGA}, {vr(ZERO,2)}"]
    o += [f"v_add_u32 v{IMGA}, v{S8}, v{IMGB}", f"ds_write_b64 v{IMGA}, {vr(VAL,2)}", pos_gather(),
          f"v_cvt_pk_bf16_f32 v{XR+2}, v{D2}, v{D2}", "s_mov_b64 exec, -1"]
    return o
def a1_reads(e): return [f"ds_read_b128 {vr(A1+4*s,4)}, v{RDA+s} offset:{e*4096}" for s in range(4)]
def tr_reads(): return [f"ds_read_b64_tr_b16 {vr(A2+2*k,2)}, v{TRA} offset:{k*512}" for k in range(4)]

OP = opt('op', 'nt').replace('+', ' ')
NPF = opt('npf', 0)
PRIO = opt("prio", 2)
_lbl = [0]
def phase_x(a, p, acc1, bx1, isA):
    e = 1 - p
    ins = {}; pre = []
    if isA:
        pre += [f"s_sub_u32 s{S_REM}, s{S_REM}, 1", f"s_cmp_eq_u32 s{S_REM}, 0", f"s_cselect_b32 s{S_TBL}, s{S_TBLB}, s{S_TBLA}"]
        if PRIO == 2:
            _lbl[0] += 1; L = f"KP{_lbl[0]}"
            ins[1] = [f"s_cmp_lg_u32 s{S_REM}, s{S_FLIP}", f"s_cbranch_scc1 {L}", "s_setprio 1", f"{L}:"]
    if STAMP == 2:
        pre += ["s_memtime s[6:7]", "s_waitcnt lgkmcnt(0)", "s_mov_b32 m0, s5", "s_add_u32 s5, s5, 1", "v_writelane_b32 v255, s6, m0"]
    if STAMP == 3:
        pre += ["s_memtime s[6:7]", "s_memrealtime s[52:53]", "s_waitcnt lgkmcnt(0)", "s_mov_b32 m0, s5", "s_add_u32 s5, s5, 1", "v_writelane_b32 v255, s6, m0",
                "s_mov_b32 m0, s5", "s_add_u32 s5, s5, 1", "v_writelane_b32 v255, s52, m0"]
    ins[-1] = pre
    ins[0] = [mfma32(acc1, A2, MP)] + e_head(e)
    ins[3] = [mfma32(acc1, A2+4, MP+4)]
    tr = tr_reads()
    ins[4] = tr[:2]; ins[5] = tr[2:]
    ins[6] = [mfma32(D1, XR, bx1, 0)]
    ins[9] = [mfma32(D1, A1, W2F+16)]
    ins[12] = [mfma32(D1, A1+4, W2F+20)]
    ins[17] = ["s_waitcnt vmcnt(4) lgkmcnt(4)"] + e_sect(e)
    ins[20] = g_reads(e, isA=isA)
    ins[24] = [mfma32(D1, A1+8, W2F+24)]
    ins[27] = [mfma32(D1, A1+12, W2F+28)]
    ins[28] = a1_reads(e)
    if opt("qtest", 0):
        ins[9] = [mfma32(D1, W2F, A1+8)]; ins[12] = [mfma32(D1, W2F+4, A1+12)]
        del ins[24]; del ins[27]
        ins[13] = [f"ds_read_b64_tr_b16 {vr(A1+8+2*k,2)}, v{RDA+k} offset:{e*4096}" for k in range(4)]
        ins[28] = [f"ds_read_b64_tr_b16 {vr(A1+2*k,2)}, v{RDA+k} offset:{e*4096+64}" for k in range(4)]
        ins[17][0] = "s_waitcnt vmcnt(4) lgkmcnt(8)"
    emit(a, silu_main(D0), ins)

def phase_y(a, p, acc0, bx0):
    e = 1 - p
    ins = {}
    ins[-1] = ["s_waitcnt lgkmcnt(10)"]
    ins[0] = [mfma32(acc0, A2, MP)] + g_m0(e)
    ins[1] = ["s_waitcnt lgkmcnt(5)"] + g_addr()
    ins[3] = [mfma32(acc0, A2+4, MP+4)]
    gd = g_dma()
    ins[6] = ["s_waitcnt lgkmcnt(0)", mfma32(D0, A1, W2F, 0)]
    ins[7] = gd[0:1]; ins[8] = gd[1:2]
    ins[9] = [mfma32(D0, A1+4, W2F+4)]
    ins[10] = gd[2:3]; ins[11] = gd[3:4]
    ins[12] = [mfma32(D0, A1+8, W2F+8)]
    ins[24] = [mfma32(D0, A1+12, W2F+12)]
    ins[27] = [mfma32(D0, XR, bx0)]
    if opt("qtest", 0):
        ins[6] = ["s_waitcnt lgkmcnt(0)", mfma32(D0, W2F, A1, 0)]; ins[9] = [mfma32(D0, W2F+4, A1+4)]; ins[12] = [mfma32(D0, XR, bx0)]
        del ins[24]; del ins[27]
    emit(a, silu_main(D1), ins)

def node_sel(a, cond, vnode, vcnt, vtmp):
    a(cond)
    a(f"v_mov_b32 v{vnode}, s{S_NB}"); a(f"v_mov_b32 v{vcnt}, s{S_NA}")
    a(f"v_cndmask_b32 v{vnode}, v{vnode}, v{vcnt}, vcc")
    a(f"v_mov_b32 v{vcnt}, s{S_CB}"); a(f"v_mov_b32 v{vtmp}, s{S_CA}")
    a(f"v_cndmask_b32 v{vcnt}, v{vcnt}, v{vtmp}, vcc")

def cursor_init(a):
    a(f"v_lshlrev_b32 v13, 2, v{LANE}")
    a("s_mov_b64 exec, 0x1ffff"); a(f"ds_write_b32 v13, v{CURB}"); a("s_mov_b64 exec, -1")

def gen(a):
    a(f"{KN}:")
    a("s_cmp_ge_u32 s2, 256")
    a("s_cbranch_scc1 K_END")
    a("s_load_dwordx16 s[32:47], s[0:1], 0")
    a("s_load_dwordx4 s[48:51], s[0:1], 64")
    a("s_load_dwordx2 s[52:53], s[0:1], 80")
    if opt("cpf", 0) == 2:
        a("s_getpc_b64 s[4:5]")
        a("K_PC:")
        a("s_mov_b32 s3, K_END-K_PC-16")
        a("v_lshlrev_b32 v8, 4, v0")
        for k in range(2):
            a(f"v_add_u32 v12, {8192*k}, v8"); a("v_min_u32 v12, s3, v12")
            a(f"global_load_dwordx4 {vr(PD,4)}, v12, s[4:5]")
    stamp(a, 0); stamp(a, 14, True)
    a("s_cmp_eq_u32 s2, 255")
    a(f"s_movk_i32 s4, {NQ - 512}")
    a(f"s_cselect_b32 s4, {NQ_LAST - 512}, s4")
    a(f"s_mul_i32 s3, s2, {CH*4}")
    a("s_lshl_b32 s5, s3, 1")
    a("v_lshlrev_b32 v8, 4, v0")
    a("v_lshlrev_b32 v9, 5, v0")
    a("v_cmp_gt_u32 s[62:63], s4, v0")
    a(f"v_mov_b32 v12, {hex(HUGE)}")
    a("v_add_u32 v10, 0x2000, v8")
    a("v_add_u32 v11, 0x4000, v9")
    a("v_cndmask_b32 v10, v12, v10, s[62:63]")
    a("v_cndmask_b32 v11, v12, v11, s[62:63]")
    a("v_and_b32 v12, 0xff, v0")
    a("v_lshlrev_b32 v12, 2, v12")
    a(f"v_mov_b32 v{ZERO}, 0")
    a(f"ds_write_b32 v12, v{ZERO} offset:{L_HIST}")
    a("s_waitcnt lgkmcnt(0)")
    srd(a, 8, 40, 41, 0, 3200000)
    srd(a, 12, 38, 39, 0, 3200000)
    srd(a, 16, 36, 37, 0, 6400000)
    nt = " nt" if opt("k1nt", 1) else ""
    a(f"buffer_load_dwordx4 v[16:19], v8, s[8:11], s3 offen{nt}")
    a(f"buffer_load_dwordx4 v[20:23], v10, s[8:11], s3 offen{nt}")
    if opt("dstfirst", 0): a("s_barrier")
    a(f"buffer_load_dwordx4 v[24:27], v8, s[12:15], s3 offen{nt}")
    a(f"buffer_load_dwordx4 v[28:31], v10, s[12:15], s3 offen{nt}")
    a(f"buffer_load_dwordx4 v[32:35], v9, s[16:19], s5 offen{nt}")
    a(f"buffer_load_dwordx4 v[36:39], v9, s[16:19], s5 offen offset:16{nt}")
    a(f"buffer_load_dwordx4 v[40:43], v11, s[16:19], s5 offen{nt}")
    a(f"buffer_load_dwordx4 v[44:47], v11, s[16:19], s5 offen offset:16{nt}")
    NC = 0
    if opt("cpf", 0) == 1:
        a("s_getpc_b64 s[4:5]")
        a("K_PC:")
        a("s_mov_b32 s3, K_END-K_PC-16")
        for k in range(2):
            a(f"v_add_u32 v12, {8192*k}, v8"); a("v_min_u32 v12, s3, v12")
            a(f"global_load_dwordx4 {vr(PD,4)}, v12, s[4:5]")
        NC = 2
    if not opt("dstfirst", 0): a("s_barrier")
    a(f"v_and_b32 v{LANE}, 63, v0")
    a("v_lshrrev_b32 v12, 6, v0")
    a(f"v_readfirstlane_b32 s{S_W}, v12")
    RW = 148
    srd(a, S_ACC, 50, 51, 0, 256)
    a("v_mov_b32 v12, 0")
    a("s_cmp_lg_u32 s2, 0"); a("s_cbranch_scc1 K_NOEP")
    a(f"s_cmp_lg_u32 s{S_W}, 7"); a("s_cbranch_scc1 K_NOEP")
    a("s_memrealtime s[4:5]")
    a("s_waitcnt lgkmcnt(0)")
    a("s_or_b32 s4, s4, 1")
    a("v_mov_b32 v13, s4")
    a("s_mov_b64 exec, 1")
    a(f"buffer_store_dword v13, v12, {sr(S_ACC,4)}, 0 offen sc0 sc1")
    a("s_mov_b64 exec, -1")
    a("K_NOEP:")
    a(f"v_mov_b32 v{ZERO+1}, 0")
    a("s_and_b32 s3, s2, 7"); a("s_lshl_b32 s3, s3, 5")
    a(f"s_lshr_b32 s{S_B}, s2, 3"); a(f"s_add_u32 s{S_B}, s{S_B}, s3")
    a(f"s_lshl_b32 s4, s{S_B}, 20"); a(f"s_add_u32 s4, s4, {GMUL-1}")
    a(f"s_mov_b32 s7, {GMAGIC}")
    a(f"v_lshl_add_u32 v12, v{LANE}, 16, s4")
    a("v_add_u32 v13, 0x10000, v12")
    a("v_mul_hi_u32 v12, v12, s7"); a("v_mul_hi_u32 v13, v13, s7")
    a("v_lshrrev_b32 v12, 7, v12"); a("v_lshrrev_b32 v13, 7, v13")
    a("v_min_u32 v13, 25000, v13")
    a(f"s_lshl_b32 s4, s{S_W}, 1"); a("s_add_u32 s5, s4, 1")
    a("v_readlane_b32 s3, v12, 0")
    a(f"v_readlane_b32 s{S_NA}, v12, s4"); a(f"v_readlane_b32 s{S_NB}, v12, s5"); a(f"v_readlane_b32 s{S_CB}, v13, s5")
    a(f"v_mul_u32_u24 v14, 384, v{LANE}")
    a("s_lshl_b32 s3, s3, 7"); a(f"s_sub_u32 s3, {L_REC}, s3")
    a(f"v_lshl_add_u32 v{CURB}, v12, 7, v14"); a(f"v_add_u32 v{CURB}, s3, v{CURB}")
    a(f"v_lshl_add_u32 v{CURL}, v13, 7, v14"); a("s_add_u32 s3, s3, 384"); a(f"v_add_u32 v{CURL}, s3, v{CURL}")
    a(f"v_cmp_gt_u32 vcc, 16, v{LANE}")
    a(f"s_sub_u32 s{S_CB}, s{S_CB}, s{S_NB}"); a(f"s_sub_u32 s{S_CA}, s{S_NB}, s{S_NA}")
    a(f"v_cndmask_b32 v{CURB}, 0, v{CURB}, vcc")
    a(f"v_and_b32 v9, 31, v{LANE}")
    a(f"v_lshrrev_b32 v10, 5, v{LANE}")
    a(f"v_lshlrev_b32 v11, 4, v{LANE}")
    a(f"v_and_b32 v12, 7, v{LANE}")
    node_sel(a, f"v_cmp_gt_u32 vcc, 8, v{LANE}", 13, 14, 15)
    a("v_cmp_lt_u32 vcc, v12, v14")
    a(f"v_cmp_gt_u32 s[60:61], 16, v{LANE}")
    a("v_add_u32 v13, v13, v12"); a("v_mov_b32 v14, 0x7fff")
    a("s_and_b64 vcc, vcc, s[60:61]")
    a(f"v_cndmask_b32 v{PIX}, v14, v13, vcc")
    a(f"v_mul_u32_u24 v{D2}, 6, v{PIX}")
    srd(a, S_POS, 34, 35, 0, 150000)
    N1 = NC
    a("v_and_b32 v12, 3, v9"); a("v_bfe_u32 v13, v9, 3, 1"); a("v_lshl_or_b32 v12, v13, 2, v12")
    node_sel(a, "v_cmp_gt_u32 vcc, 16, v9", 13, 14, 15)
    a("v_and_b32 v15, 4, v9"); a("v_lshl_or_b32 v15, v15, 1, v12")
    a("v_cmp_lt_u32 vcc, v15, v14")
    a("v_add_u32 v13, v13, v12"); a("v_lshlrev_b32 v13, 7, v13"); a("v_lshl_add_u32 v13, v10, 4, v13")
    a(f"v_mov_b32 v14, {hex(HUGE)}")
    a(f"v_cndmask_b32 v{S8}, v14, v13, vcc")
    srd(a, S_H, 32, 33, 0, 3200000)
    srd(a, 56, 42, 43, 0, 133 * 128)
    srd(a, 40, 46, 47, 0, 128 * 128)
    srd(a, S_POSF, 52, 53, WS_POSF, 25000, stride=16)
    srd(a, S_REC, 52, 53, 0, WS_GRAN + 256 * 4096)
    if opt("tlb", 0):
        srd(a, S_OUT, 48, 49, 0, 3350000)
        srd(a, S_WX, 52, 53, 0, WS_POSF + 400000)
        a(f"s_cmp_lg_u32 s{S_W}, 5"); a("s_cbranch_scc1 K_NOTLB")
        a(f"v_lshlrev_b32 v12, {opt('tlb', 0)}, v{LANE}")
        a(f"buffer_load_dword v{PD}, v12, {sr(S_WX,4)}, 0 offen")
        a(f"buffer_load_dword v{PD}, v12, {sr(S_H,4)}, 0 offen")
        a(f"buffer_load_dword v{PD}, v12, {sr(S_OUT,4)}, 0 offen")
        a("K_NOTLB:")
    a("v_mov_b32 v14, 12")
    a(f"s_mul_i32 s54, s2, {CHS}")
    for g in range(2):
        a(f"s_waitcnt vmcnt({N1 + 7 - g})")
        if g == 0: stamp(a, 1)
        if g == 1: a("s_mov_b64 exec, s[62:63]")
        for k in range(4):
            i = 4*g + k
            a(f"v_mul_u32_u24 v{48+i}, {hex(GMUL)}, v{16+i}")
            a(f"v_lshrrev_b32 v{56+i}, 18, v{48+i}")
            a(f"v_and_b32 v{56+i}, 0x3fc, v{56+i}")
            a(f"ds_add_rtn_u32 v{64+i}, v{56+i}, v14 offset:{L_HIST}")
    a("s_mov_b64 exec, -1")
    for j in range(3): a(f"buffer_load_ushort v{RW+8+j}, v{D2}, {sr(S_POS,4)}, 0 offen offset:{2*j}")
    a(f"buffer_load_dword v{RW+12}, v{ZERO}, {sr(S_ACC,4)}, 0 offen sc0 sc1")
    for s in range(4): a(f"buffer_load_dwordx4 {vr(A1+4*s,4)}, v{S8}, {sr(S_H,4)}, 0 offen offset:{32*s}")
    N1 += 8
    if opt("wpf", 1):
        a("s_lshr_b32 s4, s2, 3"); a("s_lshl_b32 s4, s4, 10"); a("s_and_b32 s5, s4, 0x3fff")
        a(f"s_cmp_lg_u32 s{S_W}, 6"); a("s_cbranch_scc1 K_NOWPF")
        a(f"buffer_load_dwordx4 {vr(PD,4)}, v11, s[56:59], s4 offen")
        a(f"buffer_load_dwordx4 {vr(PD,4)}, v11, s[40:43], s5 offen")
        a("K_NOWPF:")
    a("s_mov_b32 s6, 400016")
    for i in range(8):
        a(f"v_and_b32 v{16+i}, 0xffff, v{48+i}")
        a(f"v_mul_hi_u32 v{16+i}, v{16+i}, s6")
        a(f"v_bfe_u32 v{48+i}, v{48+i}, 16, 4")
        a(f"v_lshlrev_b32 v{16+i}, 3, v{16+i}")
        a(f"v_lshl_or_b32 v{16+i}, v{48+i}, 24, v{16+i}")
    a("s_waitcnt lgkmcnt(0)")
    a("s_barrier")
    stamp(a, 2)
    a(f"ds_read_b128 v[72:75], v11 offset:{L_HIST}")
    a(f"s_lshl_b32 s4, s{S_W}, 8")
    a(f"v_lshl_add_u32 v15, v{LANE}, 2, s4")
    a(f"ds_read_b32 v76, v15 offset:{L_HIST}")
    a("s_waitcnt lgkmcnt(1)")
    a("v_add_u32 v49, v72, v73"); a("v_add_u32 v50, v49, v74"); a("v_add_u32 v51, v50, v75")
    a("v_mov_b32 v52, v51")
    for sh in (1, 2, 4, 8): a(f"v_add_u32_dpp v52, v52, v52 row_shr:{sh} row_mask:0xf bank_mask:0xf bound_ctrl:0")
    a("v_add_u32_dpp v52, v52, v52 row_bcast:15 row_mask:0xa bank_mask:0xf")
    a("v_add_u32_dpp v52, v52, v52 row_bcast:31 row_mask:0xc bank_mask:0xf")
    a("v_sub_u32 v52, v52, v51"); a("v_add_u32 v53, v52, v72"); a("v_add_u32 v54, v52, v49"); a("v_add_u32 v55, v52, v50")
    a(f"ds_write_b128 v11, v[52:55] offset:{L_OFFS}")
    a("s_waitcnt lgkmcnt(0)")
    for i in range(8): a(f"ds_read_b32 v{48+i}, v{56+i} offset:{L_OFFS}")
    a(f"ds_read_b32 v77, v15 offset:{L_OFFS}")
    a(f"s_waitcnt vmcnt({N1 + 4})")
    for i in range(8): a(f"v_lshl_or_b32 v{16+i}, v{24+i}, 7, v{16+i}")
    a("s_waitcnt lgkmcnt(0)")
    for i in range(8): a(f"v_add_u32 v{48+i}, v{48+i}, v{64+i}")
    a("v_lshl_or_b32 v76, v76, 16, v77")
    for g in range(2):
        if g == 1: a("s_mov_b64 exec, s[62:63]")
        for k in range(4): a(f"ds_write_b32 v{48+4*g+k}, v{16+4*g+k} offset:{L_STG+8}")
        for k in range(4): a(f"v_add_u32 v{56+4*g+k}, {L_STG}, v{48+4*g+k}")
        a(f"s_waitcnt vmcnt({N1 + 2 - 2*g})")
        for k in range(4):
            i = 4*g + k
            a(f"ds_write2_b32 v{56+i}, v{32+2*i}, v{33+2*i} offset0:0 offset1:1")
    a("s_mov_b64 exec, -1")
    N2 = 9
    a(f"v_cmp_gt_u32 vcc, {CHS//16 - 2048}, v0")
    a(f"v_mov_b32 v12, {hex(HUGE)}")
    a("v_cndmask_b32 v12, v12, v8, vcc")
    a("s_waitcnt vmcnt(5)")
    for j in range(3): a(f"v_lshlrev_b32 v{68+j}, 16, v{RW+8+j}")
    a("v_mov_b32 v71, 0")
    a("s_mov_b64 exec, 0xffff")
    a(f"buffer_store_dwordx4 v[68:71], v{PIX}, {sr(S_POSF,4)}, 0 idxen sc1")
    a("s_mov_b64 exec, -1")
    a("s_movk_i32 s4, 0x2000")
    a(f"buffer_load_dwordx4 {vr(RW,4)}, v8, {sr(56,4)}, s4 offen")
    a("s_movk_i32 s4, 0x4000")
    a(f"buffer_load_dwordx4 {vr(RW+4,4)}, v11, {sr(56,4)}, s4 offen")
    a(f"s_lshl_b32 s5, s{S_W}, 10")
    a(f"s_add_u32 m0, s5, {L_WF + 8192}"); a("s_nop 0")
    a(f"buffer_load_dwordx4 v8, {sr(56,4)}, 0 offen lds")
    a(f"s_add_u32 m0, s5, {L_WH}"); a("s_nop 0")
    a(f"buffer_load_dwordx4 v8, s[40:43], 0 offen lds")
    a(f"s_add_u32 m0, s5, {L_WH + 8192}"); a("s_movk_i32 s4, 0x2000")
    a(f"buffer_load_dwordx4 v8, s[40:43], s4 offen lds")
    stamp(a, 3)
    a("s_waitcnt lgkmcnt(0)")
    a("s_barrier")
    for j in range(5): a(f"ds_read_b128 {vr(16+4*j,4)}, v8 offset:{L_STG + 8192*j}")
    for j in range(5):
        a(f"s_waitcnt lgkmcnt({4-j})")
        a(f"buffer_store_dwordx4 {vr(16+4*j,4)}, v{8 if j < 4 else 12}, {sr(S_REC,4)}, s54 offen {opt('stp', 'sc1').replace('+', ' ')}")
        if j < 4: a("s_add_u32 s54, s54, 8192")
    stamp(a, 4)
    srd(a, S_OUT, 48, 49, 0, 3350000)
    srd(a, S_WX, 44, 45, 0, 128)
    cursor_init(a)
    a(f"s_mov_b32 s{S_LO}, -1"); a(f"s_mov_b32 s{S_LO+1}, 0"); a(f"s_mov_b32 s{S_HI}, 0"); a(f"s_mov_b32 s{S_HI+1}, -1")
    a(f"s_mov_b32 s{S_GM}, 0x3fff80")
    a(f"s_lshl_b32 s{S_TBLA}, s{S_W}, 9"); a(f"s_add_u32 s{S_TBLA}, s{S_TBLA}, {L_TBL}"); a(f"s_add_u32 s{S_TBLB}, s{S_TBLA}, 256")
    a(f"s_lshl_b32 s{S_GB}, s{S_W}, 13"); a(f"s_add_u32 s{S_GB}, s{S_GB}, {L_GB}")
    a(f"s_mov_b32 s{S_WIN}, {32*12}"); a(f"s_mov_b32 s{S_ROUND}, 1"); a(f"s_mov_b32 s{S_PADB}, {L_PAD}"); a(f"s_mov_b32 s{S_PADE}, {L_PAD+128}")
    a(f"s_lshl_b32 s{S_ACCO}, s2, 3"); a(f"s_add_u32 s{S_ACCO}, s{S_ACCO}, s{S_W}"); a(f"s_lshl_b32 s{S_ACCO}, s{S_ACCO}, 14")
    a(f"s_mul_i32 s{S_SEG}, s{S_W}, {32*CHS}")
    a(f"v_mov_b32 v{FOUR}, 4")
    a(f"v_mul_u32_u24 v{I12}, 12, v9"); a(f"v_mul_u32_u24 v{I12H}, {CHS}, v10"); a(f"v_add_u32 v{I12H}, v{I12H}, v{I12}")
    a(f"v_lshlrev_b32 v{BPX}, 2, v10")
    a(f"s_lshl_b32 s4, s{S_W}, 11"); a(f"s_add_u32 s4, s4, {L_IMG}")
    for j in range(4): a(f"v_mov_b32 v{48+j}, 0")
    a("v_add_u32 v12, s4, v11")
    a("ds_write_b128 v12, v[48:51]"); a("ds_write_b128 v12, v[48:51] offset:1024")
    a(f"v_lshl_add_u32 v{IMGB}, v9, 6, s4")
    a(f"v_bfe_u32 v12, v{LANE}, 2, 2"); a("v_lshl_add_u32 v12, v10, 2, v12"); a("v_lshlrev_b32 v12, 6, v12")
    a(f"v_bfe_u32 v13, v{LANE}, 4, 1"); a("v_lshl_add_u32 v12, v13, 5, v12")
    a(f"v_and_b32 v13, 3, v{LANE}"); a("v_lshl_add_u32 v12, v13, 3, v12")
    a(f"v_add_u32 v{TRA}, s4, v12")
    a(f"v_and_b32 v12, 7, v{LANE}"); a("v_lshrrev_b32 v13, 1, v12"); a("v_and_b32 v14, 1, v12"); a("v_lshlrev_b32 v14, 4, v14")
    a("v_mov_b32 v60, 0x3f80"); a("v_lshlrev_b32 v14, v14, v60")
    for j in range(4):
        a(f"v_cmp_eq_u32 vcc, {j}, v13"); a(f"v_cndmask_b32 v{48+j}, 0, v14, vcc")
    a(f"v_bfe_u32 v13, v{LANE}, 3, 1"); a("v_lshlrev_b32 v13, 8, v13"); a("v_lshl_add_u32 v13, v12, 4, v13")
    a(f"v_add_u32 v{TMP}, s{S_TBLA}, v13")
    a("s_mov_b64 exec, 0xffff"); a(f"ds_write_b128 v{TMP}, v[48:51]"); a(f"ds_write_b128 v{TMP}, v[68:71] offset:128"); a("s_mov_b64 exec, -1")
    a(f"v_and_b32 v12, 7, v{LANE}"); a(f"v_bfe_u32 v13, v{LANE}, 4, 1"); a("v_lshlrev_b32 v13, 2, v13"); a("v_xor_b32 v12, v12, v13")
    for j in range(4):
        a(f"v_xor_b32 v13, {j}, v12"); a(f"v_lshlrev_b32 v{COLC+j}, 4, v13")
    a("v_and_b32 v12, 3, v9"); a("v_lshrrev_b32 v13, 2, v9"); a("v_lshl_add_u32 v13, v12, 3, v13"); a("v_lshlrev_b32 v13, 7, v13")
    a(f"v_add_u32 v13, s{S_GB}, v13")
    a("v_bfe_u32 v14, v9, 3, 1"); a("v_lshl_or_b32 v12, v14, 2, v12"); a("v_xor_b32 v12, v12, v10")
    for s in range(4):
        a(f"v_xor_b32 v14, {2*s}, v12"); a(f"v_lshl_add_u32 v{RDA+s}, v14, 4, v13")
    a(f"v_lshrrev_b32 v12, 3, v{LANE}"); a(f"v_lshlrev_b32 v{LANEQ}, 4, v12"); a(f"v_lshlrev_b32 v{LANEE}, 2, v9")
    a(f"v_mov_b32 v12, {hex(PADW)}"); a(f"v_add_u32 v13, s{S_PADB}, v{LANEE}")
    a("ds_write_b32 v13, v12"); a(f"ds_write2st64_b32 v13, v{ZERO}, v{ZERO} offset0:{PO1} offset1:{PO2}")
    a(f"v_mov_b32 v{XR+3}, 0")
    a(f"s_mov_b32 s4, {hex(NLOG2E)}"); a("s_mov_b32 s5, s4")
    a("s_waitcnt vmcnt(8)")
    for j in range(8):
        a(f"v_lshlrev_b32 v{32+2*j}, 16, v{RW+j}"); a(f"v_and_b32 v{33+2*j}, 0xffff0000, v{RW+j}")
    for j in range(8): a(f"v_pk_mul_f32 {vr(32+2*j,2)}, {vr(32+2*j,2)}, s[4:5]")
    for j in range(8): a(f"v_cvt_pk_bf16_f32 v{48+j}, v{32+2*j}, v{33+2*j}")
    a(f"v_add_u32 v16, {L_WF}, v8")
    a("ds_write_b128 v16, v[48:51]")
    for j in range(4):
        a(f"v_lshlrev_b32 v{56+2*j}, 16, v{52+j}"); a(f"v_and_b32 v{57+2*j}, 0xffff0000, v{52+j}")
    for j in range(4): a(f"v_pk_add_f32 {vr(56+2*j,2)}, {vr(40+2*j,2)}, {vr(56+2*j,2)} neg_lo:[0,1] neg_hi:[0,1]")
    for j in range(4): a(f"v_cvt_pk_bf16_f32 v{56+j}, v{56+2*j}, v{57+2*j}")
    a(f"v_add_u32 v16, {L_WF + 16384 - 128}, v11")
    a(f"v_add_u32 v17, {L_WF + 16384 + 512}, v11")
    a("s_mov_b64 exec, 0xff")
    a("ds_write_b128 v17, v[52:55]"); a("ds_write_b128 v17, v[56:59] offset:128")
    a("s_mov_b32 s6, 0xffffff00"); a("s_mov_b32 s7, 0xff0000ff"); a("s_mov_b64 exec, s[6:7]")
    a("ds_write_b128 v16, v[52:55]")
    a("s_mov_b32 s6, 0"); a("s_mov_b32 s7, 0xff000000"); a("s_mov_b64 exec, s[6:7]")
    a("ds_write_b128 v16, v[52:55] offset:128")
    a("s_mov_b64 exec, -1")
    a(f"v_bfe_u32 v18, v{LANE}, 2, 2"); a("v_lshlrev_b32 v16, 7, v18")
    a(f"v_bfe_u32 v18, v{LANE}, 4, 1"); a("v_lshl_add_u32 v16, v18, 5, v16")
    a(f"v_and_b32 v18, 3, v{LANE}"); a("v_lshl_add_u32 v16, v18, 3, v16")
    a(f"v_add_u32 v{VAL}, {L_WF + 16384}, v16")
    a("v_lshl_add_u32 v16, v10, 10, v16"); a(f"v_add_u32 v{VAL+1}, {L_WF}, v16")
    a(f"s_mov_b32 s5, {opt('spin', 200000)}")
    a("K_EPW:")
    a(f"v_readfirstlane_b32 s4, v{RW+12}")
    a("s_cmp_lg_u32 s4, 0"); a("s_cbranch_scc1 K_EPOK")
    a("s_sub_u32 s5, s5, 1"); a("s_cmp_eq_u32 s5, 0"); a("s_cbranch_scc1 K_EPOK")
    a(f"buffer_load_dword v{RW+12}, v{ZERO}, {sr(S_ACC,4)}, 0 offen sc0 sc1")
    a("s_waitcnt vmcnt(0)")
    a("s_branch K_EPW")
    a("K_EPOK:")
    srd(a, S_ACC, 52, 53, WS_ACC, 256 * 8 * 16384)
    a(f"v_mov_b32 v77, v{RW+12}")
    a("s_lshl_b32 s3, s2, 12"); a(f"s_add_u32 s3, s3, {hex(WS_GRAN)}")
    a("v_lshlrev_b32 v15, 2, v15")
    a(f"s_mov_b32 s4, {hex(TAGK)}")
    a("v_not_b32 v79, v77"); a(f"v_xor_b32 v{PS+2}, s4, v77"); a(f"v_xor_b32 v78, v76, v{PS+2}")
    a(f"v_mov_b32 v{PS}, v77"); a(f"v_mov_b32 v{PS+1}, v79")
    a(f"v_lshlrev_b32 v{IMGA}, 12, v9")
    a(f"s_lshl_b32 s5, s{S_W}, 17"); a(f"s_lshl_b32 s6, s{S_B}, 4"); a("s_add_u32 s5, s5, s6"); a(f"s_add_u32 s{S_T3}, s5, {hex(WS_GRAN)}")
    a("s_waitcnt vmcnt(0) lgkmcnt(0)")
    stamp(a, 5)
    a("s_barrier")
    a(f"s_cmp_ge_u32 s{S_W}, 4")
    a("s_cbranch_scc1 K_NOPUB")
    a(f"buffer_store_dwordx4 v[76:79], v15, {sr(S_REC,4)}, s3 offen sc1")
    a("K_NOPUB:")
    HPF = opt("hpf", 0)
    if HPF:
        a("s_lshr_b32 s3, s2, 3"); a("s_mul_i32 s3, s3, 100000")
        for k in range(HPF):
            a(f"buffer_load_dwordx4 {vr(PD,4)}, v8, {sr(S_H,4)}, s3 offen")
            a("s_add_u32 s3, s3, 8192")
    WT = ACCB0
    for f in range(8):
        for kk in range(2): a(f"ds_read_b64_tr_b16 {vr(WT+4*f+2*kk,2)}, v{VAL+1} offset:{8192 + (f&3)*2048 + kk*512 + (f>>2)*64}")
    a("s_waitcnt lgkmcnt(8)")
    for s in range(4): a(mfma32(ACCA0, A1+4*s, WT + 4*s, 0 if s == 0 else None))
    for nh, b in ((0, BXA0), (1, BXA1), (0, BXB0), (1, BXB1)):
        for kk in range(2): a(f"ds_read_b64_tr_b16 {vr(b+2*kk,2)}, v{VAL} offset:{kk*512 + nh*64}")
    a("s_waitcnt lgkmcnt(8)")
    for s in range(4): a(mfma32(ACCA1, A1+4*s, WT + 16 + 4*s, 0 if s == 0 else None))
    a("s_waitcnt lgkmcnt(0)")
    for f in range(8):
        for kk in range(2): a(f"ds_read_b64_tr_b16 {vr(W2F+4*f+2*kk,2)}, v{VAL+1} offset:{(f&3)*2048 + kk*512 + (f>>2)*64}")
    a(f"s_mov_b32 s4, {hex(NLOG2E)}"); a("s_mov_b32 s5, s4")
    a(f"s_mov_b64 exec, {sr(S_LO,2)}")
    for nh, d, ba, bb in ((0, ACCA0, BXA0, BXB0), (1, ACCA1, BXA1, BXB1)):
        for j in range(8): a(f"v_pk_mul_f32 {vr(d+2*j,2)}, {vr(d+2*j,2)}, s[4:5]")
        for j in range(4):
            a(f"v_cvt_pk_bf16_f32 v{ba+j}, v{d+2*j}, v{d+2*j+1}")
            a(f"v_cvt_pk_bf16_f32 v{bb+j}, v{d+8+2*j}, v{d+8+2*j+1}")
    a("s_mov_b64 exec, -1")
    for i in range(64): a(f"v_mov_b32 v{ACCA0+i}, 0")
    stamp(a, 22)
    a(f"v_and_b32 v12, 7, v{LANE}"); a(f"v_and_b32 v13, 8, v{LANE}")
    node_sel(a, "v_cmp_eq_u32 vcc, 0, v13", 13, 14, 15)
    a("v_cmp_lt_u32 vcc, v12, v14")
    a("v_add_u32 v13, v13, v12"); a("v_lshlrev_b32 v13, 7, v13")
    a(f"v_lshrrev_b32 v14, 4, v{LANE}"); a("v_lshl_add_u32 v13, v14, 5, v13")
    a(f"v_mov_b32 v15, {hex(HUGE)}")
    a(f"v_cndmask_b32 v{HA}, v15, v13, vcc")
    a(f"v_bfe_u32 v12, v{LANE}, 2, 2"); a(f"v_lshrrev_b32 v13, 5, v{LANE}"); a("v_lshl_add_u32 v12, v12, 1, v13")
    a(f"v_and_b32 v13, 16, v{LANE}")
    node_sel(a, "v_cmp_eq_u32 vcc, 0, v13", 13, 14, 15)
    a("v_cmp_lt_u32 vcc, v12, v14")
    a("v_add_u32 v13, v13, v12"); a("v_mul_u32_u24 v13, 6, v13")
    a(f"v_and_b32 v14, 3, v{LANE}"); a("v_lshl_add_u32 v13, v14, 1, v13")
    a(f"v_cmp_gt_u32 {sr(S_T0,2)}, 3, v14")
    a(f"v_mov_b32 v15, {hex(HUGE)}")
    a(f"s_and_b64 vcc, vcc, {sr(S_T0,2)}")
    a(f"v_cndmask_b32 v{PA}, v15, v13, vcc")
    VL = S8
    a(f"v_mov_b32 v{SW}, 0"); a("v_mov_b32 v0, 0"); a(f"v_mov_b32 v{VL}, 0")
    a(f"s_mov_b32 s{S_PEND}, -1"); a(f"s_mov_b32 s{S_PEND+1}, 0"); a(f"s_mov_b32 s{S_LEFT}, 0")
    a(f"s_mov_b32 s{S_SPIN}, {opt('spin', 200000)}")
    a(f"s_mov_b32 s{S_SUB}, 0")
    a("s_waitcnt lgkmcnt(0)")
    a("K_POLL:")
    a(f"s_mov_b64 exec, {sr(S_PEND,2)}")
    a(f"buffer_load_dwordx4 {vr(PD,4)}, v{IMGA}, {sr(S_REC,4)}, s{S_T3} offen sc1")
    a("s_waitcnt vmcnt(0)")
    a(f"v_xor_b32 v{PD+2}, v{PD}, v{PD+2}")
    a(f"v_cmp_eq_u32 vcc, v{PD+1}, v{PS}"); a(f"v_cmp_eq_u32 s[60:61], v{PD+3}, v{PS+1}"); a(f"v_cmp_eq_u32 s[58:59], v{PD+2}, v{PS+2}")
    a("s_and_b64 vcc, vcc, s[60:61]"); a("s_and_b64 vcc, vcc, s[58:59]")
    a(f"v_cndmask_b32 v{SW}, v{SW}, v{PD}, vcc")
    a(f"v_cndmask_b32 v0, v0, v{PD}, vcc")
    a("s_mov_b64 exec, -1")
    a(f"s_andn2_b32 s{S_PEND}, s{S_PEND}, vcc_lo")
    a("s_cbranch_scc0 K_ALLIN")
    a(f"s_bcnt1_i32_b32 s4, s{S_PEND}")
    a(f"s_cmp_le_u32 s4, {opt('pth', 0)}")
    a("s_cbranch_scc0 K_PWAIT")
    a("v_cmp_ne_u32 vcc, 0, v0")
    a("s_cmp_lg_u32 vcc_lo, 0")
    a("s_cbranch_scc1 K_ROUND")
    a("K_PWAIT:")
    a(f"s_sub_u32 s{S_SPIN}, s{S_SPIN}, 1")
    a(f"s_cmp_eq_u32 s{S_SPIN}, 0")
    a(f"s_cselect_b32 s{S_PEND}, 0, s{S_PEND}")
    a("s_cbranch_scc1 K_ALLIN")
    if opt("slp", 4): a(f"s_sleep {opt('slp', 4)}")
    a("s_branch K_POLL")
    a("K_ALLIN:")
    if STAMP and STAMP != 4: a(f"v_writelane_b32 v255, s{S_SPIN}, 15")
    stamp(a, 6)
    a("s_branch K_ROUND")
    a("K_RESET:")
    cursor_init(a)
    a(f"v_mov_b32 v0, v{SW}")
    a(f"s_mov_b32 s{S_SUB}, 1")
    a("s_waitcnt lgkmcnt(0)")
    a("s_barrier")
    a("K_ROUND:")
    for p in range(16): a(f"ds_bpermute_b32 v{16+4*p+3}, v{BPX}, v0 offset:{8*p}")
    a(f"s_mov_b32 s3, s{S_SEG}")
    for p in range(16):
        r = 16 + 4*p
        a(f"s_waitcnt lgkmcnt({15-p})")
        a(f"v_cmp_lt_u32_sdwa {sr(S_MASK+2*p,2)}, v{I12}, v{r+3} src0_sel:DWORD src1_sel:WORD_1")
        a(f"v_add_u32_sdwa v{r+3}, v{r+3}, v{I12H} dst_sel:DWORD dst_unused:UNUSED_PAD src0_sel:WORD_0 src1_sel:DWORD")
        a(f"s_or_b64 exec, {sr(S_MASK+2*p,2)}, 1")
        a(f"buffer_load_dwordx3 {vr(r,3)}, v{r+3}, {sr(S_REC,4)}, s3 offen {opt('ldp', 'sc1').replace('+', ' ')}")
        a("s_mov_b64 exec, -1")
        a(f"s_add_u32 s3, s3, {2*CHS}")
    stamp(a, 7)
    a("v_lshrrev_b32 v12, 16, v0")
    a(f"v_cmp_lt_u32 vcc, s{S_WIN}, v12")
    a(f"v_min_u32 v12, s{S_WIN}, v12")
    a("v_add_u32 v0, v0, v12"); a("v_lshlrev_b32 v12, 16, v12"); a("v_sub_u32 v0, v0, v12")
    a(f"s_mov_b32 s{S_MORE}, vcc_lo")
    a(f"v_cndmask_b32 v{VL}, v{VL}, v0, vcc")
    for p in range(16):
        r = 16 + 4*p
        a(f"s_waitcnt vmcnt({15-p + min(p, NPF)})")
        a(f"s_mov_b64 exec, {sr(S_MASK+2*p,2)}")
        a(f"v_bfe_u32 v{r+3}, v{r+2}, 22, 6")
        a(f"ds_add_rtn_u32 v{r+3}, v{r+3}, v{FOUR}")
        if p < NPF:
            a(f"v_and_b32 v{ADQ}, s{S_GM}, v{r+2}")
            a(f"s_or_b64 exec, {sr(S_MASK+2*p,2)}, 1")
            a(f"buffer_load_dword v{S16}, v{ADQ}, {sr(S_H,4)}, 0 offen")
        if p % 4 == 3:
            a("s_waitcnt lgkmcnt(0)")
            for q in range(p-3, p+1):
                rq = 16 + 4*q
                a(f"s_mov_b64 exec, {sr(S_MASK+2*q,2)}")
                a(f"ds_write_b32 v{rq+3}, v{rq+2}")
                a(f"ds_write2st64_b32 v{rq+3}, v{rq}, v{rq+1} offset0:{PO1} offset1:{PO2}")
    a("s_mov_b64 exec, -1")
    a(f"s_cmp_lg_u32 s{S_SUB}, 0")
    a("s_cbranch_scc1 K_LAST")
    a(f"s_or_b32 s{S_LEFT}, s{S_LEFT}, s{S_MORE}")
    a("v_mov_b32 v0, 0")
    a(f"s_cmp_lg_u32 s{S_PEND}, 0")
    a("s_cbranch_scc1 K_POLL")
    a(f"s_cmp_eq_u32 s{S_LEFT}, 0")
    a("s_cbranch_scc1 K_BINNED")
    a(f"v_mov_b32 v0, v{VL}")
    a(f"s_mov_b32 s{S_SUB}, 1")
    a("s_branch K_ROUND")
    a("K_LAST:")
    a(f"s_cmp_eq_u32 s{S_MORE}, 0")
    a("s_cbranch_scc1 K_BINNED")
    a(f"v_mov_b32 v13, {L_FLAG}")
    a(f"ds_write_b32 v13, v{FOUR}")
    a("K_BINNED:")
    stamp(a, 8)
    a(f"buffer_load_dwordx4 {vr(HB,4)}, v{HA}, {sr(S_H,4)}, 0 offen")
    a(f"buffer_load_dwordx4 {vr(HB+4,4)}, v{HA}, {sr(S_H,4)}, 0 offen offset:16")
    a(f"v_lshrrev_b32 v16, 1, v{LANEE}")
    a(f"buffer_load_ushort v{WX0}, v16, {sr(S_WX,4)}, 0 offen")
    a(f"buffer_load_ushort v{WX1}, v16, {sr(S_WX,4)}, 0 offen offset:64")
    a(f"buffer_load_ushort v{PV}, v{PA}, {sr(S_POS,4)}, 0 offen")
    for j in range(4): srd(a, S_HJ+4*j, S_H, S_H+1, -1024*j, 3200000 + 1024*j)
    for i in range(16): a(f"v_mov_b32 v{MP+i}, 0")
    a(f"v_lshlrev_b32 v17, 2, v{LANE}")
    a(f"s_lshl_b32 s4, s{S_W}, 1"); a("s_add_u32 s5, s4, 1")
    a("s_xor_b32 s48, s4, 8"); a("s_xor_b32 s49, s5, 8")
    a(f"v_readlane_b32 s{S_NEXT}, v{CURB}, s4"); a(f"v_readlane_b32 s{S_JUMP}, v{CURB}, s5")
    a(f"v_mov_b32 v19, {hex(PADW)}")
    a(f"s_mov_b32 s{S_TBL}, s{S_TBLA}")
    a("s_waitcnt lgkmcnt(0)")
    a("s_barrier")
    stamp(a, 19)
    a("ds_read_b32 v16, v17")
    a("s_waitcnt lgkmcnt(0)")
    a(f"v_cmp_gt_u32 vcc, v16, v{CURL}")
    a(f"v_sub_u32 v18, v16, v{CURB}"); a("v_add_u32 v18, 127, v18"); a("v_lshrrev_b32 v18, 7, v18")
    a("v_med3_u32 v18, v18, 1, 10")
    a(f"v_readlane_b32 s{S_T0}, v16, s4"); a(f"v_readlane_b32 s{S_T1}, v16, s5"); a(f"v_readlane_b32 s{S_MORE}, v16, 16")
    a(f"v_readlane_b32 s{S_REM}, v18, s4"); a(f"v_readlane_b32 s{S_TB}, v18, s5")
    a("v_readlane_b32 s50, v18, s48"); a("v_readlane_b32 s51, v18, s49")
    a("s_and_b32 s6, vcc_lo, 0xffff")
    a("s_cbranch_scc0 K_FITS")
    a(f"s_cmp_le_u32 s{S_WIN}, 12")
    a("s_cbranch_scc1 K_FITS")
    a("s_barrier")
    a(f"s_lshr_b32 s{S_WIN}, s{S_WIN}, 1")
    a(f"v_mov_b32 v16, {hex(HUGE)}")
    a(f"v_cmp_gt_u32 vcc, s{S_WIN}, v{I12}")
    a(f"v_cndmask_b32 v{I12}, v16, v{I12}, vcc")
    a("s_waitcnt vmcnt(0)")
    a("s_branch K_RESET")
    a("K_FITS:")
    a(f"s_lshl_b32 s4, s{S_REM}, 7"); a(f"s_add_u32 s{S_END}, s4, s{S_NEXT}")
    a(f"s_lshl_b32 s5, s{S_TB}, 7"); a(f"s_add_u32 s{S_END2}, s5, s{S_JUMP}")
    for cur, end, m in ((S_T0, S_END, S_LO), (S_T1, S_END2, S_HI)):
        a(f"v_add_u32 v16, s{cur}, v{LANEE}")
        a(f"v_cmp_gt_u32 vcc, s{end}, v16")
        a(f"s_and_b64 exec, vcc, {sr(m,2)}")
        a("ds_write_b32 v16, v19")
        a(f"ds_write2st64_b32 v16, v{ZERO}, v{ZERO} offset0:{PO1} offset1:{PO2}")
        a("s_mov_b64 exec, -1")
    WQ2 = 20
    for t in g_reads(0, WQ2) + g_reads(1): a(t)
    a(f"v_mov_b32 v{SW}, v0")
    a("s_add_u32 s50, s50, s51"); a(f"s_add_u32 s51, s{S_REM}, s{S_TB}")
    a(f"s_mul_i32 s50, s50, {opt('fa', 125)}"); a(f"s_mul_i32 s51, s51, {opt('fb', 51)}"); a("s_sub_i32 s50, s50, s51"); a("s_add_i32 s50, s50, 128")
    a("s_ashr_i32 s50, s50, 8"); a("s_max_i32 s50, s50, 0")
    a(f"s_sub_i32 s{S_FLIP}, s{S_REM}, s50"); a(f"s_sub_i32 s{S_FLIP}, s{S_FLIP}, 1"); a(f"s_max_i32 s{S_FLIP}, s{S_FLIP}, 0")
    a(f"s_cmp_lt_u32 s{S_W}, 4"); a(f"s_cselect_b32 s{S_FLIP}, -1, s{S_FLIP}")
    a("s_waitcnt lgkmcnt(2)")
    a(f"v_bfe_u32 v{PIX}, v{W2E}, 7, 15")
    for t in g_addr(WQ2) + g_m0(0): a(t)
    a(f"s_mov_b64 exec, {sr(S_HI,2)}"); a(pos_gather()); a("s_mov_b64 exec, -1")
    for t in g_dma(WQ2): a(t)
    a("s_waitcnt lgkmcnt(0)")
    for t in g_addr() + g_m0(1) + ["s_nop 0"] + g_dma(): a(t)
    stamp(a, 20)
    a(f"s_cmp_eq_u32 s{S_ROUND}, 1")
    a("s_cbranch_scc1 K_FILL2")
    a(f"v_lshlrev_b32 v16, 4, v{LANE}")
    a(f"s_mov_b32 s3, s{S_ACCO}")
    for i in range(16):
        a(f"buffer_load_dwordx4 {vr(ACCA0+4*i,4)}, v16, {sr(S_ACC,4)}, s3 offen offset:{(i%4)*1024} sc0 sc1")
        if i % 4 == 3: a("s_add_u32 s3, s3, 4096")
    a("s_waitcnt vmcnt(0)")
    a("K_FILL2:")
    for t in e_head(0): a(t)
    a("s_waitcnt vmcnt(4) lgkmcnt(0)")
    stamp(a, 21)
    for t in a1_reads(0) + e_sect(0, zero=False) + g_reads(0): a(t)
    a("s_waitcnt lgkmcnt(5)")
    a(mfma32(D0, A1, W2F, 0))
    for s in range(1, 4): a(mfma32(D0, A1+4*s, W2F+4*s))
    a("s_waitcnt lgkmcnt(0)")
    a(mfma32(D0, XR, BXA0))
    for t in g_addr() + g_m0(0) + ["s_nop 0"] + g_dma(): a(t)
    a("s_nop 3")
    if opt("qtest", 0):
        for j in range(8): a(f"v_mov_b32 v{W2F+j}, 0")
        a(f"v_mov_b32 v{W2F+1}, 0x3f80"); a(f"v_mov_b32 v{W2F+6}, 0x3f80")
    stamp(a, 9); stamp(a, 10, True)
    if STAMP and STAMP != 4: a(f"v_writelane_b32 v255, s{S_REM}, 12"); a(f"v_writelane_b32 v255, s{S_TB}, 13"); a("s_mov_b32 s5, 24")
    a("K_XA0:")
    phase_x(a, 0, ACCA1, BXA1, True)
    a(f"s_cmp_eq_u32 s{S_REM}, 0"); a("s_cbranch_scc1 K_YT0")
    phase_y(a, 0, ACCA0, BXA0)
    phase_x(a, 1, ACCA1, BXA1, True)
    a(f"s_cmp_eq_u32 s{S_REM}, 0"); a("s_cbranch_scc1 K_YT1")
    phase_y(a, 1, ACCA0, BXA0)
    a("s_branch K_XA0")
    a("K_YT0:")
    phase_y(a, 0, ACCA0, BXB0)
    phase_x(a, 1, ACCA1, BXB1, False)
    a("s_branch K_YB1")
    a("K_YT1:")
    phase_y(a, 1, ACCA0, BXB0)
    phase_x(a, 0, ACCA1, BXB1, False)
    a("K_YB0:")
    phase_y(a, 0, ACCB0, BXB0)
    a(f"s_sub_u32 s{S_TB}, s{S_TB}, 1"); a(f"s_cmp_eq_u32 s{S_TB}, 0"); a("s_cbranch_scc1 K_DRAIN")
    phase_x(a, 1, ACCB1, BXB1, False)
    a("K_YB1:")
    phase_y(a, 1, ACCB0, BXB0)
    a(f"s_sub_u32 s{S_TB}, s{S_TB}, 1"); a(f"s_cmp_eq_u32 s{S_TB}, 0"); a("s_cbranch_scc1 K_DRAIN")
    phase_x(a, 0, ACCB1, BXB1, False)
    a("s_branch K_YB0")
    a("K_DRAIN:")
    a(mfma32(ACCB1, A2, MP))
    a(mfma32(ACCB1, A2+4, MP+4))
    stamp(a, 16); stamp(a, 11, True)
    a(f"s_cmp_eq_u32 s{S_MORE}, 0")
    a("s_cbranch_scc1 K_EPI")
    a("s_setprio 0")
    a(f"s_mov_b64 exec, {sr(S_HI,2)}"); a(f"ds_write_b64 v{IMGA}, {vr(ZERO,2)}"); a("s_mov_b64 exec, -1")
    a(f"v_lshlrev_b32 v16, 4, v{LANE}")
    a(f"s_mov_b32 s3, s{S_ACCO}")
    a("s_nop 7")
    for i in range(16):
        a(f"buffer_store_dwordx4 {vr(ACCA0+4*i,4)}, v16, {sr(S_ACC,4)}, s3 offen offset:{(i%4)*1024} sc0 sc1")
        if i % 4 == 3: a("s_add_u32 s3, s3, 4096")
    a(f"s_mov_b32 s{S_ROUND}, 2")
    a("s_waitcnt vmcnt(0) lgkmcnt(0)")
    a("s_barrier")
    a("s_branch K_RESET")
    a("K_EPI:")
    whf = lambda f: (16 + 4*f) if f < 12 else (80 + 4*(f-12))
    MB = 108; DO = 116; AD = 100
    a(f"v_lshrrev_b32 v{AD}, 4, v{LANE}"); a(f"v_lshlrev_b32 v{AD}, 4, v{AD}")
    a(f"v_bfe_u32 v{AD+1}, v{LANE}, 2, 2"); a(f"v_add_u32 v{AD}, v{AD}, v{AD+1}"); a(f"v_lshlrev_b32 v{AD}, 7, v{AD}")
    a(f"v_and_b32 v{AD+1}, 3, v{LANE}"); a(f"v_lshl_add_u32 v{AD}, v{AD+1}, 5, v{AD}"); a(f"v_add_u32 v{AD}, {L_WH}, v{AD}")
    a(f"s_mov_b32 s4, {hex(NLN2)}")
    a(f"v_lshrrev_b32 v{AD+2}, 5, v{LANE}"); a(f"v_lshlrev_b32 v{AD+2}, 7, v{AD+2}"); a(f"v_lshrrev_b32 v{AD+3}, 1, v{LANEE}")
    a(f"v_add3_u32 v{AD+2}, v{AD+2}, v{AD+3}, s{S_GB}")
    a(f"v_and_b32 v{AD+3}, 15, v{LANE}"); a(f"v_lshlrev_b32 v{AD+3}, 7, v{AD+3}"); a(f"v_lshrrev_b32 v{AD+4}, 4, v{LANE}")
    a(f"v_lshl_add_u32 v{AD+3}, v{AD+4}, 5, v{AD+3}"); a(f"v_add_u32 v{AD+3}, s{S_GB}, v{AD+3}")
    for g, (c0, c1) in enumerate(((ACCA0, ACCA1), (ACCB0, ACCB1))):
        for q in range(4):
            a(f"v_mul_f32 v{c0+4*q}, s4, v{c0+4*q}"); a(f"v_mul_f32 v{c1+4*q}, s4, v{c1+4*q}")
            a(f"v_cvt_pk_bf16_f32 v{c0+4*q}, v{c0+4*q}, v{c1+4*q}")
    a("s_waitcnt vmcnt(0)")
    for g, (c0, c1) in enumerate(((ACCA0, ACCA1), (ACCB0, ACCB1))):
        for q in range(4):
            a(f"ds_write_b16 v{AD+2}, v{c0+4*q} offset:{g*1024 + q*256}")
            a(f"ds_write_b16_d16_hi v{AD+2}, v{c0+4*q} offset:{g*1024 + q*256 + 64}")
    a(f"ds_read_b128 {vr(MB,4)}, v{AD+3}"); a(f"ds_read_b128 {vr(MB+4,4)}, v{AD+3} offset:16")
    for s in range(4):
        for t in range(4):
            for kk in range(2):
                a(f"ds_read_b64_tr_b16 {vr(whf(t*4+s)+2*kk,2)}, v{AD} offset:{(s>>1)*8192 + (s&1)*1024 + kk*512 + t*8}")
    for w in (WX0, WX1): a(f"v_lshlrev_b32 v{w}, 16, v{w}"); a(f"v_mul_f32 v{w}, s4, v{w}")
    for (c0, c1) in ((ACCA0, ACCA1), (ACCB0, ACCB1)):
        for q in range(4):
            for k in (1, 2, 3):
                a(f"v_mul_f32 v{c0+4*q+k}, v{WX0}, v{c0+4*q+k}"); a(f"v_fmac_f32 v{c0+4*q+k}, v{WX1}, v{c1+4*q+k}")
    a("s_waitcnt lgkmcnt(0)")
    bsrc = (HB, HB+4, MB, MB+4)
    mf = []
    for s in range(4):
        for t in range(4):
            c = "0" if s == 0 else vr(DO+4*t, 4)
            mf.append(f"v_mfma_f32_16x16x32_bf16 {vr(DO+4*t,4)}, {vr(whf(t*4+s),4)}, {vr(bsrc[s],4)}, {c}")
    red = []
    for q in range(4):
        for k in (1, 2, 3): red.append(f"v_permlane16_swap_b32 v{ACCA0+4*q+k}, v{ACCB0+4*q+k}")
    for q in range(4):
        for k in (1, 2, 3): red.append(f"v_add_f32 v{ACCA0+4*q+k}, v{ACCA0+4*q+k}, v{ACCB0+4*q+k}")
    for q in range(2):
        for k in (1, 2, 3):
            red.append(f"v_add_f32_dpp v{ACCA1+4*q+k}, v{ACCA0+4*q+k}, v{ACCA0+4*q+k} row_ror:8 row_mask:0xf bank_mask:0x3")
            red.append(f"v_add_f32_dpp v{ACCA1+4*q+k}, v{ACCA0+4*q+8+k}, v{ACCA0+4*q+8+k} row_ror:8 row_mask:0xf bank_mask:0xc")
    for i, m in enumerate(mf):
        a(m)
        for t in red[2*i:2*i+2]: a(t)
    for t in red[32:]: a(t)
    for k in (1, 2, 3):
        a(f"v_add_f32_dpp v{ACCB1+k}, v{ACCA1+k}, v{ACCA1+k} row_shl:4 row_mask:0xf bank_mask:0x5")
        a(f"v_add_f32_dpp v{ACCB1+k}, v{ACCA1+4+k}, v{ACCA1+4+k} row_shr:4 row_mask:0xf bank_mask:0xa")
    for perm in ("[1,0,3,2]", "[2,3,0,1]"):
        for k in (1, 2, 3): a(f"v_add_f32_dpp v{ACCB1+k}, v{ACCB1+k}, v{ACCB1+k} quad_perm:{perm} row_mask:0xf bank_mask:0xf")
    a(f"v_cmp_eq_u32 vcc, 1, v{AD+1}"); a(f"v_lshlrev_b32 v{PV}, 16, v{PV}"); a(f"s_mov_b32 s4, {hex(NLOG2E)}")
    a(f"v_cndmask_b32 v{AD+5}, v{ACCB1+1}, v{ACCB1+2}, vcc")
    a(f"v_cmp_eq_u32 vcc, 2, v{AD+1}"); a("s_mov_b32 s5, s4"); a("s_mov_b32 s3, 3200000")
    a(f"v_cndmask_b32 v{AD+5}, v{AD+5}, v{ACCB1+3}, vcc")
    a(f"v_add_f32 v{AD+5}, v{AD+5}, v{PV}"); a(f"v_cvt_pk_bf16_f32 v{AD+5}, v{AD+5}, v{AD+5}")
    a(f"buffer_store_short v{AD+5}, v{PA}, {sr(S_OUT,4)}, s3 offen {OP}")
    E = 148
    for j in range(8): a(f"v_pk_mul_f32 {vr(E+2*j,2)}, {vr(DO+2*j,2)}, s[4:5]")
    for j in range(16): a(f"v_exp_f32 v{E+j}, v{E+j}")
    for j in range(8): a(f"v_pk_add_f32 {vr(E+2*j,2)}, {vr(E+2*j,2)}, 1.0 op_sel_hi:[1,0]")
    for j in range(16): a(f"v_rcp_f32 v{E+j}, v{E+j}")
    for j in range(8):
        a(f"v_lshlrev_b32 v{E+16+2*j}, 16, v{HB+j}"); a(f"v_and_b32 v{E+17+2*j}, 0xffff0000, v{HB+j}")
    for j in range(8): a(f"v_pk_fma_f32 {vr(E+2*j,2)}, {vr(E+2*j,2)}, {vr(DO+2*j,2)}, {vr(E+16+2*j,2)}")
    for j in range(8): a(f"v_cvt_pk_bf16_f32 v{E+32+j}, v{E+2*j}, v{E+2*j+1}")
    a(f"buffer_store_dwordx4 {vr(E+32,4)}, v{HA}, {sr(S_OUT,4)}, 0 offen {OP}")
    a(f"buffer_store_dwordx4 {vr(E+36,4)}, v{HA}, {sr(S_OUT,4)}, 0 offen offset:16 {OP}")
    stamp(a, 17)
    if STAMP: a("s_waitcnt vmcnt(0)")
    stamp(a, 18)
    stamp_out(a)
    a("K_END:")
    a("s_endpgm")

def main():
    ref = open(f"cdna_kernels/{NAME}.s.ref").read().split("\n")
    head = [l for l in ref if l.startswith(";") and "@launch" not in l and not l.startswith("; Override") and not l.startswith("; grid=")]
    out = "\n".join(head) + "\n"
    if opt("aslist", 0): out += f"; @launch kernel={KN} grid=(256,1,1) block=(512,1,1) lds={LDS}\n"
    else: out += f"; @launch grid=(256,1,1) block=(512,1,1) lds={LDS}\n"
    out += '.amdgcn_target "amdgcn-amd-amdhsa--gfx950"\n.text\n'
    a = Asm(); gen(a)
    for b in a.check_edges(): print("EDGE HAZARD", b, file=sys.stderr)
    out += f".globl {KN}\n.p2align 8\n.type {KN},@function\n" + a.text()
    out += f""".section .rodata,"a"
.p2align 6
.amdhsa_kernel {KN}
  .amdhsa_next_free_vgpr 256
  .amdhsa_next_free_sgpr 102
  .amdhsa_accum_offset 256
  .amdhsa_group_segment_fixed_size 0
  .amdhsa_kernarg_size 88
  .amdhsa_user_sgpr_count 2
  .amdhsa_user_sgpr_kernarg_segment_ptr 1
  .amdhsa_system_sgpr_workgroup_id_x 1
  .amdhsa_float_denorm_mode_32 3
.end_amdhsa_kernel
"""
    open(sys.argv[1], "w").write(out)
main()
```

```python
import sys, math, struct
from asmlib import Asm

NAME = "gather_scatter__cheap_equivariant_egnn__graph"
KN = NAME + "_kernel"
def f32bits(x): return struct.unpack("<I", struct.pack("<f", x))[0]
NLOG2E = f32bits(-math.log2(math.e)); NLN2 = f32bits(-math.log(2.0))
OPT = dict(a.split("=") for a in sys.argv[2:]) if len(sys.argv) > 2 else {}
def opt(k, d): return type(d)(OPT.get(k, d))
STAMP = opt("stamp", 0)

CH = 3128; CHB = CH * 12; CHS = opt('chs', 37632); NQ = CH // 4; NQ_LAST = (800000 - 255 * CH) // 4
WS_GRAN = 0x00A00000; WS_POSF = 0x00B00000; WS_ACC = 0x01000000; WS_STAMP = 0x08000000
GMUL = 10737; GMAGIC = 51201995
L_CUR = 0; L_FLAG = 64; L_EPOCH = 68; L_TBL = 0x100; L_IMG = 0x1100; L_GB = 0x5100
L_WH = L_GB + 8 * 8192
L_REC = L_WH + 16384
PADO = 128 * 98 + 384 * 16; PLANE = 18944; PO1 = PLANE // 256; PO2 = 2 * PO1
L_PAD = L_REC + PADO
LDS = L_REC + 3 * PLANE
L_STG = L_GB; L_HIST = L_GB + 37632; L_OFFS = L_HIST + 1024; L_WF = L_GB + 40960
assert LDS <= 163840 and PADO + 128 <= PLANE and L_GB % 256 == 0
PADW = (32767 << 7) | (7 << 3)
HUGE = 0x40000000
TAGK = 0x9E3779B9

D0 = 16; D1 = 32; T = 48; MP = 64; A2 = 72; A1 = 80; XR = 96
W2F = 100; BXA0 = 132; BXA1 = 136; BXB0 = 140; BXB1 = 144
ACCA0 = 148; ACCA1 = 164; ACCB0 = 180; ACCB1 = 196
COLC = 212; RDA = 216; TRA = 220; IMGB = 221; LANEQ = 222; LANEE = 223
WQ = 224; W2E = 228; ADE = 230; PS = 232; CURB = 235; HA = 236; PA = 237; PV = 238; CURL = 239
PD = 240; WX0 = 243; VAL = 244; IMGA = 246; S8 = 247; S16 = 248; ADQ = 249
ZERO = 250; D2 = 252; PIX = 253; WX1 = 254
LANE = 1; SW = 2; I12 = 3; I12H = 4; BPX = 5; FOUR = 6; TMP = 7; HB = 8
S_H = 8; S_POSF = 12; S_REC = 16; S_POS = 20; S_OUT = 24; S_ACC = 28; S_MASK = 32; S_HJ = 32
S_W = 64; S_B = 65; S_NA = 66; S_NB = 67; S_CA = 68; S_CB = 69
S_LO = 70; S_HI = 72; S_GM = 74; S_TBL = 75; S_TBLA = 76; S_TBLB = 77
S_NEXT = 78; S_END = 79; S_JUMP = 80; S_END2 = 81; S_PADB = 82; S_PADE = 83
S_REM = 84; S_TB = 85; S_GB = 86; S_WIN = 87; S_ROUND = 88; S_MORE = 89; S_T0 = 90; S_T1 = 91; S_T3 = 92
S_SEG = 93; S_ACCO = 94; S_FLIP = 95; S_WX = 96; S_SUB = 100; S_SPIN = 101; S_FLIP2 = 101; S_PEND = 78; S_LEFT = 80

def vr(b, n): return f"v[{b}:{b+n-1}]"
def sr(b, n): return f"s[{b}:{b+n-1}]"
def srd(a, d, lo, hi, off, num, stride=0):
    if off > 0:
        a(f"s_add_u32 s{d}, s{lo}, {hex(off)}"); a(f"s_addc_u32 s{d+1}, s{hi}, 0")
    elif off < 0:
        a(f"s_sub_u32 s{d}, s{lo}, {hex(-off)}"); a(f"s_subb_u32 s{d+1}, s{hi}, 0")
    else:
        a(f"s_mov_b32 s{d}, s{lo}"); a(f"s_mov_b32 s{d+1}, s{hi}")
    if stride: a(f"s_or_b32 s{d+1}, s{d+1}, {hex(stride << 16)}")
    a(f"s_mov_b32 s{d+2}, {hex(num)}"); a(f"s_mov_b32 s{d+3}, 0x20000")
def stamp(a, idx, cyc=False):
    if not STAMP: return
    if STAMP == 4:
        if cyc or idx in (0, 18, 20, 21, 22): return
        idx = {16: 10, 17: 11, 19: 12}.get(idx, idx)
    a(f"{'s_memtime' if cyc else 's_memrealtime'} s[6:7]"); a("s_waitcnt lgkmcnt(0)"); a(f"v_writelane_b32 v255, s6, {idx}")
def stamp_out(a):
    if not STAMP: return
    if STAMP == 4:
        a("s_mov_b64 exec, -1")
        a("s_load_dwordx2 s[32:33], s[0:1], 72"); a("s_waitcnt lgkmcnt(0)")
        srd(a, 36, 32, 33, 0, 256)
        a(f"buffer_load_dword v17, v{ZERO}, s[36:39], 0 offen sc0 sc1")
        a("v_readlane_b32 s4, v255, 9"); a("v_readlane_b32 s5, v255, 10"); a("v_readlane_b32 s6, v255, 6")
        a("s_waitcnt vmcnt(0)")
        a("v_readfirstlane_b32 s7, v17")
        a("s_lshl_b32 s32, s7, 1"); a("s_add_u32 s32, s32, 10000")
        a("s_sub_u32 s4, s32, s4"); a("s_sub_u32 s5, s32, s5"); a("s_sub_u32 s6, s32, s6")
        a("v_writelane_b32 v255, s4, 13"); a("v_writelane_b32 v255, s5, 14"); a("v_writelane_b32 v255, s6, 15")
        a("v_sub_u32 v255, v255, v17")
        a(f"v_lshlrev_b32 v16, 2, v{LANE}")
        a("s_mov_b64 exec, 0xfffe")
        a("buffer_atomic_umax v255, v16, s[36:39], 0 offen sc1")
        return
    a("s_mov_b64 exec, -1")
    a("s_load_dwordx2 s[32:33], s[0:1], 80"); a("s_waitcnt lgkmcnt(0)")
    srd(a, 36, 32, 33, WS_STAMP, 1 << 22)
    a("s_lshl_b32 s32, s2, 4"); a(f"s_add_u32 s32, s32, s{S_W}"); a("s_lshl_b32 s32, s32, 8")
    a(f"v_lshlrev_b32 v16, 2, v{LANE}")
    a("buffer_store_dword v255, v16, s[36:39], s32 offen")

def mfma32(d, a_, b_, c=None):
    return f"v_mfma_f32_32x32x16_bf16 {vr(d,16)}, {vr(a_,4)}, {vr(b_,4)}, {'0' if c == 0 else vr(d,16)}"
def silu_main(d):
    if opt("nopk", 0):
        m = [f"v_exp_f32 v{T+j}, v{d+j}" for j in range(16)]
        m += [f"v_add_f32 v{T+2*j}, 1.0, v{T+2*j}\nv_add_f32 v{T+2*j+1}, 1.0, v{T+2*j+1}" for j in range(8)]
        m += [f"v_rcp_f32 v{T+j}, v{T+j}" for j in range(16)]
        m += [f"v_mul_f32 v{T+2*j}, v{T+2*j}, v{d+2*j}\nv_mul_f32 v{T+2*j+1}, v{T+2*j+1}, v{d+2*j+1}" for j in range(8)]
        m += [f"v_cvt_pk_bf16_f32 v{MP+j}, v{T+2*j}, v{T+2*j+1}" for j in range(8)]
        return m
    m = [f"v_exp_f32 v{T+j}, v{d+j}" for j in range(16)]
    m += [f"v_pk_add_f32 {vr(T+2*j,2)}, {vr(T+2*j,2)}, 1.0 op_sel_hi:[1,0]" for j in range(8)]
    m += [f"v_rcp_f32 v{T+j}, v{T+j}" for j in range(16)]
    m += [f"v_pk_mul_f32 {vr(T+2*j,2)}, {vr(T+2*j,2)}, {vr(d+2*j,2)}" for j in range(8)]
    m += [f"v_cvt_pk_bf16_f32 v{MP+j}, v{T+2*j}, v{T+2*j+1}" for j in range(8)]
    return m
def emit(a, main, ins):
    for t in ins.get(-1, []): a(t)
    for i, m in enumerate(main):
        a(m)
        for t in ins.get(i, []): a(t)
def gstate(isA=True):
    o = [f"s_add_u32 s{S_NEXT}, s{S_NEXT}, 128", f"s_cmp_eq_u32 s{S_NEXT}, s{S_END}",
         f"s_cselect_b32 s{S_NEXT}, s{S_JUMP}, s{S_NEXT}", f"s_cselect_b32 s{S_END}, s{S_END2}, s{S_END}"]
    if isA: o += [f"s_cselect_b32 s{S_JUMP}, s{S_PADB}, s{S_JUMP}", f"s_cselect_b32 s{S_END2}, s{S_PADE}, s{S_END2}"]
    return o
def g_reads(e, wq=WQ, isA=True):
    return [f"v_add_u32 v{ADQ}, s{S_NEXT}, v{LANEQ}", f"v_add_u32 v{ADE+e}, s{S_NEXT}, v{LANEE}",
            f"ds_read_b128 {vr(wq,4)}, v{ADQ}", f"ds_read_b32 v{W2E+e}, v{ADE+e}"] + gstate(isA)
def g_addr(wq=WQ): return [f"v_and_or_b32 v{wq+j}, v{wq+j}, s{S_GM}, v{COLC+j}" for j in range(4)]
def g_m0(e): return [f"s_add_u32 m0, s{S_GB}, {e*4096}"]
def g_dma(wq=WQ): return [f"buffer_load_dwordx4 v{wq+j}, {sr(S_HJ+4*j,4)}, 0 offen offset:{j*1024} {opt('gp', '')} lds" for j in range(4)]
def pos_gather(): return f"buffer_load_dwordx3 {vr(PS,3)}, v{PIX}, {sr(S_POSF,4)}, 0 idxen sc1"
def e_head(e):
    return [f"v_and_b32 v{S8}, 0x38, v{W2E+e}", f"v_lshl_add_u32 v{S16}, v{S8}, 1, s{S_TBL}", f"ds_read_b96 {vr(PD,3)}, v{S16} offset:128",
            f"v_bfe_u32 v{PIX}, v{W2E+1-e}, 7, 15"]
def e_sect(e, zero=True):
    o = [f"s_mov_b64 exec, {sr(S_LO,2)}", f"ds_read_b128 {vr(XR,4)}, v{S16}", f"s_mov_b64 exec, {sr(S_HI,2)}"]
    o += [f"v_sub_f32 v{PD+k}, v{PD+k}, v{PS+k}" for k in range(3)]
    o += [f"v_cvt_pk_bf16_f32 v{VAL}, 1.0, v{PD}", f"v_cvt_pk_bf16_f32 v{VAL+1}, v{PD+1}, v{PD+2}",
          f"v_dot2_f32_bf16 v{D2}, v{VAL}, v{VAL}, -1.0", f"v_dot2_f32_bf16 v{D2}, v{VAL+1}, v{VAL+1}, v{D2}",
          f"ds_read2st64_b32 {vr(XR,2)}, v{ADE+e} offset0:{PO1} offset1:{PO2}"]
    if zero: o += [f"ds_write_b64 v{IMGA}, {vr(ZERO,2)}"]
    o += [f"v_add_u32 v{IMGA}, v{S8}, v{IMGB}", f"ds_write_b64 v{IMGA}, {vr(VAL,2)}", pos_gather(),
          f"v_cvt_pk_bf16_f32 v{XR+2}, v{D2}, v{D2}", "s_mov_b64 exec, -1"]
    return o
def a1_reads(e): return [f"ds_read_b128 {vr(A1+4*s,4)}, v{RDA+s} offset:{e*4096}" for s in range(4)]
def tr_reads(): return [f"ds_read_b64_tr_b16 {vr(A2+2*k,2)}, v{TRA} offset:{k*512}" for k in range(4)]

OP = opt('op', 'nt').replace('+', ' ')
NPF = opt('npf', 0)
PRIO = opt("prio", 2)
_lbl = [0]
def phase_x(a, p, acc1, bx1, isA):
    e = 1 - p
    ins = {}; pre = []
    if isA:
        pre += [f"s_sub_u32 s{S_REM}, s{S_REM}, 1", f"s_cmp_eq_u32 s{S_REM}, 0", f"s_cselect_b32 s{S_TBL}, s{S_TBLB}, s{S_TBLA}"]
        if PRIO == 2:
            _lbl[0] += 1; L = f"KP{_lbl[0]}"
            ins[2] = [f"s_cmp_lg_u32 s{S_REM}, s{S_FLIP}", f"s_cbranch_scc1 {L}", "s_setprio 1", f"{L}:"]
            _lbl[0] += 1; L = f"KP{_lbl[0]}"
            ins[54] = [f"s_cmp_lg_u32 s{S_REM}, s{S_FLIP2}", f"s_cbranch_scc1 {L}", "s_setprio 1", f"{L}:"]
    if STAMP == 2:
        pre += ["s_memtime s[6:7]", "s_waitcnt lgkmcnt(0)", "s_mov_b32 m0, s5", "s_add_u32 s5, s5, 1", "v_writelane_b32 v255, s6, m0"]
    if STAMP == 3:
        pre += ["s_memtime s[6:7]", "s_memrealtime s[52:53]", "s_waitcnt lgkmcnt(0)", "s_mov_b32 m0, s5", "s_add_u32 s5, s5, 1", "v_writelane_b32 v255, s6, m0",
                "s_mov_b32 m0, s5", "s_add_u32 s5, s5, 1", "v_writelane_b32 v255, s52, m0"]
    ins[-1] = pre
    XP = [int(x) for x in opt("xp", "0,3,24,27,30,33,36,25,26").split(",")]
    def add(k, l): ins[k] = ins.get(k, []) + l
    mf = [mfma32(acc1, A2, MP), mfma32(acc1, A2+4, MP+4), mfma32(D1, XR, bx1, 0)] + [mfma32(D1, A1+4*s, W2F+16+4*s) for s in range(4)]
    for k, m in zip(XP[:7], mf): add(k, [m])
    add(0, e_head(e))
    tr = tr_reads()
    add(XP[1]+1, tr[:2]); add(XP[1]+2, tr[2:])
    add(XP[7], ["s_waitcnt vmcnt(4) lgkmcnt(4)"] + e_sect(e))
    add(XP[8], g_reads(e, isA=isA))
    add(XP[6]+1, a1_reads(e))
    assert XP[7] > XP[2] and XP[7] > XP[1]+2 and XP[8] > XP[7] and XP[6]+1 > XP[8]
    if opt("qtest", 0):
        ins[9] = [mfma32(D1, W2F, A1+8)]; ins[12] = [mfma32(D1, W2F+4, A1+12)]
        del ins[24]; del ins[27]
        ins[13] = [f"ds_read_b64_tr_b16 {vr(A1+8+2*k,2)}, v{RDA+k} offset:{e*4096}" for k in range(4)]
        ins[28] = [f"ds_read_b64_tr_b16 {vr(A1+2*k,2)}, v{RDA+k} offset:{e*4096+64}" for k in range(4)]
        ins[17][0] = "s_waitcnt vmcnt(4) lgkmcnt(8)"
    emit(a, silu_main(D0), ins)

def phase_y(a, p, acc0, bx0):
    e = 1 - p
    ins = {}
    ins[-1] = ["s_waitcnt lgkmcnt(10)"]
    YP = [int(x) for x in opt("yp", "0,3,6,24,27,30,33,1,7,8,10,11").split(",")]
    def add(k, l): ins[k] = ins.get(k, []) + l
    mf = [mfma32(acc0, A2, MP), mfma32(acc0, A2+4, MP+4), mfma32(D0, A1, W2F, 0)] + [mfma32(D0, A1+4*s, W2F+4*s) for s in range(1, 4)] + [mfma32(D0, XR, bx0)]
    add(YP[2], ["s_waitcnt lgkmcnt(0)"])
    for k, m in zip(YP[:7], mf): add(k, [m])
    add(0, g_m0(e))
    add(YP[7], (["s_waitcnt lgkmcnt(5)"] if YP[7] < YP[2] else []) + g_addr())
    for k, d in zip(YP[8:], g_dma()): add(k, [d])
    assert min(YP[8:]) >= YP[2] and min(YP[8:]) >= YP[7]
    if opt("qtest", 0):
        ins[6] = ["s_waitcnt lgkmcnt(0)", mfma32(D0, W2F, A1, 0)]; ins[9] = [mfma32(D0, W2F+4, A1+4)]; ins[12] = [mfma32(D0, XR, bx0)]
        del ins[24]; del ins[27]
    emit(a, silu_main(D1), ins)

def node_sel(a, cond, vnode, vcnt, vtmp):
    a(cond)
    a(f"v_mov_b32 v{vnode}, s{S_NB}"); a(f"v_mov_b32 v{vcnt}, s{S_NA}")
    a(f"v_cndmask_b32 v{vnode}, v{vnode}, v{vcnt}, vcc")
    a(f"v_mov_b32 v{vcnt}, s{S_CB}"); a(f"v_mov_b32 v{vtmp}, s{S_CA}")
    a(f"v_cndmask_b32 v{vcnt}, v{vcnt}, v{vtmp}, vcc")

def cursor_init(a):
    a(f"v_lshlrev_b32 v13, 2, v{LANE}")
    a("s_mov_b64 exec, 0x1ffff"); a(f"ds_write_b32 v13, v{CURB}"); a("s_mov_b64 exec, -1")

def gen(a):
    a(f"{KN}:")
    a("s_cmp_ge_u32 s2, 256")
    a("s_cbranch_scc1 K_END")
    a("s_load_dwordx16 s[32:47], s[0:1], 0")
    a("s_load_dwordx4 s[48:51], s[0:1], 64")
    a("s_load_dwordx2 s[52:53], s[0:1], 80")
    if opt("cpf", 0) == 2:
        a("s_getpc_b64 s[4:5]")
        a("K_PC:")
        a("s_mov_b32 s3, K_END-K_PC-16")
        a("v_lshlrev_b32 v8, 4, v0")
        for k in range(2):
            a(f"v_add_u32 v12, {8192*k}, v8"); a("v_min_u32 v12, s3, v12")
            a(f"global_load_dwordx4 {vr(PD,4)}, v12, s[4:5]")
    stamp(a, 0); stamp(a, 14, True)
    a("s_cmp_eq_u32 s2, 255")
    a(f"s_movk_i32 s4, {NQ - 512}")
    a(f"s_cselect_b32 s4, {NQ_LAST - 512}, s4")
    a(f"s_mul_i32 s3, s2, {CH*4}")
    a("s_lshl_b32 s5, s3, 1")
    a("v_lshlrev_b32 v8, 4, v0")
    a("v_lshlrev_b32 v9, 5, v0")
    a("v_cmp_gt_u32 s[62:63], s4, v0")
    a(f"v_mov_b32 v12, {hex(HUGE)}")
    a("v_add_u32 v10, 0x2000, v8")
    a("v_add_u32 v11, 0x4000, v9")
    a("v_cndmask_b32 v10, v12, v10, s[62:63]")
    a("v_cndmask_b32 v11, v12, v11, s[62:63]")
    a("v_and_b32 v12, 0xff, v0")
    a("v_lshlrev_b32 v12, 2, v12")
    a(f"v_mov_b32 v{ZERO}, 0")
    a(f"ds_write_b32 v12, v{ZERO} offset:{L_HIST}")
    a("s_waitcnt lgkmcnt(0)")
    srd(a, 8, 40, 41, 0, 3200000)
    srd(a, 12, 38, 39, 0, 3200000)
    srd(a, 16, 36, 37, 0, 6400000)
    nt = " nt" if opt("k1nt", 1) else ""
    a(f"buffer_load_dwordx4 v[16:19], v8, s[8:11], s3 offen{nt}")
    a(f"buffer_load_dwordx4 v[20:23], v10, s[8:11], s3 offen{nt}")
    if opt("dstfirst", 0): a("s_barrier")
    a(f"buffer_load_dwordx4 v[24:27], v8, s[12:15], s3 offen{nt}")
    a(f"buffer_load_dwordx4 v[28:31], v10, s[12:15], s3 offen{nt}")
    a(f"buffer_load_dwordx4 v[32:35], v9, s[16:19], s5 offen{nt}")
    a(f"buffer_load_dwordx4 v[36:39], v9, s[16:19], s5 offen offset:16{nt}")
    a(f"buffer_load_dwordx4 v[40:43], v11, s[16:19], s5 offen{nt}")
    a(f"buffer_load_dwordx4 v[44:47], v11, s[16:19], s5 offen offset:16{nt}")
    NC = 0
    if opt("cpf", 0) == 1:
        a("s_getpc_b64 s[4:5]")
        a("K_PC:")
        a("s_mov_b32 s3, K_END-K_PC-16")
        for k in range(2):
            a(f"v_add_u32 v12, {8192*k}, v8"); a("v_min_u32 v12, s3, v12")
            a(f"global_load_dwordx4 {vr(PD,4)}, v12, s[4:5]")
        NC = 2
    if not opt("dstfirst", 0): a("s_barrier")
    a(f"v_and_b32 v{LANE}, 63, v0")
    a("v_lshrrev_b32 v12, 6, v0")
    a(f"v_readfirstlane_b32 s{S_W}, v12")
    RW = 148
    srd(a, S_ACC, 50, 51, 0, 256)
    a("v_mov_b32 v12, 0")
    a("s_cmp_lg_u32 s2, 0"); a("s_cbranch_scc1 K_NOEP")
    a(f"s_cmp_lg_u32 s{S_W}, 7"); a("s_cbranch_scc1 K_NOEP")
    a("s_memrealtime s[4:5]")
    a("s_waitcnt lgkmcnt(0)")
    a("s_or_b32 s4, s4, 1")
    a("v_mov_b32 v13, s4")
    a("s_mov_b64 exec, 1")
    a(f"buffer_store_dword v13, v12, {sr(S_ACC,4)}, 0 offen sc0 sc1")
    a("s_mov_b64 exec, -1")
    a("K_NOEP:")
    a(f"v_mov_b32 v{ZERO+1}, 0")
    a("s_and_b32 s3, s2, 7"); a("s_lshl_b32 s3, s3, 5")
    a(f"s_lshr_b32 s{S_B}, s2, 3"); a(f"s_add_u32 s{S_B}, s{S_B}, s3")
    a(f"s_lshl_b32 s4, s{S_B}, 20"); a(f"s_add_u32 s4, s4, {GMUL-1}")
    a(f"s_mov_b32 s7, {GMAGIC}")
    a(f"v_lshl_add_u32 v12, v{LANE}, 16, s4")
    a("v_add_u32 v13, 0x10000, v12")
    a("v_mul_hi_u32 v12, v12, s7"); a("v_mul_hi_u32 v13, v13, s7")
    a("v_lshrrev_b32 v12, 7, v12"); a("v_lshrrev_b32 v13, 7, v13")
    a("v_min_u32 v13, 25000, v13")
    a(f"s_lshl_b32 s4, s{S_W}, 1"); a("s_add_u32 s5, s4, 1")
    a("v_readlane_b32 s3, v12, 0")
    a(f"v_readlane_b32 s{S_NA}, v12, s4"); a(f"v_readlane_b32 s{S_NB}, v12, s5"); a(f"v_readlane_b32 s{S_CB}, v13, s5")
    a(f"v_mul_u32_u24 v14, 384, v{LANE}")
    a("s_lshl_b32 s3, s3, 7"); a(f"s_sub_u32 s3, {L_REC}, s3")
    a(f"v_lshl_add_u32 v{CURB}, v12, 7, v14"); a(f"v_add_u32 v{CURB}, s3, v{CURB}")
    a(f"v_lshl_add_u32 v{CURL}, v13, 7, v14"); a("s_add_u32 s3, s3, 384"); a(f"v_add_u32 v{CURL}, s3, v{CURL}")
    a(f"v_cmp_gt_u32 vcc, 16, v{LANE}")
    a(f"s_sub_u32 s{S_CB}, s{S_CB}, s{S_NB}"); a(f"s_sub_u32 s{S_CA}, s{S_NB}, s{S_NA}")
    a(f"v_cndmask_b32 v{CURB}, 0, v{CURB}, vcc")
    a(f"v_and_b32 v9, 31, v{LANE}")
    a(f"v_lshrrev_b32 v10, 5, v{LANE}")
    a(f"v_lshlrev_b32 v11, 4, v{LANE}")
    a(f"v_and_b32 v12, 7, v{LANE}")
    node_sel(a, f"v_cmp_gt_u32 vcc, 8, v{LANE}", 13, 14, 15)
    a("v_cmp_lt_u32 vcc, v12, v14")
    a(f"v_cmp_gt_u32 s[60:61], 16, v{LANE}")
    a("v_add_u32 v13, v13, v12"); a("v_mov_b32 v14, 0x7fff")
    a("s_and_b64 vcc, vcc, s[60:61]")
    a(f"v_cndmask_b32 v{PIX}, v14, v13, vcc")
    a(f"v_mul_u32_u24 v{D2}, 6, v{PIX}")
    srd(a, S_POS, 34, 35, 0, 150000)
    N1 = NC
    a("v_and_b32 v12, 3, v9"); a("v_bfe_u32 v13, v9, 3, 1"); a("v_lshl_or_b32 v12, v13, 2, v12")
    node_sel(a, "v_cmp_gt_u32 vcc, 16, v9", 13, 14, 15)
    a("v_and_b32 v15, 4, v9"); a("v_lshl_or_b32 v15, v15, 1, v12")
    a("v_cmp_lt_u32 vcc, v15, v14")
    a("v_add_u32 v13, v13, v12"); a("v_lshlrev_b32 v13, 7, v13"); a("v_lshl_add_u32 v13, v10, 4, v13")
    a(f"v_mov_b32 v14, {hex(HUGE)}")
    a(f"v_cndmask_b32 v{S8}, v14, v13, vcc")
    srd(a, S_H, 32, 33, 0, 3200000)
    srd(a, 56, 42, 43, 0, 133 * 128)
    srd(a, 40, 46, 47, 0, 128 * 128)
    srd(a, S_POSF, 52, 53, WS_POSF, 25000, stride=16)
    srd(a, S_REC, 52, 53, 0, WS_GRAN + 256 * 4096)
    if opt("tlb", 0):
        srd(a, S_OUT, 48, 49, 0, 3350000)
        srd(a, S_WX, 52, 53, 0, WS_POSF + 400000)
        a(f"s_cmp_lg_u32 s{S_W}, 5"); a("s_cbranch_scc1 K_NOTLB")
        a(f"v_lshlrev_b32 v12, {opt('tlb', 0)}, v{LANE}")
        a(f"buffer_load_dword v{PD}, v12, {sr(S_WX,4)}, 0 offen")
        a(f"buffer_load_dword v{PD}, v12, {sr(S_H,4)}, 0 offen")
        a(f"buffer_load_dword v{PD}, v12, {sr(S_OUT,4)}, 0 offen")
        a("K_NOTLB:")
    a("v_mov_b32 v14, 12")
    a(f"s_mul_i32 s54, s2, {CHS}")
    for g in range(2):
        a(f"s_waitcnt vmcnt({N1 + 7 - g})")
        if g == 0: stamp(a, 1)
        if g == 1: a("s_mov_b64 exec, s[62:63]")
        for k in range(4):
            i = 4*g + k
            a(f"v_mul_u32_u24 v{48+i}, {hex(GMUL)}, v{16+i}")
            a(f"v_lshrrev_b32 v{56+i}, 18, v{48+i}")
            a(f"v_and_b32 v{56+i}, 0x3fc, v{56+i}")
            a(f"ds_add_rtn_u32 v{64+i}, v{56+i}, v14 offset:{L_HIST}")
    a("s_mov_b64 exec, -1")
    for j in range(3): a(f"buffer_load_ushort v{RW+8+j}, v{D2}, {sr(S_POS,4)}, 0 offen offset:{2*j}")
    a(f"buffer_load_dword v{RW+12}, v{ZERO}, {sr(S_ACC,4)}, 0 offen sc0 sc1")
    for s in range(4): a(f"buffer_load_dwordx4 {vr(A1+4*s,4)}, v{S8}, {sr(S_H,4)}, 0 offen offset:{32*s}")
    N1 += 8
    if opt("wpf", 1):
        a("s_lshr_b32 s4, s2, 3"); a("s_lshl_b32 s4, s4, 10"); a("s_and_b32 s5, s4, 0x3fff")
        a(f"s_cmp_lg_u32 s{S_W}, 6"); a("s_cbranch_scc1 K_NOWPF")
        a(f"buffer_load_dwordx4 {vr(PD,4)}, v11, s[56:59], s4 offen")
        a(f"buffer_load_dwordx4 {vr(PD,4)}, v11, s[40:43], s5 offen")
        a("K_NOWPF:")
    a("s_mov_b32 s6, 400016")
    for i in range(8):
        a(f"v_and_b32 v{16+i}, 0xffff, v{48+i}")
        a(f"v_mul_hi_u32 v{16+i}, v{16+i}, s6")
        a(f"v_bfe_u32 v{48+i}, v{48+i}, 16, 4")
        a(f"v_lshlrev_b32 v{16+i}, 3, v{16+i}")
        a(f"v_lshl_or_b32 v{16+i}, v{48+i}, 24, v{16+i}")
    a("s_waitcnt lgkmcnt(0)")
    a("s_barrier")
    stamp(a, 2)
    a(f"ds_read_b128 v[72:75], v11 offset:{L_HIST}")
    a(f"s_lshl_b32 s4, s{S_W}, 8")
    a(f"v_lshl_add_u32 v15, v{LANE}, 2, s4")
    a(f"ds_read_b32 v76, v15 offset:{L_HIST}")
    a("s_waitcnt lgkmcnt(1)")
    a("v_add_u32 v49, v72, v73"); a("v_add_u32 v50, v49, v74"); a("v_add_u32 v51, v50, v75")
    a("v_mov_b32 v52, v51")
    for sh in (1, 2, 4, 8): a(f"v_add_u32_dpp v52, v52, v52 row_shr:{sh} row_mask:0xf bank_mask:0xf bound_ctrl:0")
    a("v_add_u32_dpp v52, v52, v52 row_bcast:15 row_mask:0xa bank_mask:0xf")
    a("v_add_u32_dpp v52, v52, v52 row_bcast:31 row_mask:0xc bank_mask:0xf")
    a("v_sub_u32 v52, v52, v51"); a("v_add_u32 v53, v52, v72"); a("v_add_u32 v54, v52, v49"); a("v_add_u32 v55, v52, v50")
    a(f"ds_write_b128 v11, v[52:55] offset:{L_OFFS}")
    a("s_waitcnt lgkmcnt(0)")
    for i in range(8): a(f"ds_read_b32 v{48+i}, v{56+i} offset:{L_OFFS}")
    a(f"ds_read_b32 v77, v15 offset:{L_OFFS}")
    a(f"s_waitcnt vmcnt({N1 + 4})")
    for i in range(8): a(f"v_lshl_or_b32 v{16+i}, v{24+i}, 7, v{16+i}")
    a("s_waitcnt lgkmcnt(0)")
    for i in range(8): a(f"v_add_u32 v{48+i}, v{48+i}, v{64+i}")
    a("v_lshl_or_b32 v76, v76, 16, v77")
    for g in range(2):
        if g == 1: a("s_mov_b64 exec, s[62:63]")
        for k in range(4): a(f"ds_write_b32 v{48+4*g+k}, v{16+4*g+k} offset:{L_STG+8}")
        for k in range(4): a(f"v_add_u32 v{56+4*g+k}, {L_STG}, v{48+4*g+k}")
        a(f"s_waitcnt vmcnt({N1 + 2 - 2*g})")
        for k in range(4):
            i = 4*g + k
            a(f"ds_write2_b32 v{56+i}, v{32+2*i}, v{33+2*i} offset0:0 offset1:1")
    a("s_mov_b64 exec, -1")
    N2 = 9
    a(f"v_cmp_gt_u32 vcc, {CHS//16 - 2048}, v0")
    a(f"v_mov_b32 v12, {hex(HUGE)}")
    a("v_cndmask_b32 v12, v12, v8, vcc")
    a("s_waitcnt vmcnt(5)")
    for j in range(3): a(f"v_lshlrev_b32 v{68+j}, 16, v{RW+8+j}")
    a("v_mov_b32 v71, 0")
    a("s_mov_b64 exec, 0xffff")
    a(f"buffer_store_dwordx4 v[68:71], v{PIX}, {sr(S_POSF,4)}, 0 idxen sc1")
    a("s_mov_b64 exec, -1")
    a("s_movk_i32 s4, 0x2000")
    a(f"buffer_load_dwordx4 {vr(RW,4)}, v8, {sr(56,4)}, s4 offen")
    a("s_movk_i32 s4, 0x4000")
    a(f"buffer_load_dwordx4 {vr(RW+4,4)}, v11, {sr(56,4)}, s4 offen")
    a(f"s_lshl_b32 s5, s{S_W}, 10")
    a(f"s_add_u32 m0, s5, {L_WF + 8192}"); a("s_nop 0")
    a(f"buffer_load_dwordx4 v8, {sr(56,4)}, 0 offen lds")
    a(f"s_add_u32 m0, s5, {L_WH}"); a("s_nop 0")
    a(f"buffer_load_dwordx4 v8, s[40:43], 0 offen lds")
    a(f"s_add_u32 m0, s5, {L_WH + 8192}"); a("s_movk_i32 s4, 0x2000")
    a(f"buffer_load_dwordx4 v8, s[40:43], s4 offen lds")
    stamp(a, 3)
    a("s_waitcnt lgkmcnt(0)")
    a("s_barrier")
    for j in range(5): a(f"ds_read_b128 {vr(16+4*j,4)}, v8 offset:{L_STG + 8192*j}")
    for j in range(5):
        a(f"s_waitcnt lgkmcnt({4-j})")
        a(f"buffer_store_dwordx4 {vr(16+4*j,4)}, v{8 if j < 4 else 12}, {sr(S_REC,4)}, s54 offen {opt('stp', 'sc1').replace('+', ' ')}")
        if j < 4: a("s_add_u32 s54, s54, 8192")
    stamp(a, 4)
    srd(a, S_OUT, 48, 49, 0, 3350000)
    srd(a, S_WX, 44, 45, 0, 128)
    cursor_init(a)
    a(f"s_mov_b32 s{S_LO}, -1"); a(f"s_mov_b32 s{S_LO+1}, 0"); a(f"s_mov_b32 s{S_HI}, 0"); a(f"s_mov_b32 s{S_HI+1}, -1")
    a(f"s_mov_b32 s{S_GM}, 0x3fff80")
    a(f"s_lshl_b32 s{S_TBLA}, s{S_W}, 9"); a(f"s_add_u32 s{S_TBLA}, s{S_TBLA}, {L_TBL}"); a(f"s_add_u32 s{S_TBLB}, s{S_TBLA}, 256")
    a(f"s_lshl_b32 s{S_GB}, s{S_W}, 13"); a(f"s_add_u32 s{S_GB}, s{S_GB}, {L_GB}")
    a(f"s_mov_b32 s{S_WIN}, {32*12}"); a(f"s_mov_b32 s{S_ROUND}, 1"); a(f"s_mov_b32 s{S_PADB}, {L_PAD}"); a(f"s_mov_b32 s{S_PADE}, {L_PAD+128}")
    a(f"s_lshl_b32 s{S_ACCO}, s2, 3"); a(f"s_add_u32 s{S_ACCO}, s{S_ACCO}, s{S_W}"); a(f"s_lshl_b32 s{S_ACCO}, s{S_ACCO}, 14")
    a(f"s_mul_i32 s{S_SEG}, s{S_W}, {32*CHS}")
    a(f"v_mov_b32 v{FOUR}, 4")
    a(f"v_mul_u32_u24 v{I12}, 12, v9"); a(f"v_mul_u32_u24 v{I12H}, {CHS}, v10"); a(f"v_add_u32 v{I12H}, v{I12H}, v{I12}")
    a(f"v_lshlrev_b32 v{BPX}, 2, v10")
    a(f"s_lshl_b32 s4, s{S_W}, 11"); a(f"s_add_u32 s4, s4, {L_IMG}")
    for j in range(4): a(f"v_mov_b32 v{48+j}, 0")
    a("v_add_u32 v12, s4, v11")
    a("ds_write_b128 v12, v[48:51]"); a("ds_write_b128 v12, v[48:51] offset:1024")
    a(f"v_lshl_add_u32 v{IMGB}, v9, 6, s4")
    a(f"v_bfe_u32 v12, v{LANE}, 2, 2"); a("v_lshl_add_u32 v12, v10, 2, v12"); a("v_lshlrev_b32 v12, 6, v12")
    a(f"v_bfe_u32 v13, v{LANE}, 4, 1"); a("v_lshl_add_u32 v12, v13, 5, v12")
    a(f"v_and_b32 v13, 3, v{LANE}"); a("v_lshl_add_u32 v12, v13, 3, v12")
    a(f"v_add_u32 v{TRA}, s4, v12")
    a(f"v_and_b32 v12, 7, v{LANE}"); a("v_lshrrev_b32 v13, 1, v12"); a("v_and_b32 v14, 1, v12"); a("v_lshlrev_b32 v14, 4, v14")
    a("v_mov_b32 v60, 0x3f80"); a("v_lshlrev_b32 v14, v14, v60")
    for j in range(4):
        a(f"v_cmp_eq_u32 vcc, {j}, v13"); a(f"v_cndmask_b32 v{48+j}, 0, v14, vcc")
    a(f"v_bfe_u32 v13, v{LANE}, 3, 1"); a("v_lshlrev_b32 v13, 8, v13"); a("v_lshl_add_u32 v13, v12, 4, v13")
    a(f"v_add_u32 v{TMP}, s{S_TBLA}, v13")
    a("s_mov_b64 exec, 0xffff"); a(f"ds_write_b128 v{TMP}, v[48:51]"); a(f"ds_write_b128 v{TMP}, v[68:71] offset:128"); a("s_mov_b64 exec, -1")
    a(f"v_and_b32 v12, 7, v{LANE}"); a(f"v_bfe_u32 v13, v{LANE}, 4, 1"); a("v_lshlrev_b32 v13, 2, v13"); a("v_xor_b32 v12, v12, v13")
    for j in range(4):
        a(f"v_xor_b32 v13, {j}, v12"); a(f"v_lshlrev_b32 v{COLC+j}, 4, v13")
    a("v_and_b32 v12, 3, v9"); a("v_lshrrev_b32 v13, 2, v9"); a("v_lshl_add_u32 v13, v12, 3, v13"); a("v_lshlrev_b32 v13, 7, v13")
    a(f"v_add_u32 v13, s{S_GB}, v13")
    a("v_bfe_u32 v14, v9, 3, 1"); a("v_lshl_or_b32 v12, v14, 2, v12"); a("v_xor_b32 v12, v12, v10")
    for s in range(4):
        a(f"v_xor_b32 v14, {2*s}, v12"); a(f"v_lshl_add_u32 v{RDA+s}, v14, 4, v13")
    a(f"v_lshrrev_b32 v12, 3, v{LANE}"); a(f"v_lshlrev_b32 v{LANEQ}, 4, v12"); a(f"v_lshlrev_b32 v{LANEE}, 2, v9")
    a(f"v_mov_b32 v12, {hex(PADW)}"); a(f"v_add_u32 v13, s{S_PADB}, v{LANEE}")
    a("ds_write_b32 v13, v12"); a(f"ds_write2st64_b32 v13, v{ZERO}, v{ZERO} offset0:{PO1} offset1:{PO2}")
    a(f"v_mov_b32 v{XR+3}, 0")
    a(f"s_mov_b32 s4, {hex(NLOG2E)}"); a("s_mov_b32 s5, s4")
    a("s_waitcnt vmcnt(8)")
    for j in range(8):
        a(f"v_lshlrev_b32 v{32+2*j}, 16, v{RW+j}"); a(f"v_and_b32 v{33+2*j}, 0xffff0000, v{RW+j}")
    for j in range(8): a(f"v_pk_mul_f32 {vr(32+2*j,2)}, {vr(32+2*j,2)}, s[4:5]")
    for j in range(8): a(f"v_cvt_pk_bf16_f32 v{48+j}, v{32+2*j}, v{33+2*j}")
    a(f"v_add_u32 v16, {L_WF}, v8")
    a("ds_write_b128 v16, v[48:51]")
    for j in range(4):
        a(f"v_lshlrev_b32 v{56+2*j}, 16, v{52+j}"); a(f"v_and_b32 v{57+2*j}, 0xffff0000, v{52+j}")
    for j in range(4): a(f"v_pk_add_f32 {vr(56+2*j,2)}, {vr(40+2*j,2)}, {vr(56+2*j,2)} neg_lo:[0,1] neg_hi:[0,1]")
    for j in range(4): a(f"v_cvt_pk_bf16_f32 v{56+j}, v{56+2*j}, v{57+2*j}")
    a(f"v_add_u32 v16, {L_WF + 16384 - 128}, v11")
    a(f"v_add_u32 v17, {L_WF + 16384 + 512}, v11")
    a("s_mov_b64 exec, 0xff")
    a("ds_write_b128 v17, v[52:55]"); a("ds_write_b128 v17, v[56:59] offset:128")
    a("s_mov_b32 s6, 0xffffff00"); a("s_mov_b32 s7, 0xff0000ff"); a("s_mov_b64 exec, s[6:7]")
    a("ds_write_b128 v16, v[52:55]")
    a("s_mov_b32 s6, 0"); a("s_mov_b32 s7, 0xff000000"); a("s_mov_b64 exec, s[6:7]")
    a("ds_write_b128 v16, v[52:55] offset:128")
    a("s_mov_b64 exec, -1")
    a(f"v_bfe_u32 v18, v{LANE}, 2, 2"); a("v_lshlrev_b32 v16, 7, v18")
    a(f"v_bfe_u32 v18, v{LANE}, 4, 1"); a("v_lshl_add_u32 v16, v18, 5, v16")
    a(f"v_and_b32 v18, 3, v{LANE}"); a("v_lshl_add_u32 v16, v18, 3, v16")
    a(f"v_add_u32 v{VAL}, {L_WF + 16384}, v16")
    a("v_lshl_add_u32 v16, v10, 10, v16"); a(f"v_add_u32 v{VAL+1}, {L_WF}, v16")
    a(f"s_mov_b32 s5, {opt('spin', 200000)}")
    a("K_EPW:")
    a(f"v_readfirstlane_b32 s4, v{RW+12}")
    a("s_cmp_lg_u32 s4, 0"); a("s_cbranch_scc1 K_EPOK")
    a("s_sub_u32 s5, s5, 1"); a("s_cmp_eq_u32 s5, 0"); a("s_cbranch_scc1 K_EPOK")
    a(f"buffer_load_dword v{RW+12}, v{ZERO}, {sr(S_ACC,4)}, 0 offen sc0 sc1")
    a("s_waitcnt vmcnt(0)")
    a("s_branch K_EPW")
    a("K_EPOK:")
    srd(a, S_ACC, 52, 53, WS_ACC, 256 * 8 * 16384)
    a(f"v_mov_b32 v77, v{RW+12}")
    a("s_lshl_b32 s3, s2, 12"); a(f"s_add_u32 s3, s3, {hex(WS_GRAN)}")
    a("v_lshlrev_b32 v15, 2, v15")
    a(f"s_mov_b32 s4, {hex(TAGK)}")
    a("v_not_b32 v79, v77"); a(f"v_xor_b32 v{PS+2}, s4, v77"); a(f"v_xor_b32 v78, v76, v{PS+2}")
    a(f"v_mov_b32 v{PS}, v77"); a(f"v_mov_b32 v{PS+1}, v79")
    a(f"v_lshlrev_b32 v{IMGA}, 12, v9")
    a(f"s_lshl_b32 s5, s{S_W}, 17"); a(f"s_lshl_b32 s6, s{S_B}, 4"); a("s_add_u32 s5, s5, s6"); a(f"s_add_u32 s{S_T3}, s5, {hex(WS_GRAN)}")
    a("s_waitcnt vmcnt(0) lgkmcnt(0)")
    stamp(a, 5)
    a("s_barrier")
    a(f"s_cmp_ge_u32 s{S_W}, 4")
    a("s_cbranch_scc1 K_NOPUB")
    a(f"buffer_store_dwordx4 v[76:79], v15, {sr(S_REC,4)}, s3 offen sc1")
    a("K_NOPUB:")
    HPF = opt("hpf", 0)
    if HPF:
        a("s_lshr_b32 s3, s2, 3"); a("s_mul_i32 s3, s3, 100000")
        for k in range(HPF):
            a(f"buffer_load_dwordx4 {vr(PD,4)}, v8, {sr(S_H,4)}, s3 offen")
            a("s_add_u32 s3, s3, 8192")
    WT = ACCB0
    for f in range(8):
        for kk in range(2): a(f"ds_read_b64_tr_b16 {vr(WT+4*f+2*kk,2)}, v{VAL+1} offset:{8192 + (f&3)*2048 + kk*512 + (f>>2)*64}")
    a("s_waitcnt lgkmcnt(8)")
    for s in range(4): a(mfma32(ACCA0, A1+4*s, WT + 4*s, 0 if s == 0 else None))
    for nh, b in ((0, BXA0), (1, BXA1), (0, BXB0), (1, BXB1)):
        for kk in range(2): a(f"ds_read_b64_tr_b16 {vr(b+2*kk,2)}, v{VAL} offset:{kk*512 + nh*64}")
    a("s_waitcnt lgkmcnt(8)")
    for s in range(4): a(mfma32(ACCA1, A1+4*s, WT + 16 + 4*s, 0 if s == 0 else None))
    a("s_waitcnt lgkmcnt(0)")
    for f in range(8):
        for kk in range(2): a(f"ds_read_b64_tr_b16 {vr(W2F+4*f+2*kk,2)}, v{VAL+1} offset:{(f&3)*2048 + kk*512 + (f>>2)*64}")
    a(f"s_mov_b32 s4, {hex(NLOG2E)}"); a("s_mov_b32 s5, s4")
    a(f"s_mov_b64 exec, {sr(S_LO,2)}")
    for nh, d, ba, bb in ((0, ACCA0, BXA0, BXB0), (1, ACCA1, BXA1, BXB1)):
        for j in range(8): a(f"v_pk_mul_f32 {vr(d+2*j,2)}, {vr(d+2*j,2)}, s[4:5]")
        for j in range(4):
            a(f"v_cvt_pk_bf16_f32 v{ba+j}, v{d+2*j}, v{d+2*j+1}")
            a(f"v_cvt_pk_bf16_f32 v{bb+j}, v{d+8+2*j}, v{d+8+2*j+1}")
    a("s_mov_b64 exec, -1")
    for i in range(64): a(f"v_mov_b32 v{ACCA0+i}, 0")
    stamp(a, 22)
    a(f"v_and_b32 v12, 7, v{LANE}"); a(f"v_and_b32 v13, 8, v{LANE}")
    node_sel(a, "v_cmp_eq_u32 vcc, 0, v13", 13, 14, 15)
    a("v_cmp_lt_u32 vcc, v12, v14")
    a("v_add_u32 v13, v13, v12"); a("v_lshlrev_b32 v13, 7, v13")
    a(f"v_lshrrev_b32 v14, 4, v{LANE}"); a("v_lshl_add_u32 v13, v14, 5, v13")
    a(f"v_mov_b32 v15, {hex(HUGE)}")
    a(f"v_cndmask_b32 v{HA}, v15, v13, vcc")
    a(f"v_bfe_u32 v12, v{LANE}, 2, 2"); a(f"v_lshrrev_b32 v13, 5, v{LANE}"); a("v_lshl_add_u32 v12, v12, 1, v13")
    a(f"v_and_b32 v13, 16, v{LANE}")
    node_sel(a, "v_cmp_eq_u32 vcc, 0, v13", 13, 14, 15)
    a("v_cmp_lt_u32 vcc, v12, v14")
    a("v_add_u32 v13, v13, v12"); a("v_mul_u32_u24 v13, 6, v13")
    a(f"v_and_b32 v14, 3, v{LANE}"); a("v_lshl_add_u32 v13, v14, 1, v13")
    a(f"v_cmp_gt_u32 {sr(S_T0,2)}, 3, v14")
    a(f"v_mov_b32 v15, {hex(HUGE)}")
    a(f"s_and_b64 vcc, vcc, {sr(S_T0,2)}")
    a(f"v_cndmask_b32 v{PA}, v15, v13, vcc")
    VL = S8
    a(f"v_mov_b32 v{SW}, 0"); a("v_mov_b32 v0, 0"); a(f"v_mov_b32 v{VL}, 0")
    a(f"s_mov_b32 s{S_PEND}, -1"); a(f"s_mov_b32 s{S_PEND+1}, 0"); a(f"s_mov_b32 s{S_LEFT}, 0")
    a(f"s_mov_b32 s{S_SPIN}, {opt('spin', 200000)}")
    a(f"s_mov_b32 s{S_SUB}, 0")
    a("s_waitcnt lgkmcnt(0)")
    a("K_POLL:")
    a(f"s_mov_b64 exec, {sr(S_PEND,2)}")
    a(f"buffer_load_dwordx4 {vr(PD,4)}, v{IMGA}, {sr(S_REC,4)}, s{S_T3} offen sc1")
    a("s_waitcnt vmcnt(0)")
    a(f"v_xor_b32 v{PD+2}, v{PD}, v{PD+2}")
    a(f"v_cmp_eq_u32 vcc, v{PD+1}, v{PS}"); a(f"v_cmp_eq_u32 s[60:61], v{PD+3}, v{PS+1}"); a(f"v_cmp_eq_u32 s[58:59], v{PD+2}, v{PS+2}")
    a("s_and_b64 vcc, vcc, s[60:61]"); a("s_and_b64 vcc, vcc, s[58:59]")
    a(f"v_cndmask_b32 v{SW}, v{SW}, v{PD}, vcc")
    a(f"v_cndmask_b32 v0, v0, v{PD}, vcc")
    a("s_mov_b64 exec, -1")
    a(f"s_andn2_b32 s{S_PEND}, s{S_PEND}, vcc_lo")
    a("s_cbranch_scc0 K_ALLIN")
    a(f"s_bcnt1_i32_b32 s4, s{S_PEND}")
    a(f"s_cmp_le_u32 s4, {opt('pth', 0)}")
    a("s_cbranch_scc0 K_PWAIT")
    a("v_cmp_ne_u32 vcc, 0, v0")
    a("s_cmp_lg_u32 vcc_lo, 0")
    a("s_cbranch_scc1 K_ROUND")
    a("K_PWAIT:")
    a(f"s_sub_u32 s{S_SPIN}, s{S_SPIN}, 1")
    a(f"s_cmp_eq_u32 s{S_SPIN}, 0")
    a(f"s_cselect_b32 s{S_PEND}, 0, s{S_PEND}")
    a("s_cbranch_scc1 K_ALLIN")
    if opt("slp", 4): a(f"s_sleep {opt('slp', 4)}")
    a("s_branch K_POLL")
    a("K_ALLIN:")
    if STAMP and STAMP != 4: a(f"v_writelane_b32 v255, s{S_SPIN}, 15")
    stamp(a, 6)
    a("s_branch K_ROUND")
    a("K_RESET:")
    cursor_init(a)
    a(f"v_mov_b32 v0, v{SW}")
    a(f"s_mov_b32 s{S_SUB}, 1")
    a("s_waitcnt lgkmcnt(0)")
    a("s_barrier")
    a("K_ROUND:")
    for p in range(16): a(f"ds_bpermute_b32 v{16+4*p+3}, v{BPX}, v0 offset:{8*p}")
    a(f"s_mov_b32 s3, s{S_SEG}")
    for p in range(16):
        r = 16 + 4*p
        a(f"s_waitcnt lgkmcnt({15-p})")
        a(f"v_cmp_lt_u32_sdwa {sr(S_MASK+2*p,2)}, v{I12}, v{r+3} src0_sel:DWORD src1_sel:WORD_1")
        a(f"v_add_u32_sdwa v{r+3}, v{r+3}, v{I12H} dst_sel:DWORD dst_unused:UNUSED_PAD src0_sel:WORD_0 src1_sel:DWORD")
        a(f"s_or_b64 exec, {sr(S_MASK+2*p,2)}, 1")
        a(f"buffer_load_dwordx3 {vr(r,3)}, v{r+3}, {sr(S_REC,4)}, s3 offen {opt('ldp', 'sc1').replace('+', ' ')}")
        a("s_mov_b64 exec, -1")
        a(f"s_add_u32 s3, s3, {2*CHS}")
    stamp(a, 7)
    a("v_lshrrev_b32 v12, 16, v0")
    a(f"v_cmp_lt_u32 vcc, s{S_WIN}, v12")
    a(f"v_min_u32 v12, s{S_WIN}, v12")
    a("v_add_u32 v0, v0, v12"); a("v_lshlrev_b32 v12, 16, v12"); a("v_sub_u32 v0, v0, v12")
    a(f"s_mov_b32 s{S_MORE}, vcc_lo")
    a(f"v_cndmask_b32 v{VL}, v{VL}, v0, vcc")
    for p in range(16):
        r = 16 + 4*p
        a(f"s_waitcnt vmcnt({15-p + min(p, NPF)})")
        a(f"s_mov_b64 exec, {sr(S_MASK+2*p,2)}")
        a(f"v_bfe_u32 v{r+3}, v{r+2}, 22, 6")
        a(f"ds_add_rtn_u32 v{r+3}, v{r+3}, v{FOUR}")
        if p < NPF:
            a(f"v_and_b32 v{ADQ}, s{S_GM}, v{r+2}")
            a(f"s_or_b64 exec, {sr(S_MASK+2*p,2)}, 1")
            a(f"buffer_load_dword v{S16}, v{ADQ}, {sr(S_H,4)}, 0 offen")
        if p % 4 == 3:
            a("s_waitcnt lgkmcnt(0)")
            for q in range(p-3, p+1):
                rq = 16 + 4*q
                a(f"s_mov_b64 exec, {sr(S_MASK+2*q,2)}")
                a(f"ds_write_b32 v{rq+3}, v{rq+2}")
                a(f"ds_write2st64_b32 v{rq+3}, v{rq}, v{rq+1} offset0:{PO1} offset1:{PO2}")
    a("s_mov_b64 exec, -1")
    a(f"s_cmp_lg_u32 s{S_SUB}, 0")
    a("s_cbranch_scc1 K_LAST")
    a(f"s_or_b32 s{S_LEFT}, s{S_LEFT}, s{S_MORE}")
    a("v_mov_b32 v0, 0")
    a(f"s_cmp_lg_u32 s{S_PEND}, 0")
    a("s_cbranch_scc1 K_POLL")
    a(f"s_cmp_eq_u32 s{S_LEFT}, 0")
    a("s_cbranch_scc1 K_BINNED")
    a(f"v_mov_b32 v0, v{VL}")
    a(f"s_mov_b32 s{S_SUB}, 1")
    a("s_branch K_ROUND")
    a("K_LAST:")
    a(f"s_cmp_eq_u32 s{S_MORE}, 0")
    a("s_cbranch_scc1 K_BINNED")
    a(f"v_mov_b32 v13, {L_FLAG}")
    a(f"ds_write_b32 v13, v{FOUR}")
    a("K_BINNED:")
    stamp(a, 8)
    a(f"buffer_load_dwordx4 {vr(HB,4)}, v{HA}, {sr(S_H,4)}, 0 offen")
    a(f"buffer_load_dwordx4 {vr(HB+4,4)}, v{HA}, {sr(S_H,4)}, 0 offen offset:16")
    a(f"v_lshrrev_b32 v16, 1, v{LANEE}")
    a(f"buffer_load_ushort v{WX0}, v16, {sr(S_WX,4)}, 0 offen")
    a(f"buffer_load_ushort v{WX1}, v16, {sr(S_WX,4)}, 0 offen offset:64")
    a(f"buffer_load_ushort v{PV}, v{PA}, {sr(S_POS,4)}, 0 offen")
    for j in range(4): srd(a, S_HJ+4*j, S_H, S_H+1, -1024*j, 3200000 + 1024*j)
    for i in range(16): a(f"v_mov_b32 v{MP+i}, 0")
    a(f"v_lshlrev_b32 v17, 2, v{LANE}")
    a(f"s_lshl_b32 s4, s{S_W}, 1"); a("s_add_u32 s5, s4, 1")
    a("s_xor_b32 s48, s4, 8"); a("s_xor_b32 s49, s5, 8")
    a(f"v_readlane_b32 s{S_NEXT}, v{CURB}, s4"); a(f"v_readlane_b32 s{S_JUMP}, v{CURB}, s5")
    a(f"v_mov_b32 v19, {hex(PADW)}")
    a(f"s_mov_b32 s{S_TBL}, s{S_TBLA}")
    a("s_waitcnt lgkmcnt(0)")
    a("s_barrier")
    stamp(a, 19)
    a("ds_read_b32 v16, v17")
    a("s_waitcnt lgkmcnt(0)")
    a(f"v_cmp_gt_u32 vcc, v16, v{CURL}")
    a(f"v_sub_u32 v18, v16, v{CURB}"); a("v_add_u32 v18, 127, v18"); a("v_lshrrev_b32 v18, 7, v18")
    a("v_med3_u32 v18, v18, 1, 10")
    a(f"v_readlane_b32 s{S_T0}, v16, s4"); a(f"v_readlane_b32 s{S_T1}, v16, s5"); a(f"v_readlane_b32 s{S_MORE}, v16, 16")
    a(f"v_readlane_b32 s{S_REM}, v18, s4"); a(f"v_readlane_b32 s{S_TB}, v18, s5")
    a("v_readlane_b32 s50, v18, s48"); a("v_readlane_b32 s51, v18, s49")
    a("s_and_b32 s6, vcc_lo, 0xffff")
    a("s_cbranch_scc0 K_FITS")
    a(f"s_cmp_le_u32 s{S_WIN}, 12")
    a("s_cbranch_scc1 K_FITS")
    a("s_barrier")
    a(f"s_lshr_b32 s{S_WIN}, s{S_WIN}, 1")
    a(f"v_mov_b32 v16, {hex(HUGE)}")
    a(f"v_cmp_gt_u32 vcc, s{S_WIN}, v{I12}")
    a(f"v_cndmask_b32 v{I12}, v16, v{I12}, vcc")
    a("s_waitcnt vmcnt(0)")
    a("s_branch K_RESET")
    a("K_FITS:")
    a(f"s_lshl_b32 s4, s{S_REM}, 7"); a(f"s_add_u32 s{S_END}, s4, s{S_NEXT}")
    a(f"s_lshl_b32 s5, s{S_TB}, 7"); a(f"s_add_u32 s{S_END2}, s5, s{S_JUMP}")
    for cur, end, m in ((S_T0, S_END, S_LO), (S_T1, S_END2, S_HI)):
        a(f"v_add_u32 v16, s{cur}, v{LANEE}")
        a(f"v_cmp_gt_u32 vcc, s{end}, v16")
        a(f"s_and_b64 exec, vcc, {sr(m,2)}")
        a("ds_write_b32 v16, v19")
        a(f"ds_write2st64_b32 v16, v{ZERO}, v{ZERO} offset0:{PO1} offset1:{PO2}")
        a("s_mov_b64 exec, -1")
    WQ2 = 20
    for t in g_reads(0, WQ2) + g_reads(1): a(t)
    a(f"v_mov_b32 v{SW}, v0")
    a("s_add_u32 s50, s50, s51"); a(f"s_add_u32 s51, s{S_REM}, s{S_TB}")
    a(f"s_mul_i32 s50, s50, {opt('fa', 125)}"); a(f"s_mul_i32 s51, s51, {opt('fb', 51)}"); a("s_sub_i32 s50, s50, s51"); a(f"s_add_i32 s50, s50, {opt('fc', 16)}")
    a("s_ashr_i32 s50, s50, 7"); a("s_max_i32 s50, s50, 0")
    a("s_lshr_b32 s51, s50, 1")
    a(f"s_sub_i32 s{S_FLIP}, s{S_REM}, s51"); a(f"s_sub_i32 s{S_FLIP}, s{S_FLIP}, 1"); a(f"s_max_i32 s{S_FLIP}, s{S_FLIP}, 0")
    a(f"s_cmp_lt_u32 s{S_W}, 4"); a(f"s_cselect_b32 s{S_FLIP}, -1, s{S_FLIP}")
    a(f"s_mov_b32 s{S_FLIP2}, s{S_FLIP}")
    a("s_bitcmp1_b32 s50, 0"); a(f"s_cselect_b32 s{S_FLIP}, -1, s{S_FLIP}")
    a("s_waitcnt lgkmcnt(2)")
    a(f"v_bfe_u32 v{PIX}, v{W2E}, 7, 15")
    for t in g_addr(WQ2) + g_m0(0): a(t)
    a(f"s_mov_b64 exec, {sr(S_HI,2)}"); a(pos_gather()); a("s_mov_b64 exec, -1")
    for t in g_dma(WQ2): a(t)
    a("s_waitcnt lgkmcnt(0)")
    if opt("g1late", 0): a("s_barrier")
    for t in g_addr() + g_m0(1) + ["s_nop 0"] + g_dma(): a(t)
    stamp(a, 20)
    a(f"s_cmp_eq_u32 s{S_ROUND}, 1")
    a("s_cbranch_scc1 K_FILL2")
    a(f"v_lshlrev_b32 v16, 4, v{LANE}")
    a(f"s_mov_b32 s3, s{S_ACCO}")
    for i in range(16):
        a(f"buffer_load_dwordx4 {vr(ACCA0+4*i,4)}, v16, {sr(S_ACC,4)}, s3 offen offset:{(i%4)*1024} sc0 sc1")
        if i % 4 == 3: a("s_add_u32 s3, s3, 4096")
    a("s_waitcnt vmcnt(0)")
    a("K_FILL2:")
    for t in e_head(0): a(t)
    a("s_waitcnt vmcnt(4) lgkmcnt(0)")
    stamp(a, 21)
    for t in a1_reads(0) + e_sect(0, zero=False) + g_reads(0): a(t)
    a("s_waitcnt lgkmcnt(5)")
    a(mfma32(D0, A1, W2F, 0))
    for s in range(1, 4): a(mfma32(D0, A1+4*s, W2F+4*s))
    a("s_waitcnt lgkmcnt(0)")
    a(mfma32(D0, XR, BXA0))
    for t in g_addr() + g_m0(0) + ["s_nop 0"] + g_dma(): a(t)
    a("s_nop 3")
    if opt("qtest", 0):
        for j in range(8): a(f"v_mov_b32 v{W2F+j}, 0")
        a(f"v_mov_b32 v{W2F+1}, 0x3f80"); a(f"v_mov_b32 v{W2F+6}, 0x3f80")
    stamp(a, 9); stamp(a, 10, True)
    if STAMP and STAMP != 4: a(f"v_writelane_b32 v255, s{S_REM}, 12"); a(f"v_writelane_b32 v255, s{S_TB}, 13"); a("s_mov_b32 s5, 24")
    a("K_XA0:")
    phase_x(a, 0, ACCA1, BXA1, True)
    a(f"s_cmp_eq_u32 s{S_REM}, 0"); a("s_cbranch_scc1 K_YT0")
    phase_y(a, 0, ACCA0, BXA0)
    phase_x(a, 1, ACCA1, BXA1, True)
    a(f"s_cmp_eq_u32 s{S_REM}, 0"); a("s_cbranch_scc1 K_YT1")
    phase_y(a, 1, ACCA0, BXA0)
    a("s_branch K_XA0")
    a("K_YT0:")
    phase_y(a, 0, ACCA0, BXB0)
    phase_x(a, 1, ACCA1, BXB1, False)
    a("s_branch K_YB1")
    a("K_YT1:")
    phase_y(a, 1, ACCA0, BXB0)
    phase_x(a, 0, ACCA1, BXB1, False)
    a("K_YB0:")
    phase_y(a, 0, ACCB0, BXB0)
    a(f"s_sub_u32 s{S_TB}, s{S_TB}, 1"); a(f"s_cmp_eq_u32 s{S_TB}, 0"); a("s_cbranch_scc1 K_DRAIN")
    phase_x(a, 1, ACCB1, BXB1, False)
    a("K_YB1:")
    phase_y(a, 1, ACCB0, BXB0)
    a(f"s_sub_u32 s{S_TB}, s{S_TB}, 1"); a(f"s_cmp_eq_u32 s{S_TB}, 0"); a("s_cbranch_scc1 K_DRAIN")
    phase_x(a, 0, ACCB1, BXB1, False)
    a("s_branch K_YB0")
    a("K_DRAIN:")
    a(mfma32(ACCB1, A2, MP))
    a(mfma32(ACCB1, A2+4, MP+4))
    stamp(a, 16); stamp(a, 11, True)
    a(f"s_cmp_eq_u32 s{S_MORE}, 0")
    a("s_cbranch_scc1 K_EPI")
    a("s_setprio 0")
    a(f"s_mov_b64 exec, {sr(S_HI,2)}"); a(f"ds_write_b64 v{IMGA}, {vr(ZERO,2)}"); a("s_mov_b64 exec, -1")
    a(f"v_lshlrev_b32 v16, 4, v{LANE}")
    a(f"s_mov_b32 s3, s{S_ACCO}")
    a("s_nop 7")
    for i in range(16):
        a(f"buffer_store_dwordx4 {vr(ACCA0+4*i,4)}, v16, {sr(S_ACC,4)}, s3 offen offset:{(i%4)*1024} sc0 sc1")
        if i % 4 == 3: a("s_add_u32 s3, s3, 4096")
    a(f"s_mov_b32 s{S_ROUND}, 2")
    a("s_waitcnt vmcnt(0) lgkmcnt(0)")
    a("s_barrier")
    a("s_branch K_RESET")
    a("K_EPI:")
    whf = lambda f: (16 + 4*f) if f < 12 else (80 + 4*(f-12))
    MB = 108; DO = 116; AD = 100
    a(f"v_lshrrev_b32 v{AD}, 4, v{LANE}"); a(f"v_lshlrev_b32 v{AD}, 4, v{AD}")
    a(f"v_bfe_u32 v{AD+1}, v{LANE}, 2, 2"); a(f"v_add_u32 v{AD}, v{AD}, v{AD+1}"); a(f"v_lshlrev_b32 v{AD}, 7, v{AD}")
    a(f"v_and_b32 v{AD+1}, 3, v{LANE}"); a(f"v_lshl_add_u32 v{AD}, v{AD+1}, 5, v{AD}"); a(f"v_add_u32 v{AD}, {L_WH}, v{AD}")
    a(f"s_mov_b32 s4, {hex(NLN2)}")
    a(f"v_lshrrev_b32 v{AD+2}, 5, v{LANE}"); a(f"v_lshlrev_b32 v{AD+2}, 7, v{AD+2}"); a(f"v_lshrrev_b32 v{AD+3}, 1, v{LANEE}")
    a(f"s_lshl_b32 s5, s{S_W}, 11"); a(f"s_add_u32 s5, s5, {L_IMG}")
    a(f"v_add3_u32 v{AD+2}, v{AD+2}, v{AD+3}, s5")
    a(f"v_and_b32 v{AD+3}, 15, v{LANE}"); a(f"v_lshlrev_b32 v{AD+3}, 7, v{AD+3}"); a(f"v_lshrrev_b32 v{AD+4}, 4, v{LANE}")
    a(f"v_lshl_add_u32 v{AD+3}, v{AD+4}, 5, v{AD+3}"); a(f"v_add_u32 v{AD+3}, s5, v{AD+3}")
    for s in range(4):
        for t in range(4):
            for kk in range(2):
                a(f"ds_read_b64_tr_b16 {vr(whf(t*4+s)+2*kk,2)}, v{AD} offset:{(s>>1)*8192 + (s&1)*1024 + kk*512 + t*8}")
        g, (c0, c1) = list(enumerate(((ACCA0, ACCA1), (ACCB0, ACCB1))))[s >> 1]
        for q in range(2*(s&1), 2*(s&1)+2):
            a(f"v_mul_f32 v{c0+4*q}, s4, v{c0+4*q}"); a(f"v_mul_f32 v{c1+4*q}, s4, v{c1+4*q}")
            a(f"v_cvt_pk_bf16_f32 v{c0+4*q}, v{c0+4*q}, v{c1+4*q}")
            a(f"ds_write_b16 v{AD+2}, v{c0+4*q} offset:{g*1024 + q*256}")
            a(f"ds_write_b16_d16_hi v{AD+2}, v{c0+4*q} offset:{g*1024 + q*256 + 64}")
    a(f"ds_read_b128 {vr(MB,4)}, v{AD+3}"); a(f"ds_read_b128 {vr(MB+4,4)}, v{AD+3} offset:16")
    for w in (WX0, WX1): a(f"v_lshlrev_b32 v{w}, 16, v{w}"); a(f"v_mul_f32 v{w}, s4, v{w}")
    for (c0, c1) in ((ACCA0, ACCA1), (ACCB0, ACCB1)):
        for q in range(4):
            for k in (1, 2, 3):
                a(f"v_mul_f32 v{c0+4*q+k}, v{WX0}, v{c0+4*q+k}"); a(f"v_fmac_f32 v{c0+4*q+k}, v{WX1}, v{c1+4*q+k}")
    a("s_waitcnt lgkmcnt(0)")
    bsrc = (HB, HB+4, MB, MB+4)
    mf = []
    for s in range(4):
        for t in range(4):
            c = "0" if s == 0 else vr(DO+4*t, 4)
            mf.append(f"v_mfma_f32_16x16x32_bf16 {vr(DO+4*t,4)}, {vr(whf(t*4+s),4)}, {vr(bsrc[s],4)}, {c}")
    red = []
    for q in range(4):
        for k in (1, 2, 3): red.append(f"v_permlane16_swap_b32 v{ACCA0+4*q+k}, v{ACCB0+4*q+k}")
    for q in range(4):
        for k in (1, 2, 3): red.append(f"v_add_f32 v{ACCA0+4*q+k}, v{ACCA0+4*q+k}, v{ACCB0+4*q+k}")
    for q in range(2):
        for k in (1, 2, 3):
            red.append(f"v_add_f32_dpp v{ACCA1+4*q+k}, v{ACCA0+4*q+k}, v{ACCA0+4*q+k} row_ror:8 row_mask:0xf bank_mask:0x3")
            red.append(f"v_add_f32_dpp v{ACCA1+4*q+k}, v{ACCA0+4*q+8+k}, v{ACCA0+4*q+8+k} row_ror:8 row_mask:0xf bank_mask:0xc")
    for i, m in enumerate(mf):
        a(m)
        for t in red[2*i:2*i+2]: a(t)
    for t in red[32:]: a(t)
    for k in (1, 2, 3):
        a(f"v_add_f32_dpp v{ACCB1+k}, v{ACCA1+k}, v{ACCA1+k} row_shl:4 row_mask:0xf bank_mask:0x5")
        a(f"v_add_f32_dpp v{ACCB1+k}, v{ACCA1+4+k}, v{ACCA1+4+k} row_shr:4 row_mask:0xf bank_mask:0xa")
    for perm in ("[1,0,3,2]", "[2,3,0,1]"):
        for k in (1, 2, 3): a(f"v_add_f32_dpp v{ACCB1+k}, v{ACCB1+k}, v{ACCB1+k} quad_perm:{perm} row_mask:0xf bank_mask:0xf")
    a(f"v_cmp_eq_u32 vcc, 1, v{AD+1}"); a(f"v_lshlrev_b32 v{PV}, 16, v{PV}"); a(f"s_mov_b32 s4, {hex(NLOG2E)}")
    a(f"v_cndmask_b32 v{AD+5}, v{ACCB1+1}, v{ACCB1+2}, vcc")
    a(f"v_cmp_eq_u32 vcc, 2, v{AD+1}"); a("s_mov_b32 s5, s4"); a("s_mov_b32 s3, 3200000")
    a(f"v_cndmask_b32 v{AD+5}, v{AD+5}, v{ACCB1+3}, vcc")
    a(f"v_add_f32 v{AD+5}, v{AD+5}, v{PV}"); a(f"v_cvt_pk_bf16_f32 v{AD+5}, v{AD+5}, v{AD+5}")
    a(f"buffer_store_short v{AD+5}, v{PA}, {sr(S_OUT,4)}, s3 offen {OP}")
    E = 148
    for j in range(8): a(f"v_pk_mul_f32 {vr(E+2*j,2)}, {vr(DO+2*j,2)}, s[4:5]")
    for j in range(16): a(f"v_exp_f32 v{E+j}, v{E+j}")
    for j in range(8): a(f"v_pk_add_f32 {vr(E+2*j,2)}, {vr(E+2*j,2)}, 1.0 op_sel_hi:[1,0]")
    for j in range(16): a(f"v_rcp_f32 v{E+j}, v{E+j}")
    for j in range(8):
        a(f"v_lshlrev_b32 v{E+16+2*j}, 16, v{HB+j}"); a(f"v_and_b32 v{E+17+2*j}, 0xffff0000, v{HB+j}")
    for j in range(8): a(f"v_pk_fma_f32 {vr(E+2*j,2)}, {vr(E+2*j,2)}, {vr(DO+2*j,2)}, {vr(E+16+2*j,2)}")
    for j in range(8): a(f"v_cvt_pk_bf16_f32 v{E+32+j}, v{E+2*j}, v{E+2*j+1}")
    a(f"buffer_store_dwordx4 {vr(E+32,4)}, v{HA}, {sr(S_OUT,4)}, 0 offen {OP}")
    a(f"buffer_store_dwordx4 {vr(E+36,4)}, v{HA}, {sr(S_OUT,4)}, 0 offen offset:16 {OP}")
    stamp(a, 17)
    if STAMP: a("s_waitcnt vmcnt(0)")
    stamp(a, 18)
    stamp_out(a)
    a("K_END:")
    a("s_endpgm")

def main():
    ref = open(f"cdna_kernels/{NAME}.s.ref").read().split("\n")
    head = [l for l in ref if l.startswith(";") and "@launch" not in l and not l.startswith("; Override") and not l.startswith("; grid=")]
    out = "\n".join(head) + "\n"
    if opt("aslist", 0): out += f"; @launch kernel={KN} grid=(256,1,1) block=(512,1,1) lds={LDS}\n"
    else: out += f"; @launch grid=(256,1,1) block=(512,1,1) lds={LDS}\n"
    out += '.amdgcn_target "amdgcn-amd-amdhsa--gfx950"\n.text\n'
    a = Asm(); gen(a)
    for b in a.check_edges(): print("EDGE HAZARD", b, file=sys.stderr)
    out += f".globl {KN}\n.p2align 8\n.type {KN},@function\n" + a.text()
    out += f""".section .rodata,"a"
.p2align 6
.amdhsa_kernel {KN}
  .amdhsa_next_free_vgpr 256
  .amdhsa_next_free_sgpr 102
  .amdhsa_accum_offset 256
  .amdhsa_group_segment_fixed_size 0
  .amdhsa_kernarg_size 88
  .amdhsa_user_sgpr_count 2
  .amdhsa_user_sgpr_kernarg_segment_ptr 1
  .amdhsa_system_sgpr_workgroup_id_x 1
  .amdhsa_float_denorm_mode_32 3
.end_amdhsa_kernel
"""
    open(sys.argv[1], "w").write(out)
main()
```

```python
import sys, math, struct
from asmlib import Asm

NAME = "gather_scatter__cheap_equivariant_egnn__graph"
KN = NAME + "_kernel"
def f32bits(x): return struct.unpack("<I", struct.pack("<f", x))[0]
NLOG2E = f32bits(-math.log2(math.e)); NLN2 = f32bits(-math.log(2.0))
OPT = dict(a.split("=") for a in sys.argv[2:]) if len(sys.argv) > 2 else {}
def opt(k, d): return type(d)(OPT.get(k, d))
STAMP = opt("stamp", 0)

CH = 3128; CHB = CH * 12; CHS = opt('chs', 37632); NQ = CH // 4; NQ_LAST = (800000 - 255 * CH) // 4
WS_GRAN = 0x00A00000; WS_POSF = 0x00B00000; WS_ACC = 0x01000000; WS_STAMP = 0x08000000
GMUL = 10737; GMAGIC = 51201995
L_CUR = 0; L_FLAG = 64; L_EPOCH = 68; L_TBL = 0x100; L_IMG = 0x1100; L_GB = 0x5100
L_WH = L_GB + 8 * 8192
L_REC = L_WH + 16384
PADO = 128 * 98 + 384 * 16; PLANE = 18944; PO1 = PLANE // 256; PO2 = 2 * PO1
L_PAD = L_REC + PADO
LDS = L_REC + 3 * PLANE
L_STG = L_GB; L_HIST = L_GB + 37632; L_OFFS = L_HIST + 1024; L_WF = L_GB + 40960
assert LDS <= 163840 and PADO + 128 <= PLANE and L_GB % 256 == 0
PADW = (32767 << 7) | (7 << 3)
HUGE = 0x40000000
TAGK = 0x9E3779B9

D0 = 16; D1 = 32; T = 48; MP = 64; A2 = 72; A1 = 80; XR = 96
W2F = 100; BXA0 = 132; BXA1 = 136; BXB0 = 140; BXB1 = 144
ACCA0 = 148; ACCA1 = 164; ACCB0 = 180; ACCB1 = 196
COLC = 212; RDA = 216; TRA = 220; IMGB = 221; LANEQ = 222; LANEE = 223
WQ = 224; W2E = 228; ADE = 230; PS = 232; CURB = 235; HA = 236; PA = 237; PV = 238; CURL = 239
PD = 240; WX0 = 243; VAL = 244; IMGA = 246; S8 = 247; S16 = 248; ADQ = 249
ZERO = 250; D2 = 252; PIX = 253; WX1 = 254
LANE = 1; SW = 2; I12 = 3; I12H = 4; BPX = 5; FOUR = 6; TMP = 7; HB = 8
S_H = 8; S_POSF = 12; S_REC = 16; S_POS = 20; S_OUT = 24; S_ACC = 28; S_MASK = 32; S_HJ = 32
S_W = 64; S_B = 65; S_NA = 66; S_NB = 67; S_CA = 68; S_CB = 69
S_LO = 70; S_HI = 72; S_GM = 74; S_TBL = 75; S_TBLA = 76; S_TBLB = 77
S_NEXT = 78; S_END = 79; S_JUMP = 80; S_END2 = 81; S_PADB = 82; S_PADE = 83
S_REM = 84; S_TB = 85; S_GB = 86; S_WIN = 87; S_ROUND = 88; S_MORE = 89; S_T0 = 90; S_T1 = 91; S_T3 = 92
S_SEG = 93; S_ACCO = 94; S_FLIP = 95; S_WX = 96; S_SUB = 100; S_SPIN = 101; S_FLIP2 = 101; S_HA = 52; S_HB = 53; S_QA = 56; S_PEND = 78; S_LEFT = 80

def vr(b, n): return f"v[{b}:{b+n-1}]"
def sr(b, n): return f"s[{b}:{b+n-1}]"
def srd(a, d, lo, hi, off, num, stride=0):
    if off > 0:
        a(f"s_add_u32 s{d}, s{lo}, {hex(off)}"); a(f"s_addc_u32 s{d+1}, s{hi}, 0")
    elif off < 0:
        a(f"s_sub_u32 s{d}, s{lo}, {hex(-off)}"); a(f"s_subb_u32 s{d+1}, s{hi}, 0")
    else:
        a(f"s_mov_b32 s{d}, s{lo}"); a(f"s_mov_b32 s{d+1}, s{hi}")
    if stride: a(f"s_or_b32 s{d+1}, s{d+1}, {hex(stride << 16)}")
    a(f"s_mov_b32 s{d+2}, {hex(num)}"); a(f"s_mov_b32 s{d+3}, 0x20000")
def stamp(a, idx, cyc=False):
    if not STAMP: return
    if STAMP == 4:
        if cyc or idx in (0, 18, 20, 21, 22): return
        idx = {16: 10, 17: 11, 19: 12}.get(idx, idx)
    a(f"{'s_memtime' if cyc else 's_memrealtime'} s[6:7]"); a("s_waitcnt lgkmcnt(0)"); a(f"v_writelane_b32 v255, s6, {idx}")
def stamp_out(a):
    if not STAMP: return
    if STAMP == 4:
        a("s_mov_b64 exec, -1")
        a("s_load_dwordx2 s[32:33], s[0:1], 72"); a("s_waitcnt lgkmcnt(0)")
        srd(a, 36, 32, 33, 0, 256)
        a(f"buffer_load_dword v17, v{ZERO}, s[36:39], 0 offen sc0 sc1")
        a("v_readlane_b32 s4, v255, 9"); a("v_readlane_b32 s5, v255, 10"); a("v_readlane_b32 s6, v255, 6")
        a("s_waitcnt vmcnt(0)")
        a("v_readfirstlane_b32 s7, v17")
        a("s_lshl_b32 s32, s7, 1"); a("s_add_u32 s32, s32, 10000")
        a("s_sub_u32 s4, s32, s4"); a("s_sub_u32 s5, s32, s5"); a("s_sub_u32 s6, s32, s6")
        a("v_writelane_b32 v255, s4, 13"); a("v_writelane_b32 v255, s5, 14"); a("v_writelane_b32 v255, s6, 15")
        a("v_sub_u32 v255, v255, v17")
        a(f"v_lshlrev_b32 v16, 2, v{LANE}")
        a("s_mov_b64 exec, 0xfffe")
        a("buffer_atomic_umax v255, v16, s[36:39], 0 offen sc1")
        return
    a("s_mov_b64 exec, -1")
    a("s_load_dwordx2 s[32:33], s[0:1], 80"); a("s_waitcnt lgkmcnt(0)")
    srd(a, 36, 32, 33, WS_STAMP, 1 << 22)
    a("s_lshl_b32 s32, s2, 4"); a(f"s_add_u32 s32, s32, s{S_W}"); a("s_lshl_b32 s32, s32, 8")
    a(f"v_lshlrev_b32 v16, 2, v{LANE}")
    a("buffer_store_dword v255, v16, s[36:39], s32 offen")

def mfma32(d, a_, b_, c=None):
    return f"v_mfma_f32_32x32x16_bf16 {vr(d,16)}, {vr(a_,4)}, {vr(b_,4)}, {'0' if c == 0 else vr(d,16)}"
def silu_main(d, n=16):
    m = [f"v_exp_f32 v{T+j}, v{d+j}" for j in range(n)]
    m += [f"v_pk_add_f32 {vr(T+2*j,2)}, {vr(T+2*j,2)}, 1.0 op_sel_hi:[1,0]" for j in range(n//2)]
    m += [f"v_rcp_f32 v{T+j}, v{T+j}" for j in range(n)]
    m += [f"v_pk_mul_f32 {vr(T+2*j,2)}, {vr(T+2*j,2)}, {vr(d+2*j,2)}" for j in range(n//2)]
    m += [f"v_cvt_pk_bf16_f32 v{MP+j}, v{T+2*j}, v{T+2*j+1}" for j in range(n//2)]
    return m
def emit(a, main, ins):
    for t in ins.get(-1, []): a(t)
    for i, m in enumerate(main):
        a(m)
        for t in ins.get(i, []): a(t)
def gstate(isA=True):
    o = [f"s_add_u32 s{S_NEXT}, s{S_NEXT}, 128", f"s_cmp_eq_u32 s{S_NEXT}, s{S_END}",
         f"s_cselect_b32 s{S_NEXT}, s{S_JUMP}, s{S_NEXT}", f"s_cselect_b32 s{S_END}, s{S_END2}, s{S_END}"]
    if isA: o += [f"s_cselect_b32 s{S_JUMP}, s{S_PADB}, s{S_JUMP}", f"s_cselect_b32 s{S_END2}, s{S_PADE}, s{S_END2}"]
    return o
def g_reads(e, wq=WQ, isA=True):
    return [f"v_add_u32 v{ADQ}, s{S_NEXT}, v{LANEQ}", f"v_add_u32 v{ADE+e}, s{S_NEXT}, v{LANEE}",
            f"ds_read_b128 {vr(wq,4)}, v{ADQ}", f"ds_read_b32 v{W2E+e}, v{ADE+e}"] + gstate(isA)
def g_addr(wq=WQ): return [f"v_and_or_b32 v{wq+j}, v{wq+j}, s{S_GM}, v{COLC+j}" for j in range(4)]
def g_m0(e): return [f"s_add_u32 m0, s{S_GB}, {e*4096}"]
def g_dma(wq=WQ): return [f"buffer_load_dwordx4 v{wq+j}, {sr(S_HJ+4*j,4)}, 0 offen offset:{j*1024} {opt('gp', '')} lds" for j in range(4)]
def pos_gather(): return f"buffer_load_dwordx3 {vr(PS,3)}, v{PIX}, {sr(S_POSF,4)}, 0 idxen sc1"
def e_head(e):
    return [f"v_and_b32 v{S8}, 0x38, v{W2E+e}", f"v_lshl_add_u32 v{S16}, v{S8}, 1, s{S_TBL}", f"ds_read_b96 {vr(PD,3)}, v{S16} offset:128",
            f"v_bfe_u32 v{PIX}, v{W2E+1-e}, 7, 15"]
def e_sect(e, zero=True):
    o = [f"s_mov_b64 exec, {sr(S_LO,2)}", f"ds_read_b128 {vr(XR,4)}, v{S16}", f"s_mov_b64 exec, {sr(S_HI,2)}"]
    o += [f"v_sub_f32 v{PD+k}, v{PD+k}, v{PS+k}" for k in range(3)]
    o += [f"v_cvt_pk_bf16_f32 v{VAL}, 1.0, v{PD}", f"v_cvt_pk_bf16_f32 v{VAL+1}, v{PD+1}, v{PD+2}",
          f"v_dot2_f32_bf16 v{D2}, v{VAL}, v{VAL}, -1.0", f"v_dot2_f32_bf16 v{D2}, v{VAL+1}, v{VAL+1}, v{D2}",
          f"ds_read2st64_b32 {vr(XR,2)}, v{ADE+e} offset0:{PO1} offset1:{PO2}"]
    if zero: o += [f"ds_write_b64 v{IMGA}, {vr(ZERO,2)}"]
    o += [f"v_add_u32 v{IMGA}, v{S8}, v{IMGB}", f"ds_write_b64 v{IMGA}, {vr(VAL,2)}", pos_gather(),
          f"v_cvt_pk_bf16_f32 v{XR+2}, v{D2}, v{D2}", "s_mov_b64 exec, -1"]
    return o
def a1_reads(e): return [f"ds_read_b128 {vr(A1+4*s,4)}, v{RDA+s} offset:{e*4096}" for s in range(4)]
def tr_reads(): return [f"ds_read_b64_tr_b16 {vr(A2+2*k,2)}, v{TRA} offset:{k*512}" for k in range(4)]

OP = opt('op', 'nt').replace('+', ' ')
NPF = opt('npf', 0)
PRIO = opt("prio", 2)
_lbl = [0]
XPOS = {16: "0,3,24,27,30,33,36,25,26", 12: "0,3,6,18,21,24,36,11,13", 8: "0,3,12,15,18,24,26,13,14", 4: "0,3,6,9,12,13,13,7,8"}
YPOS = {16: "0,3,6,24,27,30,33,1,7,8,10,11", 12: "0,3,6,18,21,24,36,1,7,8,10,11", 8: "0,0,4,12,15,18,24,1,5,6,7,13", 4: "0,0,2,6,9,12,13,1,3,6,7,8"}
def phase_x(a, p, acc1, bx1, isA, n=16, last=False):
    e = 1 - p
    ins = {}; pre = []
    def add(k, l): ins[k] = ins.get(k, []) + l
    if isA:
        pre += [f"s_sub_u32 s{S_REM}, s{S_REM}, 1", f"s_cmp_eq_u32 s{S_REM}, 0", f"s_cselect_b32 s{S_TBL}, s{S_TBLB}, s{S_TBLA}"]
        if PRIO == 2:
            _lbl[0] += 1; L = f"KP{_lbl[0]}"
            add(2, [f"s_cmp_lg_u32 s{S_REM}, s{S_FLIP}", f"s_cbranch_scc1 {L}", "s_setprio 1", f"{L}:"])
            _lbl[0] += 1; L = f"KP{_lbl[0]}"
            add(n*7//2 - 2, [f"s_cmp_lg_u32 s{S_REM}, s{S_FLIP2}", f"s_cbranch_scc1 {L}", "s_setprio 1", f"{L}:"])
    if STAMP == 2:
        pre += ["s_memtime s[6:7]", "s_waitcnt lgkmcnt(0)", "s_mov_b32 m0, s5", "s_add_u32 s5, s5, 1", "v_writelane_b32 v255, s6, m0"]
    if STAMP == 3:
        pre += ["s_memtime s[6:7]", "s_memrealtime s[54:55]", "s_waitcnt lgkmcnt(0)", "s_mov_b32 m0, s5", "s_add_u32 s5, s5, 1", "v_writelane_b32 v255, s6, m0",
                "s_mov_b32 m0, s5", "s_add_u32 s5, s5, 1", "v_writelane_b32 v255, s54, m0"]
    ins[-1] = pre
    XP = [int(x) for x in opt(f"xp{n}", XPOS[n]).split(",")]
    mf = [mfma32(acc1, A2, MP), mfma32(acc1, A2+4, MP+4), mfma32(D1, XR, bx1, 0)] + [mfma32(D1, A1+4*s, W2F+16+4*s) for s in range(4)]
    for k, m in zip(XP[:7], mf): add(k, [m])
    tr = tr_reads()
    add(XP[1]+1, tr[:2]); add(XP[1]+2, tr[2:])
    if not last:
        add(0, e_head(e))
        add(XP[7], ["s_waitcnt vmcnt(4) lgkmcnt(4)"] + e_sect(e))
        add(XP[8], g_reads(e, isA=isA))
        add(min(XP[6]+1, n*7//2 - 1), a1_reads(e))
    assert XP[7] > XP[2] and XP[7] > XP[1]+2 and XP[8] > XP[7] and XP[6]+1 > XP[8]
    emit(a, silu_main(D0, n), ins)

def phase_y(a, p, acc0, bx0, n=16, last=False):
    e = 1 - p
    ins = {}
    def add(k, l): ins[k] = ins.get(k, []) + l
    ins[-1] = ["s_waitcnt lgkmcnt(0)" if last else "s_waitcnt lgkmcnt(10)"]
    YP = [int(x) for x in opt(f"yp{n}", YPOS[n]).split(",")]
    mf = [mfma32(acc0, A2, MP), mfma32(acc0, A2+4, MP+4), mfma32(D0, A1, W2F, 0)] + [mfma32(D0, A1+4*s, W2F+4*s) for s in range(1, 4)] + [mfma32(D0, XR, bx0)]
    if not last: add(YP[2], ["s_waitcnt lgkmcnt(0)"])
    for i, (k, m) in enumerate(zip(YP[:7], mf)):
        if (n <= 8 and i == 1) or (last and i >= 2): continue
        add(k, [m])
    if not last:
        add(0, g_m0(e))
        add(YP[7], (["s_waitcnt lgkmcnt(5)"] if YP[7] < YP[2] else []) + g_addr())
        for k, d in zip(YP[8:], g_dma()): add(k, [d])
    assert min(YP[8:]) >= YP[2] and min(YP[8:]) >= YP[7]
    emit(a, silu_main(D1, n), ins)

def node_sel(a, cond, vnode, vcnt, vtmp):
    a(cond)
    a(f"v_mov_b32 v{vnode}, s{S_NB}"); a(f"v_mov_b32 v{vcnt}, s{S_NA}")
    a(f"v_cndmask_b32 v{vnode}, v{vnode}, v{vcnt}, vcc")
    a(f"v_mov_b32 v{vcnt}, s{S_CB}"); a(f"v_mov_b32 v{vtmp}, s{S_CA}")
    a(f"v_cndmask_b32 v{vcnt}, v{vcnt}, v{vtmp}, vcc")

def cursor_init(a):
    a(f"v_lshlrev_b32 v13, 2, v{LANE}")
    a("s_mov_b64 exec, 0x1ffff"); a(f"ds_write_b32 v13, v{CURB}"); a("s_mov_b64 exec, -1")

def gen(a):
    a(f"{KN}:")
    a("s_cmp_ge_u32 s2, 256")
    a("s_cbranch_scc1 K_END")
    a("s_load_dwordx16 s[32:47], s[0:1], 0")
    a("s_load_dwordx4 s[48:51], s[0:1], 64")
    a("s_load_dwordx2 s[52:53], s[0:1], 80")
    if opt("cpf", 0) == 2:
        a("s_getpc_b64 s[4:5]")
        a("K_PC:")
        a("s_mov_b32 s3, K_END-K_PC-16")
        a("v_lshlrev_b32 v8, 4, v0")
        for k in range(2):
            a(f"v_add_u32 v12, {8192*k}, v8"); a("v_min_u32 v12, s3, v12")
            a(f"global_load_dwordx4 {vr(PD,4)}, v12, s[4:5]")
    stamp(a, 0); stamp(a, 14, True)
    a("s_cmp_eq_u32 s2, 255")
    a(f"s_movk_i32 s4, {NQ - 512}")
    a(f"s_cselect_b32 s4, {NQ_LAST - 512}, s4")
    a(f"s_mul_i32 s3, s2, {CH*4}")
    a("s_lshl_b32 s5, s3, 1")
    a("v_lshlrev_b32 v8, 4, v0")
    a("v_lshlrev_b32 v9, 5, v0")
    a("v_cmp_gt_u32 s[62:63], s4, v0")
    a(f"v_mov_b32 v12, {hex(HUGE)}")
    a("v_add_u32 v10, 0x2000, v8")
    a("v_add_u32 v11, 0x4000, v9")
    a("v_cndmask_b32 v10, v12, v10, s[62:63]")
    a("v_cndmask_b32 v11, v12, v11, s[62:63]")
    a("v_and_b32 v12, 0xff, v0")
    a("v_lshlrev_b32 v12, 2, v12")
    a(f"v_mov_b32 v{ZERO}, 0")
    a(f"ds_write_b32 v12, v{ZERO} offset:{L_HIST}")
    a("s_waitcnt lgkmcnt(0)")
    srd(a, 8, 40, 41, 0, 3200000)
    srd(a, 12, 38, 39, 0, 3200000)
    srd(a, 16, 36, 37, 0, 6400000)
    nt = " nt" if opt("k1nt", 1) else ""
    a(f"buffer_load_dwordx4 v[16:19], v8, s[8:11], s3 offen{nt}")
    a(f"buffer_load_dwordx4 v[20:23], v10, s[8:11], s3 offen{nt}")
    if opt("dstfirst", 0): a("s_barrier")
    a(f"buffer_load_dwordx4 v[24:27], v8, s[12:15], s3 offen{nt}")
    a(f"buffer_load_dwordx4 v[28:31], v10, s[12:15], s3 offen{nt}")
    a(f"buffer_load_dwordx4 v[32:35], v9, s[16:19], s5 offen{nt}")
    a(f"buffer_load_dwordx4 v[36:39], v9, s[16:19], s5 offen offset:16{nt}")
    a(f"buffer_load_dwordx4 v[40:43], v11, s[16:19], s5 offen{nt}")
    a(f"buffer_load_dwordx4 v[44:47], v11, s[16:19], s5 offen offset:16{nt}")
    NC = 0
    if opt("cpf", 0) == 1:
        a("s_getpc_b64 s[4:5]")
        a("K_PC:")
        a("s_mov_b32 s3, K_END-K_PC-16")
        for k in range(2):
            a(f"v_add_u32 v12, {8192*k}, v8"); a("v_min_u32 v12, s3, v12")
            a(f"global_load_dwordx4 {vr(PD,4)}, v12, s[4:5]")
        NC = 2
    if not opt("dstfirst", 0): a("s_barrier")
    a(f"v_and_b32 v{LANE}, 63, v0")
    a("v_lshrrev_b32 v12, 6, v0")
    a(f"v_readfirstlane_b32 s{S_W}, v12")
    RW = 148
    srd(a, S_ACC, 50, 51, 0, 256)
    a("v_mov_b32 v12, 0")
    a("s_cmp_lg_u32 s2, 0"); a("s_cbranch_scc1 K_NOEP")
    a(f"s_cmp_lg_u32 s{S_W}, 7"); a("s_cbranch_scc1 K_NOEP")
    a("s_memrealtime s[4:5]")
    a("s_waitcnt lgkmcnt(0)")
    a("s_or_b32 s4, s4, 1")
    a("v_mov_b32 v13, s4")
    a("s_mov_b64 exec, 1")
    a(f"buffer_store_dword v13, v12, {sr(S_ACC,4)}, 0 offen sc0 sc1")
    a("s_mov_b64 exec, -1")
    a("K_NOEP:")
    a(f"v_mov_b32 v{ZERO+1}, 0")
    a("s_and_b32 s3, s2, 7"); a("s_lshl_b32 s3, s3, 5")
    a(f"s_lshr_b32 s{S_B}, s2, 3"); a(f"s_add_u32 s{S_B}, s{S_B}, s3")
    a(f"s_lshl_b32 s4, s{S_B}, 20"); a(f"s_add_u32 s4, s4, {GMUL-1}")
    a(f"s_mov_b32 s7, {GMAGIC}")
    a(f"v_lshl_add_u32 v12, v{LANE}, 16, s4")
    a("v_add_u32 v13, 0x10000, v12")
    a("v_mul_hi_u32 v12, v12, s7"); a("v_mul_hi_u32 v13, v13, s7")
    a("v_lshrrev_b32 v12, 7, v12"); a("v_lshrrev_b32 v13, 7, v13")
    a("v_min_u32 v13, 25000, v13")
    a(f"s_mov_b32 s4, s{S_W}"); a("s_add_u32 s5, s4, 8")
    a("v_readlane_b32 s3, v12, 0"); a(f"v_readlane_b32 s{S_CA}, v13, s4")
    a(f"v_readlane_b32 s{S_NA}, v12, s4"); a(f"v_readlane_b32 s{S_NB}, v12, s5"); a(f"v_readlane_b32 s{S_CB}, v13, s5")
    a(f"v_mul_u32_u24 v14, 384, v{LANE}")
    a("s_lshl_b32 s3, s3, 7"); a(f"s_sub_u32 s3, {L_REC}, s3")
    a(f"v_lshl_add_u32 v{CURB}, v12, 7, v14"); a(f"v_add_u32 v{CURB}, s3, v{CURB}")
    a(f"v_lshl_add_u32 v{CURL}, v13, 7, v14"); a("s_add_u32 s3, s3, 384"); a(f"v_add_u32 v{CURL}, s3, v{CURL}")
    a(f"v_cmp_gt_u32 vcc, 16, v{LANE}")
    a(f"s_sub_u32 s{S_CB}, s{S_CB}, s{S_NB}"); a(f"s_sub_u32 s{S_CA}, s{S_CA}, s{S_NA}")
    a(f"v_cndmask_b32 v{CURB}, 0, v{CURB}, vcc")
    a(f"v_and_b32 v9, 31, v{LANE}")
    a(f"v_lshrrev_b32 v10, 5, v{LANE}")
    a(f"v_lshlrev_b32 v11, 4, v{LANE}")
    a(f"v_and_b32 v12, 7, v{LANE}")
    node_sel(a, f"v_cmp_gt_u32 vcc, 8, v{LANE}", 13, 14, 15)
    a("v_cmp_lt_u32 vcc, v12, v14")
    a(f"v_cmp_gt_u32 s[60:61], 16, v{LANE}")
    a("v_add_u32 v13, v13, v12"); a("v_mov_b32 v14, 0x7fff")
    a("s_and_b64 vcc, vcc, s[60:61]")
    a(f"v_cndmask_b32 v{PIX}, v14, v13, vcc")
    a(f"v_mul_u32_u24 v{D2}, 6, v{PIX}")
    srd(a, S_POS, 34, 35, 0, 150000)
    N1 = NC
    a("v_and_b32 v12, 3, v9"); a("v_bfe_u32 v13, v9, 3, 1"); a("v_lshl_or_b32 v12, v13, 2, v12")
    node_sel(a, "v_cmp_gt_u32 vcc, 16, v9", 13, 14, 15)
    a("v_and_b32 v15, 4, v9"); a("v_lshl_or_b32 v15, v15, 1, v12")
    a("v_cmp_lt_u32 vcc, v15, v14")
    a("v_add_u32 v13, v13, v12"); a("v_lshlrev_b32 v13, 7, v13"); a("v_lshl_add_u32 v13, v10, 4, v13")
    a(f"v_mov_b32 v14, {hex(HUGE)}")
    a(f"v_cndmask_b32 v{S8}, v14, v13, vcc")
    srd(a, S_H, 32, 33, 0, 3200000)
    srd(a, 56, 42, 43, 0, 133 * 128)
    srd(a, 40, 46, 47, 0, 128 * 128)
    srd(a, S_POSF, 52, 53, WS_POSF, 25000, stride=16)
    srd(a, S_REC, 52, 53, 0, WS_GRAN + 256 * 4096)
    if opt("tlb", 0):
        srd(a, S_OUT, 48, 49, 0, 3350000)
        srd(a, S_WX, 52, 53, 0, WS_POSF + 400000)
        a(f"s_cmp_lg_u32 s{S_W}, 5"); a("s_cbranch_scc1 K_NOTLB")
        a(f"v_lshlrev_b32 v12, {opt('tlb', 0)}, v{LANE}")
        a(f"buffer_load_dword v{PD}, v12, {sr(S_WX,4)}, 0 offen")
        a(f"buffer_load_dword v{PD}, v12, {sr(S_H,4)}, 0 offen")
        a(f"buffer_load_dword v{PD}, v12, {sr(S_OUT,4)}, 0 offen")
        a("K_NOTLB:")
    a("v_mov_b32 v14, 12")
    a(f"s_mul_i32 s54, s2, {CHS}")
    for g in range(2):
        a(f"s_waitcnt vmcnt({N1 + 7 - g})")
        if g == 0: stamp(a, 1)
        if g == 1: a("s_mov_b64 exec, s[62:63]")
        for k in range(4):
            i = 4*g + k
            a(f"v_mul_u32_u24 v{48+i}, {hex(GMUL)}, v{16+i}")
            a(f"v_lshrrev_b32 v{56+i}, 18, v{48+i}")
            a(f"v_and_b32 v{56+i}, 0x3fc, v{56+i}")
            a(f"ds_add_rtn_u32 v{64+i}, v{56+i}, v14 offset:{L_HIST}")
    a("s_mov_b64 exec, -1")
    for j in range(3): a(f"buffer_load_ushort v{RW+8+j}, v{D2}, {sr(S_POS,4)}, 0 offen offset:{2*j}")
    a(f"buffer_load_dword v{RW+12}, v{ZERO}, {sr(S_ACC,4)}, 0 offen sc0 sc1")
    for s in range(4): a(f"buffer_load_dwordx4 {vr(A1+4*s,4)}, v{S8}, {sr(S_H,4)}, 0 offen offset:{32*s}")
    N1 += 8
    if opt("wpf", 1):
        a("s_lshr_b32 s4, s2, 3"); a("s_lshl_b32 s4, s4, 10"); a("s_and_b32 s5, s4, 0x3fff")
        a(f"s_cmp_lg_u32 s{S_W}, 6"); a("s_cbranch_scc1 K_NOWPF")
        a(f"buffer_load_dwordx4 {vr(PD,4)}, v11, s[56:59], s4 offen")
        a(f"buffer_load_dwordx4 {vr(PD,4)}, v11, s[40:43], s5 offen")
        a("K_NOWPF:")
    a("s_mov_b32 s6, 400016")
    for i in range(8):
        a(f"v_and_b32 v{16+i}, 0xffff, v{48+i}")
        a(f"v_mul_hi_u32 v{16+i}, v{16+i}, s6")
        a(f"v_bfe_u32 v{48+i}, v{48+i}, 16, 4")
        a(f"v_lshlrev_b32 v{16+i}, 3, v{16+i}")
        a(f"v_lshl_or_b32 v{16+i}, v{48+i}, 24, v{16+i}")
    a("s_waitcnt lgkmcnt(0)")
    a("s_barrier")
    stamp(a, 2)
    a(f"ds_read_b128 v[72:75], v11 offset:{L_HIST}")
    a(f"s_lshl_b32 s4, s{S_W}, 8")
    a(f"v_lshl_add_u32 v15, v{LANE}, 2, s4")
    a(f"ds_read_b32 v76, v15 offset:{L_HIST}")
    a("s_waitcnt lgkmcnt(1)")
    a("v_add_u32 v49, v72, v73"); a("v_add_u32 v50, v49, v74"); a("v_add_u32 v51, v50, v75")
    a("v_mov_b32 v52, v51")
    for sh in (1, 2, 4, 8): a(f"v_add_u32_dpp v52, v52, v52 row_shr:{sh} row_mask:0xf bank_mask:0xf bound_ctrl:0")
    a("v_add_u32_dpp v52, v52, v52 row_bcast:15 row_mask:0xa bank_mask:0xf")
    a("v_add_u32_dpp v52, v52, v52 row_bcast:31 row_mask:0xc bank_mask:0xf")
    a("v_sub_u32 v52, v52, v51"); a("v_add_u32 v53, v52, v72"); a("v_add_u32 v54, v52, v49"); a("v_add_u32 v55, v52, v50")
    a(f"ds_write_b128 v11, v[52:55] offset:{L_OFFS}")
    a("s_waitcnt lgkmcnt(0)")
    for i in range(8): a(f"ds_read_b32 v{48+i}, v{56+i} offset:{L_OFFS}")
    a(f"ds_read_b32 v77, v15 offset:{L_OFFS}")
    a(f"s_waitcnt vmcnt({N1 + 4})")
    for i in range(8): a(f"v_lshl_or_b32 v{16+i}, v{24+i}, 7, v{16+i}")
    a("s_waitcnt lgkmcnt(0)")
    for i in range(8): a(f"v_add_u32 v{48+i}, v{48+i}, v{64+i}")
    a("v_lshl_or_b32 v76, v76, 16, v77")
    for g in range(2):
        if g == 1: a("s_mov_b64 exec, s[62:63]")
        for k in range(4): a(f"ds_write_b32 v{48+4*g+k}, v{16+4*g+k} offset:{L_STG+8}")
        for k in range(4): a(f"v_add_u32 v{56+4*g+k}, {L_STG}, v{48+4*g+k}")
        a(f"s_waitcnt vmcnt({N1 + 2 - 2*g})")
        for k in range(4):
            i = 4*g + k
            a(f"ds_write2_b32 v{56+i}, v{32+2*i}, v{33+2*i} offset0:0 offset1:1")
    a("s_mov_b64 exec, -1")
    N2 = 9
    a(f"v_cmp_gt_u32 vcc, {CHS//16 - 2048}, v0")
    a(f"v_mov_b32 v12, {hex(HUGE)}")
    a("v_cndmask_b32 v12, v12, v8, vcc")
    a("s_waitcnt vmcnt(5)")
    for j in range(3): a(f"v_lshlrev_b32 v{68+j}, 16, v{RW+8+j}")
    a("v_mov_b32 v71, 0")
    a("s_mov_b64 exec, 0xffff")
    a(f"buffer_store_dwordx4 v[68:71], v{PIX}, {sr(S_POSF,4)}, 0 idxen sc1")
    a("s_mov_b64 exec, -1")
    a("s_movk_i32 s4, 0x2000")
    a(f"buffer_load_dwordx4 {vr(RW,4)}, v8, {sr(56,4)}, s4 offen")
    a("s_movk_i32 s4, 0x4000")
    a(f"buffer_load_dwordx4 {vr(RW+4,4)}, v11, {sr(56,4)}, s4 offen")
    a(f"s_lshl_b32 s5, s{S_W}, 10")
    a(f"s_add_u32 m0, s5, {L_WF + 8192}"); a("s_nop 0")
    a(f"buffer_load_dwordx4 v8, {sr(56,4)}, 0 offen lds")
    a(f"s_add_u32 m0, s5, {L_WH}"); a("s_nop 0")
    a(f"buffer_load_dwordx4 v8, s[40:43], 0 offen lds")
    a(f"s_add_u32 m0, s5, {L_WH + 8192}"); a("s_movk_i32 s4, 0x2000")
    a(f"buffer_load_dwordx4 v8, s[40:43], s4 offen lds")
    stamp(a, 3)
    a("s_waitcnt lgkmcnt(0)")
    a("s_barrier")
    for j in range(5): a(f"ds_read_b128 {vr(16+4*j,4)}, v8 offset:{L_STG + 8192*j}")
    for j in range(5):
        a(f"s_waitcnt lgkmcnt({4-j})")
        a(f"buffer_store_dwordx4 {vr(16+4*j,4)}, v{8 if j < 4 else 12}, {sr(S_REC,4)}, s54 offen {opt('stp', 'sc1').replace('+', ' ')}")
        if j < 4: a("s_add_u32 s54, s54, 8192")
    stamp(a, 4)
    srd(a, S_OUT, 48, 49, 0, 3350000)
    srd(a, S_WX, 44, 45, 0, 128)
    cursor_init(a)
    a(f"s_mov_b32 s{S_LO}, -1"); a(f"s_mov_b32 s{S_LO+1}, 0"); a(f"s_mov_b32 s{S_HI}, 0"); a(f"s_mov_b32 s{S_HI+1}, -1")
    a(f"s_mov_b32 s{S_GM}, 0x3fff80")
    a(f"s_lshl_b32 s{S_TBLA}, s{S_W}, 8"); a(f"s_add_u32 s{S_TBLA}, s{S_TBLA}, {L_TBL}"); a(f"s_add_u32 s{S_TBLB}, s{S_TBLA}, 2048")
    a(f"s_lshl_b32 s{S_GB}, s{S_W}, 13"); a(f"s_add_u32 s{S_GB}, s{S_GB}, {L_GB}")
    a(f"s_mov_b32 s{S_WIN}, {32*12}"); a(f"s_mov_b32 s{S_ROUND}, 1"); a(f"s_mov_b32 s{S_PADB}, {L_PAD}"); a(f"s_mov_b32 s{S_PADE}, {L_PAD+128}")
    a(f"s_lshl_b32 s{S_ACCO}, s2, 3"); a(f"s_add_u32 s{S_ACCO}, s{S_ACCO}, s{S_W}"); a(f"s_lshl_b32 s{S_ACCO}, s{S_ACCO}, 14")
    a(f"s_mul_i32 s{S_SEG}, s{S_W}, {32*CHS}")
    a(f"v_mov_b32 v{FOUR}, 4")
    a(f"v_mul_u32_u24 v{I12}, 12, v9"); a(f"v_mul_u32_u24 v{I12H}, {CHS}, v10"); a(f"v_add_u32 v{I12H}, v{I12H}, v{I12}")
    a(f"v_lshlrev_b32 v{BPX}, 2, v10")
    a(f"s_lshl_b32 s4, s{S_W}, 11"); a(f"s_add_u32 s4, s4, {L_IMG}")
    for j in range(4): a(f"v_mov_b32 v{48+j}, 0")
    a("v_add_u32 v12, s4, v11")
    a("ds_write_b128 v12, v[48:51]"); a("ds_write_b128 v12, v[48:51] offset:1024")
    a(f"v_lshl_add_u32 v{IMGB}, v9, 6, s4")
    a(f"v_bfe_u32 v12, v{LANE}, 2, 2"); a("v_lshl_add_u32 v12, v10, 2, v12"); a("v_lshlrev_b32 v12, 6, v12")
    a(f"v_bfe_u32 v13, v{LANE}, 4, 1"); a("v_lshl_add_u32 v12, v13, 5, v12")
    a(f"v_and_b32 v13, 3, v{LANE}"); a("v_lshl_add_u32 v12, v13, 3, v12")
    a(f"v_add_u32 v{TRA}, s4, v12")
    a(f"v_and_b32 v12, 7, v{LANE}"); a("v_lshrrev_b32 v13, 1, v12"); a("v_and_b32 v14, 1, v12"); a("v_lshlrev_b32 v14, 4, v14")
    a("v_mov_b32 v60, 0x3f80"); a("v_lshlrev_b32 v14, v14, v60")
    for j in range(4):
        a(f"v_cmp_eq_u32 vcc, {j}, v13"); a(f"v_cndmask_b32 v{48+j}, 0, v14, vcc")
    a(f"v_bfe_u32 v13, v{LANE}, 3, 1"); a("v_lshlrev_b32 v13, 11, v13"); a("v_lshl_add_u32 v13, v12, 4, v13")
    a(f"v_add_u32 v{TMP}, s{S_TBLA}, v13")
    a("s_mov_b64 exec, 0xffff"); a(f"ds_write_b128 v{TMP}, v[48:51]"); a(f"ds_write_b128 v{TMP}, v[68:71] offset:128"); a("s_mov_b64 exec, -1")
    a(f"v_and_b32 v12, 7, v{LANE}"); a(f"v_bfe_u32 v13, v{LANE}, 4, 1"); a("v_lshlrev_b32 v13, 2, v13"); a("v_xor_b32 v12, v12, v13")
    for j in range(4):
        a(f"v_xor_b32 v13, {j}, v12"); a(f"v_lshlrev_b32 v{COLC+j}, 4, v13")
    a("v_and_b32 v12, 3, v9"); a("v_lshrrev_b32 v13, 2, v9"); a("v_lshl_add_u32 v13, v12, 3, v13"); a("v_lshlrev_b32 v13, 7, v13")
    a(f"v_add_u32 v13, s{S_GB}, v13")
    a("v_bfe_u32 v14, v9, 3, 1"); a("v_lshl_or_b32 v12, v14, 2, v12"); a("v_xor_b32 v12, v12, v10")
    for s in range(4):
        a(f"v_xor_b32 v14, {2*s}, v12"); a(f"v_lshl_add_u32 v{RDA+s}, v14, 4, v13")
    a(f"v_lshrrev_b32 v12, 3, v{LANE}"); a(f"v_lshlrev_b32 v{LANEQ}, 4, v12"); a(f"v_lshlrev_b32 v{LANEE}, 2, v9")
    a(f"v_mov_b32 v12, {hex(PADW)}"); a(f"v_add_u32 v13, s{S_PADB}, v{LANEE}")
    a("ds_write_b32 v13, v12"); a(f"ds_write2st64_b32 v13, v{ZERO}, v{ZERO} offset0:{PO1} offset1:{PO2}")
    a(f"v_mov_b32 v{XR+3}, 0")
    a(f"s_mov_b32 s4, {hex(NLOG2E)}"); a("s_mov_b32 s5, s4")
    a("s_waitcnt vmcnt(8)")
    for j in range(8):
        a(f"v_lshlrev_b32 v{32+2*j}, 16, v{RW+j}"); a(f"v_and_b32 v{33+2*j}, 0xffff0000, v{RW+j}")
    for j in range(8): a(f"v_pk_mul_f32 {vr(32+2*j,2)}, {vr(32+2*j,2)}, s[4:5]")
    for j in range(8): a(f"v_cvt_pk_bf16_f32 v{48+j}, v{32+2*j}, v{33+2*j}")
    a(f"v_add_u32 v16, {L_WF}, v8")
    a("ds_write_b128 v16, v[48:51]")
    for j in range(4):
        a(f"v_lshlrev_b32 v{56+2*j}, 16, v{52+j}"); a(f"v_and_b32 v{57+2*j}, 0xffff0000, v{52+j}")
    for j in range(4): a(f"v_pk_add_f32 {vr(56+2*j,2)}, {vr(40+2*j,2)}, {vr(56+2*j,2)} neg_lo:[0,1] neg_hi:[0,1]")
    for j in range(4): a(f"v_cvt_pk_bf16_f32 v{56+j}, v{56+2*j}, v{57+2*j}")
    a(f"v_add_u32 v16, {L_WF + 16384 - 128}, v11")
    a(f"v_add_u32 v17, {L_WF + 16384 + 512}, v11")
    a("s_mov_b64 exec, 0xff")
    a("ds_write_b128 v17, v[52:55]"); a("ds_write_b128 v17, v[56:59] offset:128")
    a("s_mov_b32 s6, 0xffffff00"); a("s_mov_b32 s7, 0xff0000ff"); a("s_mov_b64 exec, s[6:7]")
    a("ds_write_b128 v16, v[52:55]")
    a("s_mov_b32 s6, 0"); a("s_mov_b32 s7, 0xff000000"); a("s_mov_b64 exec, s[6:7]")
    a("ds_write_b128 v16, v[52:55] offset:128")
    a("s_mov_b64 exec, -1")
    a(f"v_bfe_u32 v18, v{LANE}, 2, 2"); a("v_lshlrev_b32 v16, 7, v18")
    a(f"v_bfe_u32 v18, v{LANE}, 4, 1"); a("v_lshl_add_u32 v16, v18, 5, v16")
    a(f"v_and_b32 v18, 3, v{LANE}"); a("v_lshl_add_u32 v16, v18, 3, v16")
    a(f"v_add_u32 v{VAL}, {L_WF + 16384}, v16")
    a("v_lshl_add_u32 v16, v10, 10, v16"); a(f"v_add_u32 v{VAL+1}, {L_WF}, v16")
    a(f"s_mov_b32 s5, {opt('spin', 200000)}")
    a("K_EPW:")
    a(f"v_readfirstlane_b32 s4, v{RW+12}")
    a("s_cmp_lg_u32 s4, 0"); a("s_cbranch_scc1 K_EPOK")
    a("s_sub_u32 s5, s5, 1"); a("s_cmp_eq_u32 s5, 0"); a("s_cbranch_scc1 K_EPOK")
    a(f"buffer_load_dword v{RW+12}, v{ZERO}, {sr(S_ACC,4)}, 0 offen sc0 sc1")
    a("s_waitcnt vmcnt(0)")
    a("s_branch K_EPW")
    a("K_EPOK:")
    srd(a, S_ACC, 52, 53, WS_ACC, 256 * 8 * 16384)
    a(f"v_mov_b32 v77, v{RW+12}")
    a("s_lshl_b32 s3, s2, 12"); a(f"s_add_u32 s3, s3, {hex(WS_GRAN)}")
    a("v_lshlrev_b32 v15, 2, v15")
    a(f"s_mov_b32 s4, {hex(TAGK)}")
    a("v_not_b32 v79, v77"); a(f"v_xor_b32 v{PS+2}, s4, v77"); a(f"v_xor_b32 v78, v76, v{PS+2}")
    a(f"v_mov_b32 v{PS}, v77"); a(f"v_mov_b32 v{PS+1}, v79")
    a(f"v_lshlrev_b32 v{IMGA}, 12, v9")
    a(f"s_lshl_b32 s5, s{S_W}, 17"); a(f"s_lshl_b32 s6, s{S_B}, 4"); a("s_add_u32 s5, s5, s6"); a(f"s_add_u32 s{S_T3}, s5, {hex(WS_GRAN)}")
    a("s_waitcnt vmcnt(0) lgkmcnt(0)")
    stamp(a, 5)
    a("s_barrier")
    a(f"s_cmp_ge_u32 s{S_W}, 4")
    a("s_cbranch_scc1 K_NOPUB")
    a(f"buffer_store_dwordx4 v[76:79], v15, {sr(S_REC,4)}, s3 offen sc1")
    a("K_NOPUB:")
    HPF = opt("hpf", 0)
    if HPF:
        a("s_lshr_b32 s3, s2, 3"); a("s_mul_i32 s3, s3, 100000")
        for k in range(HPF):
            a(f"buffer_load_dwordx4 {vr(PD,4)}, v8, {sr(S_H,4)}, s3 offen")
            a("s_add_u32 s3, s3, 8192")
    WT = ACCB0
    for f in range(8):
        for kk in range(2): a(f"ds_read_b64_tr_b16 {vr(WT+4*f+2*kk,2)}, v{VAL+1} offset:{8192 + (f&3)*2048 + kk*512 + (f>>2)*64}")
    a("s_waitcnt lgkmcnt(8)")
    for s in range(4): a(mfma32(ACCA0, A1+4*s, WT + 4*s, 0 if s == 0 else None))
    for nh, b in ((0, BXA0), (1, BXA1), (0, BXB0), (1, BXB1)):
        for kk in range(2): a(f"ds_read_b64_tr_b16 {vr(b+2*kk,2)}, v{VAL} offset:{kk*512 + nh*64}")
    a("s_waitcnt lgkmcnt(8)")
    for s in range(4): a(mfma32(ACCA1, A1+4*s, WT + 16 + 4*s, 0 if s == 0 else None))
    a("s_waitcnt lgkmcnt(0)")
    for f in range(8):
        for kk in range(2): a(f"ds_read_b64_tr_b16 {vr(W2F+4*f+2*kk,2)}, v{VAL+1} offset:{(f&3)*2048 + kk*512 + (f>>2)*64}")
    a(f"s_mov_b32 s4, {hex(NLOG2E)}"); a("s_mov_b32 s5, s4")
    a(f"s_mov_b64 exec, {sr(S_LO,2)}")
    for nh, d, ba, bb in ((0, ACCA0, BXA0, BXB0), (1, ACCA1, BXA1, BXB1)):
        for j in range(8): a(f"v_pk_mul_f32 {vr(d+2*j,2)}, {vr(d+2*j,2)}, s[4:5]")
        for j in range(4):
            a(f"v_cvt_pk_bf16_f32 v{ba+j}, v{d+2*j}, v{d+2*j+1}")
            a(f"v_cvt_pk_bf16_f32 v{bb+j}, v{d+8+2*j}, v{d+8+2*j+1}")
    a("s_mov_b64 exec, -1")
    for i in range(64): a(f"v_mov_b32 v{ACCA0+i}, 0")
    stamp(a, 22)
    a(f"v_and_b32 v12, 7, v{LANE}"); a(f"v_and_b32 v13, 8, v{LANE}")
    node_sel(a, "v_cmp_eq_u32 vcc, 0, v13", 13, 14, 15)
    a("v_cmp_lt_u32 vcc, v12, v14")
    a("v_add_u32 v13, v13, v12"); a("v_lshlrev_b32 v13, 7, v13")
    a(f"v_lshrrev_b32 v14, 4, v{LANE}"); a("v_lshl_add_u32 v13, v14, 5, v13")
    a(f"v_mov_b32 v15, {hex(HUGE)}")
    a(f"v_cndmask_b32 v{HA}, v15, v13, vcc")
    a(f"v_bfe_u32 v12, v{LANE}, 2, 2"); a(f"v_lshrrev_b32 v13, 5, v{LANE}"); a("v_lshl_add_u32 v12, v12, 1, v13")
    a(f"v_and_b32 v13, 16, v{LANE}")
    node_sel(a, "v_cmp_eq_u32 vcc, 0, v13", 13, 14, 15)
    a("v_cmp_lt_u32 vcc, v12, v14")
    a("v_add_u32 v13, v13, v12"); a("v_mul_u32_u24 v13, 6, v13")
    a(f"v_and_b32 v14, 3, v{LANE}"); a("v_lshl_add_u32 v13, v14, 1, v13")
    a(f"v_cmp_gt_u32 {sr(S_T0,2)}, 3, v14")
    a(f"v_mov_b32 v15, {hex(HUGE)}")
    a(f"s_and_b64 vcc, vcc, {sr(S_T0,2)}")
    a(f"v_cndmask_b32 v{PA}, v15, v13, vcc")
    VL = S8
    a(f"v_mov_b32 v{SW}, 0"); a("v_mov_b32 v0, 0"); a(f"v_mov_b32 v{VL}, 0")
    a(f"s_mov_b32 s{S_PEND}, -1"); a(f"s_mov_b32 s{S_PEND+1}, 0"); a(f"s_mov_b32 s{S_LEFT}, 0")
    a(f"s_mov_b32 s{S_SPIN}, {opt('spin', 200000)}")
    a(f"s_mov_b32 s{S_SUB}, 0")
    a("s_waitcnt lgkmcnt(0)")
    a("K_POLL:")
    a(f"s_mov_b64 exec, {sr(S_PEND,2)}")
    a(f"buffer_load_dwordx4 {vr(PD,4)}, v{IMGA}, {sr(S_REC,4)}, s{S_T3} offen sc1")
    a("s_waitcnt vmcnt(0)")
    a(f"v_xor_b32 v{PD+2}, v{PD}, v{PD+2}")
    a(f"v_cmp_eq_u32 vcc, v{PD+1}, v{PS}"); a(f"v_cmp_eq_u32 s[60:61], v{PD+3}, v{PS+1}"); a(f"v_cmp_eq_u32 s[58:59], v{PD+2}, v{PS+2}")
    a("s_and_b64 vcc, vcc, s[60:61]"); a("s_and_b64 vcc, vcc, s[58:59]")
    a(f"v_cndmask_b32 v{SW}, v{SW}, v{PD}, vcc")
    a(f"v_cndmask_b32 v0, v0, v{PD}, vcc")
    a("s_mov_b64 exec, -1")
    a(f"s_andn2_b32 s{S_PEND}, s{S_PEND}, vcc_lo")
    a("s_cbranch_scc0 K_ALLIN")
    a(f"s_bcnt1_i32_b32 s4, s{S_PEND}")
    a(f"s_cmp_le_u32 s4, {opt('pth', 0)}")
    a("s_cbranch_scc0 K_PWAIT")
    a("v_cmp_ne_u32 vcc, 0, v0")
    a("s_cmp_lg_u32 vcc_lo, 0")
    a("s_cbranch_scc1 K_ROUND")
    a("K_PWAIT:")
    a(f"s_sub_u32 s{S_SPIN}, s{S_SPIN}, 1")
    a(f"s_cmp_eq_u32 s{S_SPIN}, 0")
    a(f"s_cselect_b32 s{S_PEND}, 0, s{S_PEND}")
    a("s_cbranch_scc1 K_ALLIN")
    if opt("slp", 4): a(f"s_sleep {opt('slp', 4)}")
    a("s_branch K_POLL")
    a("K_ALLIN:")
    if STAMP and STAMP != 4: a(f"v_writelane_b32 v255, s{S_SPIN}, 15")
    stamp(a, 6)
    a("s_branch K_ROUND")
    a("K_RESET:")
    cursor_init(a)
    a(f"v_mov_b32 v0, v{SW}")
    a(f"s_mov_b32 s{S_SUB}, 1")
    a("s_waitcnt lgkmcnt(0)")
    a("s_barrier")
    a("K_ROUND:")
    for p in range(16): a(f"ds_bpermute_b32 v{16+4*p+3}, v{BPX}, v0 offset:{8*p}")
    a(f"s_mov_b32 s3, s{S_SEG}")
    for p in range(16):
        r = 16 + 4*p
        a(f"s_waitcnt lgkmcnt({15-p})")
        a(f"v_cmp_lt_u32_sdwa {sr(S_MASK+2*p,2)}, v{I12}, v{r+3} src0_sel:DWORD src1_sel:WORD_1")
        a(f"v_add_u32_sdwa v{r+3}, v{r+3}, v{I12H} dst_sel:DWORD dst_unused:UNUSED_PAD src0_sel:WORD_0 src1_sel:DWORD")
        a(f"s_or_b64 exec, {sr(S_MASK+2*p,2)}, 1")
        a(f"buffer_load_dwordx3 {vr(r,3)}, v{r+3}, {sr(S_REC,4)}, s3 offen {opt('ldp', 'sc1').replace('+', ' ')}")
        a("s_mov_b64 exec, -1")
        a(f"s_add_u32 s3, s3, {2*CHS}")
    stamp(a, 7)
    a("v_lshrrev_b32 v12, 16, v0")
    a(f"v_cmp_lt_u32 vcc, s{S_WIN}, v12")
    a(f"v_min_u32 v12, s{S_WIN}, v12")
    a("v_add_u32 v0, v0, v12"); a("v_lshlrev_b32 v12, 16, v12"); a("v_sub_u32 v0, v0, v12")
    a(f"s_mov_b32 s{S_MORE}, vcc_lo")
    a(f"v_cndmask_b32 v{VL}, v{VL}, v0, vcc")
    for p in range(16):
        r = 16 + 4*p
        a(f"s_waitcnt vmcnt({15-p + min(p, NPF)})")
        a(f"s_mov_b64 exec, {sr(S_MASK+2*p,2)}")
        a(f"v_bfe_u32 v{r+3}, v{r+2}, 22, 6")
        a(f"ds_add_rtn_u32 v{r+3}, v{r+3}, v{FOUR}")
        if p < NPF:
            a(f"v_and_b32 v{ADQ}, s{S_GM}, v{r+2}")
            a(f"s_or_b64 exec, {sr(S_MASK+2*p,2)}, 1")
            a(f"buffer_load_dword v{S16}, v{ADQ}, {sr(S_H,4)}, 0 offen")
        if p % 4 == 3:
            a("s_waitcnt lgkmcnt(0)")
            for q in range(p-3, p+1):
                rq = 16 + 4*q
                a(f"s_mov_b64 exec, {sr(S_MASK+2*q,2)}")
                a(f"ds_write_b32 v{rq+3}, v{rq+2}")
                a(f"ds_write2st64_b32 v{rq+3}, v{rq}, v{rq+1} offset0:{PO1} offset1:{PO2}")
    a("s_mov_b64 exec, -1")
    a(f"s_cmp_lg_u32 s{S_SUB}, 0")
    a("s_cbranch_scc1 K_LAST")
    a(f"s_or_b32 s{S_LEFT}, s{S_LEFT}, s{S_MORE}")
    a("v_mov_b32 v0, 0")
    a(f"s_cmp_lg_u32 s{S_PEND}, 0")
    a("s_cbranch_scc1 K_POLL")
    a(f"s_cmp_eq_u32 s{S_LEFT}, 0")
    a("s_cbranch_scc1 K_BINNED")
    a(f"v_mov_b32 v0, v{VL}")
    a(f"s_mov_b32 s{S_SUB}, 1")
    a("s_branch K_ROUND")
    a("K_LAST:")
    a(f"s_cmp_eq_u32 s{S_MORE}, 0")
    a("s_cbranch_scc1 K_BINNED")
    a(f"v_mov_b32 v13, {L_FLAG}")
    a(f"ds_write_b32 v13, v{FOUR}")
    a("K_BINNED:")
    stamp(a, 8)
    a(f"buffer_load_dwordx4 {vr(HB,4)}, v{HA}, {sr(S_H,4)}, 0 offen")
    a(f"buffer_load_dwordx4 {vr(HB+4,4)}, v{HA}, {sr(S_H,4)}, 0 offen offset:16")
    a(f"v_lshrrev_b32 v16, 1, v{LANEE}")
    a(f"buffer_load_ushort v{WX0}, v16, {sr(S_WX,4)}, 0 offen")
    a(f"buffer_load_ushort v{WX1}, v16, {sr(S_WX,4)}, 0 offen offset:64")
    a(f"buffer_load_ushort v{PV}, v{PA}, {sr(S_POS,4)}, 0 offen")
    for j in range(4): srd(a, S_HJ+4*j, S_H, S_H+1, -1024*j, 3200000 + 1024*j)
    for i in range(16): a(f"v_mov_b32 v{MP+i}, 0")
    a(f"v_lshlrev_b32 v17, 2, v{LANE}")
    a(f"s_mov_b32 s4, s{S_W}"); a("s_add_u32 s5, s4, 8")
    a("s_xor_b32 s48, s4, 4"); a("s_xor_b32 s49, s5, 4")
    a(f"v_readlane_b32 s{S_NEXT}, v{CURB}, s4"); a(f"v_readlane_b32 s{S_JUMP}, v{CURB}, s5")
    a(f"v_mov_b32 v19, {hex(PADW)}")
    a(f"s_mov_b32 s{S_TBL}, s{S_TBLA}")
    a("s_waitcnt lgkmcnt(0)")
    a("s_barrier")
    stamp(a, 19)
    a("ds_read_b32 v16, v17")
    a("s_waitcnt lgkmcnt(0)")
    a(f"v_cmp_gt_u32 vcc, v16, v{CURL}")
    a(f"v_sub_u32 v18, v16, v{CURB}"); a("v_add_u32 v18, 127, v18"); a("v_lshrrev_b32 v18, 7, v18")
    a("v_med3_u32 v18, v18, 1, 10")
    a(f"v_sub_u32 v20, v16, v{CURB}"); a(f"v_add_u32 v20, {opt('fq', 64)}, v20"); a("v_lshrrev_b32 v20, 5, v20")
    a(f"v_readlane_b32 s{S_T0}, v16, s4"); a(f"v_readlane_b32 s{S_T1}, v16, s5"); a(f"v_readlane_b32 s{S_MORE}, v16, 16")
    a(f"v_readlane_b32 s{S_REM}, v18, s4"); a(f"v_readlane_b32 s{S_TB}, v18, s5")
    a("v_readlane_b32 s50, v20, s48"); a("v_readlane_b32 s51, v20, s49")
    a("v_readlane_b32 s54, v20, s4"); a("v_readlane_b32 s55, v20, s5")
    a("s_and_b32 s6, vcc_lo, 0xffff")
    a("s_cbranch_scc0 K_FITS")
    a(f"s_cmp_le_u32 s{S_WIN}, 12")
    a("s_cbranch_scc1 K_FITS")
    a("s_barrier")
    a(f"s_lshr_b32 s{S_WIN}, s{S_WIN}, 1")
    a(f"v_mov_b32 v16, {hex(HUGE)}")
    a(f"v_cmp_gt_u32 vcc, s{S_WIN}, v{I12}")
    a(f"v_cndmask_b32 v{I12}, v16, v{I12}, vcc")
    a("s_waitcnt vmcnt(0)")
    a("s_branch K_RESET")
    a("K_FITS:")
    a(f"s_lshl_b32 s4, s{S_REM}, 7"); a(f"s_add_u32 s{S_END}, s4, s{S_NEXT}")
    a(f"s_lshl_b32 s5, s{S_TB}, 7"); a(f"s_add_u32 s{S_END2}, s5, s{S_JUMP}")
    G = 5 if opt("quart", 1) else 6
    for end, cur, d in ((S_END, S_T0, S_QA), (S_END2, S_T1, S_HB)):
        a(f"s_sub_u32 s4, s{end}, s{cur}"); a(f"s_lshr_b32 s4, s4, {G}"); a(f"s_lshl_b32 s4, s4, {G-3}")
        a(f"s_sub_u32 s{d}, 16, s4"); a(f"s_max_u32 s{d}, s{d}, {1 << (G-3)}")
    a(f"s_cmp_lt_u32 s{S_QA}, 16"); a(f"s_cselect_b32 s{S_HA}, 1, -1")
    for cur, end, m in ((S_T0, S_END, S_LO), (S_T1, S_END2, S_HI)):
        a(f"v_add_u32 v16, s{cur}, v{LANEE}")
        a(f"v_cmp_gt_u32 vcc, s{end}, v16")
        a(f"s_and_b64 exec, vcc, {sr(m,2)}")
        a("ds_write_b32 v16, v19")
        a(f"ds_write2st64_b32 v16, v{ZERO}, v{ZERO} offset0:{PO1} offset1:{PO2}")
        a("s_mov_b64 exec, -1")
    WQ2 = 20
    for t in g_reads(0, WQ2) + g_reads(1): a(t)
    a(f"v_mov_b32 v{SW}, v0")
    a("s_add_u32 s50, s50, s51"); a("s_add_u32 s51, s54, s55")
    a(f"s_mul_i32 s50, s50, {opt('fa', 125)}"); a(f"s_mul_i32 s51, s51, {opt('fb', 51)}"); a("s_sub_i32 s50, s50, s51"); a(f"s_add_i32 s50, s50, {opt('fc', 128)}")
    a("s_ashr_i32 s50, s50, 9"); a("s_max_i32 s50, s50, 0")
    a("s_lshr_b32 s51, s50, 1")
    a(f"s_sub_i32 s{S_FLIP}, s{S_REM}, s51"); a(f"s_sub_i32 s{S_FLIP}, s{S_FLIP}, 1"); a(f"s_max_i32 s{S_FLIP}, s{S_FLIP}, 0")
    a(f"s_cmp_lt_u32 s{S_W}, 4"); a(f"s_cselect_b32 s{S_FLIP}, -1, s{S_FLIP}")
    a(f"s_mov_b32 s{S_FLIP2}, s{S_FLIP}")
    a("s_bitcmp1_b32 s50, 0"); a(f"s_cselect_b32 s{S_FLIP}, -1, s{S_FLIP}")
    a("s_waitcnt lgkmcnt(2)")
    a(f"v_bfe_u32 v{PIX}, v{W2E}, 7, 15")
    for t in g_addr(WQ2) + g_m0(0): a(t)
    a(f"s_mov_b64 exec, {sr(S_HI,2)}"); a(pos_gather()); a("s_mov_b64 exec, -1")
    for t in g_dma(WQ2): a(t)
    a("s_waitcnt lgkmcnt(0)")
    if opt("g1late", 0): a("s_barrier")
    for t in g_addr() + g_m0(1) + ["s_nop 0"] + g_dma(): a(t)
    stamp(a, 20)
    a(f"s_cmp_eq_u32 s{S_ROUND}, 1")
    a("s_cbranch_scc1 K_FILL2")
    a(f"v_lshlrev_b32 v16, 4, v{LANE}")
    a(f"s_mov_b32 s3, s{S_ACCO}")
    for i in range(16):
        a(f"buffer_load_dwordx4 {vr(ACCA0+4*i,4)}, v16, {sr(S_ACC,4)}, s3 offen offset:{(i%4)*1024} sc0 sc1")
        if i % 4 == 3: a("s_add_u32 s3, s3, 4096")
    a("s_waitcnt vmcnt(0)")
    a("K_FILL2:")
    for t in e_head(0): a(t)
    a("s_waitcnt vmcnt(4) lgkmcnt(0)")
    stamp(a, 21)
    for t in a1_reads(0) + e_sect(0, zero=False) + g_reads(0): a(t)
    a("s_waitcnt lgkmcnt(5)")
    a(mfma32(D0, A1, W2F, 0))
    for s in range(1, 4): a(mfma32(D0, A1+4*s, W2F+4*s))
    a("s_waitcnt lgkmcnt(0)")
    a(mfma32(D0, XR, BXA0))
    for t in g_addr() + g_m0(0) + ["s_nop 0"] + g_dma(): a(t)
    a("s_nop 3")
    stamp(a, 9); stamp(a, 10, True)
    if STAMP and STAMP != 4: a(f"v_writelane_b32 v255, s{S_REM}, 12"); a(f"v_writelane_b32 v255, s{S_TB}, 13"); a("s_mov_b32 s5, 24")
    HALF = opt("half", 1)
    a("K_XA0:")
    if HALF: a(f"s_cmp_eq_u32 s{S_REM}, s{S_HA}"); a("s_cbranch_scc1 K_XAH0")
    phase_x(a, 0, ACCA1, BXA1, True)
    a(f"s_cmp_eq_u32 s{S_REM}, 0"); a("s_cbranch_scc1 K_YT0")
    phase_y(a, 0, ACCA0, BXA0)
    if HALF: a(f"s_cmp_eq_u32 s{S_REM}, s{S_HA}"); a("s_cbranch_scc1 K_XAH1")
    phase_x(a, 1, ACCA1, BXA1, True)
    a(f"s_cmp_eq_u32 s{S_REM}, 0"); a("s_cbranch_scc1 K_YT1")
    phase_y(a, 1, ACCA0, BXA0)
    a("s_branch K_XA0")
    NS = (12, 8, 4) if opt("quart", 1) else (8,)
    if HALF:
        for p in (0, 1):
            a(f"K_XAH{p}:")
            for n in NS[:-1]:
                a(f"s_cmp_eq_u32 s{S_QA}, {n}"); a(f"s_cbranch_scc1 K_XAH{p}_{n}")
            for n in reversed(NS):
                a(f"K_XAH{p}_{n}:")
                phase_x(a, p, ACCA1, BXA1, True, n=n)
                phase_y(a, p, ACCA0, BXB0, n=n)
                a("s_nop 10"); a(f"s_branch K_XT{1-p}")
    a("K_YT0:")
    phase_y(a, 0, ACCA0, BXB0)
    a("K_XT1:")
    phase_x(a, 1, ACCA1, BXB1, False)
    a("s_branch K_YB1")
    a("K_YT1:")
    phase_y(a, 1, ACCA0, BXB0)
    a("K_XT0:")
    phase_x(a, 0, ACCA1, BXB1, False)
    a("K_YB0:")
    phase_y(a, 0, ACCB0, BXB0)
    a(f"s_sub_u32 s{S_TB}, s{S_TB}, 1"); a(f"s_cmp_le_u32 s{S_TB}, {HALF}"); a("s_cbranch_scc1 K_TAIL")
    phase_x(a, 1, ACCB1, BXB1, False)
    a("K_YB1:")
    phase_y(a, 1, ACCB0, BXB0)
    a(f"s_sub_u32 s{S_TB}, s{S_TB}, 1"); a(f"s_cmp_le_u32 s{S_TB}, {HALF}"); a("s_cbranch_scc1 K_TAIL")
    phase_x(a, 0, ACCB1, BXB1, False)
    a("s_branch K_YB0")
    a("K_TAIL:")
    if HALF:
        a(f"s_cmp_eq_u32 s{S_TB}, 0"); a("s_cbranch_scc1 K_DRAIN")
        for n in NS:
            a(f"s_cmp_eq_u32 s{S_HB}, {n}"); a(f"s_cbranch_scc1 K_TAIL{n}")
        for n in (16,) + NS:
            a(f"K_TAIL{n}:")
            phase_x(a, 0, ACCB1, BXB1, False, n=n, last=True)
            phase_y(a, 0, ACCB0, BXB0, n=n, last=True)
            if n != NS[-1]: a("s_nop 0"); a("s_branch K_DRAIN")
    a("K_DRAIN:")
    a(mfma32(ACCB1, A2, MP))
    a(mfma32(ACCB1, A2+4, MP+4))
    stamp(a, 16); stamp(a, 11, True)
    a(f"s_cmp_eq_u32 s{S_MORE}, 0")
    a("s_cbranch_scc1 K_EPI")
    a("s_setprio 0")
    a(f"s_mov_b64 exec, {sr(S_HI,2)}"); a(f"ds_write_b64 v{IMGA}, {vr(ZERO,2)}"); a("s_mov_b64 exec, -1")
    a(f"v_lshlrev_b32 v16, 4, v{LANE}")
    a(f"s_mov_b32 s3, s{S_ACCO}")
    a("s_nop 7")
    for i in range(16):
        a(f"buffer_store_dwordx4 {vr(ACCA0+4*i,4)}, v16, {sr(S_ACC,4)}, s3 offen offset:{(i%4)*1024} sc0 sc1")
        if i % 4 == 3: a("s_add_u32 s3, s3, 4096")
    a(f"s_mov_b32 s{S_ROUND}, 2")
    a("s_waitcnt vmcnt(0) lgkmcnt(0)")
    a("s_barrier")
    a("s_branch K_RESET")
    a("K_EPI:")
    whf = lambda f: (16 + 4*f) if f < 12 else (80 + 4*(f-12))
    MB = 108; DO = 116; AD = 100
    a(f"v_lshrrev_b32 v{AD}, 4, v{LANE}"); a(f"v_lshlrev_b32 v{AD}, 4, v{AD}")
    a(f"v_bfe_u32 v{AD+1}, v{LANE}, 2, 2"); a(f"v_add_u32 v{AD}, v{AD}, v{AD+1}"); a(f"v_lshlrev_b32 v{AD}, 7, v{AD}")
    a(f"v_and_b32 v{AD+1}, 3, v{LANE}"); a(f"v_lshl_add_u32 v{AD}, v{AD+1}, 5, v{AD}"); a(f"v_add_u32 v{AD}, {L_WH}, v{AD}")
    a(f"s_mov_b32 s4, {hex(NLN2)}")
    a(f"v_lshrrev_b32 v{AD+2}, 5, v{LANE}"); a(f"v_lshlrev_b32 v{AD+2}, 7, v{AD+2}"); a(f"v_lshrrev_b32 v{AD+3}, 1, v{LANEE}")
    a(f"s_lshl_b32 s5, s{S_W}, 11"); a(f"s_add_u32 s5, s5, {L_IMG}")
    a(f"v_add3_u32 v{AD+2}, v{AD+2}, v{AD+3}, s5")
    a(f"v_and_b32 v{AD+3}, 15, v{LANE}"); a(f"v_lshlrev_b32 v{AD+3}, 7, v{AD+3}"); a(f"v_lshrrev_b32 v{AD+4}, 4, v{LANE}")
    a(f"v_lshl_add_u32 v{AD+3}, v{AD+4}, 5, v{AD+3}"); a(f"v_add_u32 v{AD+3}, s5, v{AD+3}")
    for s in range(4):
        for t in range(4):
            for kk in range(2):
                a(f"ds_read_b64_tr_b16 {vr(whf(t*4+s)+2*kk,2)}, v{AD} offset:{(s>>1)*8192 + (s&1)*1024 + kk*512 + t*8}")
        g, (c0, c1) = list(enumerate(((ACCA0, ACCA1), (ACCB0, ACCB1))))[s >> 1]
        for q in range(2*(s&1), 2*(s&1)+2):
            a(f"v_mul_f32 v{c0+4*q}, s4, v{c0+4*q}"); a(f"v_mul_f32 v{c1+4*q}, s4, v{c1+4*q}")
            a(f"v_cvt_pk_bf16_f32 v{c0+4*q}, v{c0+4*q}, v{c1+4*q}")
            a(f"ds_write_b16 v{AD+2}, v{c0+4*q} offset:{g*1024 + q*256}")
            a(f"ds_write_b16_d16_hi v{AD+2}, v{c0+4*q} offset:{g*1024 + q*256 + 64}")
    a(f"ds_read_b128 {vr(MB,4)}, v{AD+3}"); a(f"ds_read_b128 {vr(MB+4,4)}, v{AD+3} offset:16")
    for w in (WX0, WX1): a(f"v_lshlrev_b32 v{w}, 16, v{w}"); a(f"v_mul_f32 v{w}, s4, v{w}")
    for (c0, c1) in ((ACCA0, ACCA1), (ACCB0, ACCB1)):
        for q in range(4):
            for k in (1, 2, 3):
                a(f"v_mul_f32 v{c0+4*q+k}, v{WX0}, v{c0+4*q+k}"); a(f"v_fmac_f32 v{c0+4*q+k}, v{WX1}, v{c1+4*q+k}")
    a("s_waitcnt lgkmcnt(0)")
    bsrc = (HB, HB+4, MB, MB+4)
    mf = []
    for s in range(4):
        for t in range(4):
            c = "0" if s == 0 else vr(DO+4*t, 4)
            mf.append(f"v_mfma_f32_16x16x32_bf16 {vr(DO+4*t,4)}, {vr(whf(t*4+s),4)}, {vr(bsrc[s],4)}, {c}")
    red = []
    for q in range(4):
        for k in (1, 2, 3): red.append(f"v_permlane16_swap_b32 v{ACCA0+4*q+k}, v{ACCB0+4*q+k}")
    for q in range(4):
        for k in (1, 2, 3): red.append(f"v_add_f32 v{ACCA0+4*q+k}, v{ACCA0+4*q+k}, v{ACCB0+4*q+k}")
    for q in range(2):
        for k in (1, 2, 3):
            red.append(f"v_add_f32_dpp v{ACCA1+4*q+k}, v{ACCA0+4*q+k}, v{ACCA0+4*q+k} row_ror:8 row_mask:0xf bank_mask:0x3")
            red.append(f"v_add_f32_dpp v{ACCA1+4*q+k}, v{ACCA0+4*q+8+k}, v{ACCA0+4*q+8+k} row_ror:8 row_mask:0xf bank_mask:0xc")
    for i, m in enumerate(mf):
        a(m)
        for t in red[2*i:2*i+2]: a(t)
    for t in red[32:]: a(t)
    for k in (1, 2, 3):
        a(f"v_add_f32_dpp v{ACCB1+k}, v{ACCA1+k}, v{ACCA1+k} row_shl:4 row_mask:0xf bank_mask:0x5")
        a(f"v_add_f32_dpp v{ACCB1+k}, v{ACCA1+4+k}, v{ACCA1+4+k} row_shr:4 row_mask:0xf bank_mask:0xa")
    for perm in ("[1,0,3,2]", "[2,3,0,1]"):
        for k in (1, 2, 3): a(f"v_add_f32_dpp v{ACCB1+k}, v{ACCB1+k}, v{ACCB1+k} quad_perm:{perm} row_mask:0xf bank_mask:0xf")
    a(f"v_cmp_eq_u32 vcc, 1, v{AD+1}"); a(f"v_lshlrev_b32 v{PV}, 16, v{PV}"); a(f"s_mov_b32 s4, {hex(NLOG2E)}")
    a(f"v_cndmask_b32 v{AD+5}, v{ACCB1+1}, v{ACCB1+2}, vcc")
    a(f"v_cmp_eq_u32 vcc, 2, v{AD+1}"); a("s_mov_b32 s5, s4"); a("s_mov_b32 s3, 3200000")
    a(f"v_cndmask_b32 v{AD+5}, v{AD+5}, v{ACCB1+3}, vcc")
    a(f"v_add_f32 v{AD+5}, v{AD+5}, v{PV}"); a(f"v_cvt_pk_bf16_f32 v{AD+5}, v{AD+5}, v{AD+5}")
    a(f"buffer_store_short v{AD+5}, v{PA}, {sr(S_OUT,4)}, s3 offen {OP}")
    E = 148
    for j in range(8): a(f"v_pk_mul_f32 {vr(E+2*j,2)}, {vr(DO+2*j,2)}, s[4:5]")
    for j in range(16): a(f"v_exp_f32 v{E+j}, v{E+j}")
    for j in range(8): a(f"v_pk_add_f32 {vr(E+2*j,2)}, {vr(E+2*j,2)}, 1.0 op_sel_hi:[1,0]")
    for j in range(16): a(f"v_rcp_f32 v{E+j}, v{E+j}")
    for j in range(8):
        a(f"v_lshlrev_b32 v{E+16+2*j}, 16, v{HB+j}"); a(f"v_and_b32 v{E+17+2*j}, 0xffff0000, v{HB+j}")
    for j in range(8): a(f"v_pk_fma_f32 {vr(E+2*j,2)}, {vr(E+2*j,2)}, {vr(DO+2*j,2)}, {vr(E+16+2*j,2)}")
    for j in range(8): a(f"v_cvt_pk_bf16_f32 v{E+32+j}, v{E+2*j}, v{E+2*j+1}")
    a(f"buffer_store_dwordx4 {vr(E+32,4)}, v{HA}, {sr(S_OUT,4)}, 0 offen {OP}")
    a(f"buffer_store_dwordx4 {vr(E+36,4)}, v{HA}, {sr(S_OUT,4)}, 0 offen offset:16 {OP}")
    stamp(a, 17)
    if STAMP: a("s_waitcnt vmcnt(0)")
    stamp(a, 18)
    stamp_out(a)
    a("K_END:")
    a("s_endpgm")

def main():
    ref = open(f"cdna_kernels/{NAME}.s.ref").read().split("\n")
    head = [l for l in ref if l.startswith(";") and "@launch" not in l and not l.startswith("; Override") and not l.startswith("; grid=")]
    out = "\n".join(head) + "\n"
    if opt("aslist", 0): out += f"; @launch kernel={KN} grid=(256,1,1) block=(512,1,1) lds={LDS}\n"
    else: out += f"; @launch grid=(256,1,1) block=(512,1,1) lds={LDS}\n"
    out += '.amdgcn_target "amdgcn-amd-amdhsa--gfx950"\n.text\n'
    a = Asm(); gen(a)
    for b in a.check_edges(): print("EDGE HAZARD", b, file=sys.stderr)
    out += f".globl {KN}\n.p2align 8\n.type {KN},@function\n" + a.text()
    out += f""".section .rodata,"a"
.p2align 6
.amdhsa_kernel {KN}
  .amdhsa_next_free_vgpr 256
  .amdhsa_next_free_sgpr 102
  .amdhsa_accum_offset 256
  .amdhsa_group_segment_fixed_size 0
  .amdhsa_kernarg_size 88
  .amdhsa_user_sgpr_count 2
  .amdhsa_user_sgpr_kernarg_segment_ptr 1
  .amdhsa_system_sgpr_workgroup_id_x 1
  .amdhsa_float_denorm_mode_32 3
.end_amdhsa_kernel
"""
    open(sys.argv[1], "w").write(out)
main()
```

```python
import sys, math, struct
from asmlib import Asm

NAME = "gather_scatter__cheap_equivariant_egnn__graph"
KN = NAME + "_kernel"
def f32bits(x): return struct.unpack("<I", struct.pack("<f", x))[0]
NLOG2E = f32bits(-math.log2(math.e)); NLN2 = f32bits(-math.log(2.0))
OPT = dict(a.split("=") for a in sys.argv[2:]) if len(sys.argv) > 2 else {}
def opt(k, d): return type(d)(OPT.get(k, d))
STAMP = opt("stamp", 0)

CH = 3128; CHB = CH * 12; CHS = opt('chs', 37632); NQ = CH // 4; NQ_LAST = (800000 - 255 * CH) // 4
WSO = opt('wso', 0) << 20
WS_GRAN = 0x00A00000; WS_POSF = 0x00B00000; WS_ACC = 0x01000000; WS_STAMP = 0x08000000
GMUL = 10737; GMAGIC = 51201995
L_CUR = 0; L_FLAG = 64; L_EPOCH = 68; L_TBL = 0x100; L_IMG = 0x1100; L_GB = 0x5100
L_WH = L_GB + 8 * 8192
L_REC = L_WH + 16384
PADO = 128 * 98 + 384 * 16; PLANE = 18944; PO1 = PLANE // 256; PO2 = 2 * PO1
L_PAD = L_REC + PADO
LDS = L_REC + 3 * PLANE
L_STG = L_GB; L_HIST = L_GB + 37632; L_OFFS = L_HIST + 1024; L_WF = L_GB + 40960
assert LDS <= 163840 and PADO + 128 <= PLANE and L_GB % 256 == 0
PADW = (32767 << 7) | (7 << 3)
HUGE = 0x40000000
TAGK = 0x9E3779B9

D0 = 16; D1 = 32; T = 48; MP = 64; A2 = 72; A1 = 80; XR = 96
W2F = 100; BXA0 = 132; BXA1 = 136; BXB0 = 140; BXB1 = 144
ACCA0 = 148; ACCA1 = 164; ACCB0 = 180; ACCB1 = 196
COLC = 212; RDA = 216; TRA = 220; IMGB = 221; LANEQ = 222; LANEE = 223
WQ = 224; W2E = 228; ADE = 230; PS = 232; CURB = 235; HA = 236; PA = 237; PV = 238; CURL = 239
PD = 240; WX0 = 243; VAL = 244; IMGA = 246; S8 = 247; S16 = 248; ADQ = 249
ZERO = 250; D2 = 252; PIX = 253; WX1 = 254
LANE = 1; SW = 2; I12 = 3; I12H = 4; BPX = 5; FOUR = 6; TMP = 7; HB = 8
S_H = 8; S_POSF = 12; S_REC = 16; S_POS = 20; S_OUT = 24; S_ACC = 28; S_MASK = 32; S_HJ = 32
S_W = 64; S_B = 65; S_NA = 66; S_NB = 67; S_CA = 68; S_CB = 69
S_LO = 70; S_HI = 72; S_GM = 74; S_TBL = 75; S_TBLA = 76; S_TBLB = 77
S_NEXT = 78; S_END = 79; S_JUMP = 80; S_END2 = 81; S_PADB = 82; S_PADE = 83
S_REM = 84; S_TB = 85; S_GB = 86; S_WIN = 87; S_ROUND = 88; S_MORE = 89; S_T0 = 90; S_T1 = 91; S_T3 = 92
S_SEG = 93; S_ACCO = 94; S_FLIP = 95; S_WX = 96; S_SUB = 100; S_SPIN = 101; S_FLIP2 = 101; S_HA = 52; S_HB = 53; S_QA = 56; S_PEND = 78; S_LEFT = 80

def vr(b, n): return f"v[{b}:{b+n-1}]"
def sr(b, n): return f"s[{b}:{b+n-1}]"
def srd(a, d, lo, hi, off, num, stride=0):
    if off > 0:
        a(f"s_add_u32 s{d}, s{lo}, {hex(off)}"); a(f"s_addc_u32 s{d+1}, s{hi}, 0")
    elif off < 0:
        a(f"s_sub_u32 s{d}, s{lo}, {hex(-off)}"); a(f"s_subb_u32 s{d+1}, s{hi}, 0")
    else:
        a(f"s_mov_b32 s{d}, s{lo}"); a(f"s_mov_b32 s{d+1}, s{hi}")
    if stride: a(f"s_or_b32 s{d+1}, s{d+1}, {hex(stride << 16)}")
    a(f"s_mov_b32 s{d+2}, {hex(num)}"); a(f"s_mov_b32 s{d+3}, 0x20000")
def stamp(a, idx, cyc=False):
    if not STAMP: return
    if STAMP == 4:
        if cyc or idx in (0, 18, 20, 21, 22): return
        idx = {16: 10, 17: 11, 19: 12}.get(idx, idx)
    a(f"{'s_memtime' if cyc else 's_memrealtime'} s[6:7]"); a("s_waitcnt lgkmcnt(0)"); a(f"v_writelane_b32 v255, s6, {idx}")
def stamp_out(a):
    if not STAMP: return
    if STAMP == 4:
        a("s_mov_b64 exec, -1")
        a("s_load_dwordx2 s[32:33], s[0:1], 72"); a("s_waitcnt lgkmcnt(0)")
        srd(a, 36, 32, 33, 0, 256)
        a(f"buffer_load_dword v17, v{ZERO}, s[36:39], 0 offen sc0 sc1")
        a("v_readlane_b32 s4, v255, 9"); a("v_readlane_b32 s5, v255, 10"); a("v_readlane_b32 s6, v255, 6")
        a("s_waitcnt vmcnt(0)")
        a("v_readfirstlane_b32 s7, v17")
        a("s_lshl_b32 s32, s7, 1"); a("s_add_u32 s32, s32, 10000")
        a("s_sub_u32 s4, s32, s4"); a("s_sub_u32 s5, s32, s5"); a("s_sub_u32 s6, s32, s6")
        a("v_writelane_b32 v255, s4, 13"); a("v_writelane_b32 v255, s5, 14"); a("v_writelane_b32 v255, s6, 15")
        a("v_sub_u32 v255, v255, v17")
        a(f"v_lshlrev_b32 v16, 2, v{LANE}")
        a("s_mov_b64 exec, 0xfffe")
        a("buffer_atomic_umax v255, v16, s[36:39], 0 offen sc1")
        return
    a("s_mov_b64 exec, -1")
    a("s_load_dwordx2 s[32:33], s[0:1], 80"); a("s_waitcnt lgkmcnt(0)")
    srd(a, 36, 32, 33, WS_STAMP, 1 << 22)
    a("s_lshl_b32 s32, s2, 4"); a(f"s_add_u32 s32, s32, s{S_W}"); a("s_lshl_b32 s32, s32, 8")
    a(f"v_lshlrev_b32 v16, 2, v{LANE}")
    a("buffer_store_dword v255, v16, s[36:39], s32 offen")

def mfma32(d, a_, b_, c=None):
    return f"v_mfma_f32_32x32x16_bf16 {vr(d,16)}, {vr(a_,4)}, {vr(b_,4)}, {'0' if c == 0 else vr(d,16)}"
def silu_main(d, n=16):
    m = [f"v_exp_f32 v{T+j}, v{d+j}" for j in range(n)]
    m += [f"v_pk_add_f32 {vr(T+2*j,2)}, {vr(T+2*j,2)}, 1.0 op_sel_hi:[1,0]" for j in range(n//2)]
    m += [f"v_rcp_f32 v{T+j}, v{T+j}" for j in range(n)]
    m += [f"v_pk_mul_f32 {vr(T+2*j,2)}, {vr(T+2*j,2)}, {vr(d+2*j,2)}" for j in range(n//2)]
    m += [f"v_cvt_pk_bf16_f32 v{MP+j}, v{T+2*j}, v{T+2*j+1}" for j in range(n//2)]
    return m
def emit(a, main, ins):
    for t in ins.get(-1, []): a(t)
    for i, m in enumerate(main):
        a(m)
        for t in ins.get(i, []): a(t)
def gstate(isA=True):
    o = [f"s_add_u32 s{S_NEXT}, s{S_NEXT}, 128", f"s_cmp_eq_u32 s{S_NEXT}, s{S_END}",
         f"s_cselect_b32 s{S_NEXT}, s{S_JUMP}, s{S_NEXT}", f"s_cselect_b32 s{S_END}, s{S_END2}, s{S_END}"]
    if isA: o += [f"s_cselect_b32 s{S_JUMP}, s{S_PADB}, s{S_JUMP}", f"s_cselect_b32 s{S_END2}, s{S_PADE}, s{S_END2}"]
    return o
def g_reads(e, wq=WQ, isA=True):
    return [f"v_add_u32 v{ADQ}, s{S_NEXT}, v{LANEQ}", f"v_add_u32 v{ADE+e}, s{S_NEXT}, v{LANEE}",
            f"ds_read_b128 {vr(wq,4)}, v{ADQ}", f"ds_read_b32 v{W2E+e}, v{ADE+e}"] + gstate(isA)
def g_addr(wq=WQ): return [f"v_and_or_b32 v{wq+j}, v{wq+j}, s{S_GM}, v{COLC+j}" for j in range(4)]
def g_m0(e): return [f"s_add_u32 m0, s{S_GB}, {e*4096}"]
def g_dma(wq=WQ): return [f"buffer_load_dwordx4 v{wq+j}, {sr(S_HJ+4*j,4)}, 0 offen offset:{j*1024} {opt('gp', '')} lds" for j in range(4)]
def pos_gather(): return f"buffer_load_dwordx3 {vr(PS,3)}, v{PIX}, {sr(S_POSF,4)}, 0 idxen sc1"
def e_head(e):
    return [f"v_and_b32 v{S8}, 0x38, v{W2E+e}", f"v_lshl_add_u32 v{S16}, v{S8}, 1, s{S_TBL}", f"ds_read_b96 {vr(PD,3)}, v{S16} offset:128",
            f"v_bfe_u32 v{PIX}, v{W2E+1-e}, 7, 15"]
def e_sect(e, zero=True):
    o = [f"s_mov_b64 exec, {sr(S_LO,2)}", f"ds_read_b128 {vr(XR,4)}, v{S16}", f"s_mov_b64 exec, {sr(S_HI,2)}"]
    o += [f"v_sub_f32 v{PD+k}, v{PD+k}, v{PS+k}" for k in range(3)]
    o += [f"v_cvt_pk_bf16_f32 v{VAL}, 1.0, v{PD}", f"v_cvt_pk_bf16_f32 v{VAL+1}, v{PD+1}, v{PD+2}",
          f"v_dot2_f32_bf16 v{D2}, v{VAL}, v{VAL}, -1.0", f"v_dot2_f32_bf16 v{D2}, v{VAL+1}, v{VAL+1}, v{D2}",
          f"ds_read2st64_b32 {vr(XR,2)}, v{ADE+e} offset0:{PO1} offset1:{PO2}"]
    if zero: o += [f"ds_write_b64 v{IMGA}, {vr(ZERO,2)}"]
    o += [f"v_add_u32 v{IMGA}, v{S8}, v{IMGB}", f"ds_write_b64 v{IMGA}, {vr(VAL,2)}", pos_gather(),
          f"v_cvt_pk_bf16_f32 v{XR+2}, v{D2}, v{D2}", "s_mov_b64 exec, -1"]
    return o
def a1_reads(e): return [f"ds_read_b128 {vr(A1+4*s,4)}, v{RDA+s} offset:{e*4096}" for s in range(4)]
def tr_reads(): return [f"ds_read_b64_tr_b16 {vr(A2+2*k,2)}, v{TRA} offset:{k*512}" for k in range(4)]

OP = opt('op', 'nt').replace('+', ' ')
NPF = opt('npf', 0)
PRIO = opt("prio", 2)
_lbl = [0]
XPOS = {16: "0,3,24,27,30,33,36,25,26", 12: "0,3,6,18,21,24,36,11,13", 8: "0,3,12,15,18,24,26,13,14", 4: "0,3,6,9,12,13,13,7,8"}
YPOS = {16: "0,3,6,24,27,30,33,1,7,8,10,11", 12: "0,3,6,18,21,24,36,1,7,8,10,11", 8: "0,0,4,12,15,18,24,1,5,6,7,13", 4: "0,0,2,6,9,12,13,1,3,6,7,8"}
def phase_x(a, p, acc1, bx1, isA, n=16, last=False):
    e = 1 - p
    ins = {}; pre = []
    def add(k, l): ins[k] = ins.get(k, []) + l
    if isA:
        pre += [f"s_sub_u32 s{S_REM}, s{S_REM}, 1", f"s_cmp_eq_u32 s{S_REM}, 0", f"s_cselect_b32 s{S_TBL}, s{S_TBLB}, s{S_TBLA}"]
        if PRIO == 2:
            _lbl[0] += 1; L = f"KP{_lbl[0]}"
            add(2, [f"s_cmp_lg_u32 s{S_REM}, s{S_FLIP}", f"s_cbranch_scc1 {L}", "s_setprio 1", f"{L}:"])
            _lbl[0] += 1; L = f"KP{_lbl[0]}"
            add(n*7//2 - 2, [f"s_cmp_lg_u32 s{S_REM}, s{S_FLIP2}", f"s_cbranch_scc1 {L}", "s_setprio 1", f"{L}:"])
    if STAMP == 2:
        pre += ["s_memtime s[6:7]", "s_waitcnt lgkmcnt(0)", "s_mov_b32 m0, s5", "s_add_u32 s5, s5, 1", "v_writelane_b32 v255, s6, m0"]
    if STAMP == 3:
        pre += ["s_memtime s[6:7]", "s_memrealtime s[54:55]", "s_waitcnt lgkmcnt(0)", "s_mov_b32 m0, s5", "s_add_u32 s5, s5, 1", "v_writelane_b32 v255, s6, m0",
                "s_mov_b32 m0, s5", "s_add_u32 s5, s5, 1", "v_writelane_b32 v255, s54, m0"]
    ins[-1] = pre
    XP = [int(x) for x in opt(f"xp{n}", XPOS[n]).split(",")]
    mf = [mfma32(acc1, A2, MP), mfma32(acc1, A2+4, MP+4), mfma32(D1, XR, bx1, 0)] + [mfma32(D1, A1+4*s, W2F+16+4*s) for s in range(4)]
    for k, m in zip(XP[:7], mf): add(k, [m])
    tr = tr_reads()
    add(XP[1]+1, tr[:2]); add(XP[1]+2, tr[2:])
    if not last:
        add(0, e_head(e))
        add(XP[7], ["s_waitcnt vmcnt(4) lgkmcnt(4)"] + e_sect(e))
        add(XP[8], g_reads(e, isA=isA))
        add(min(XP[6]+1, n*7//2 - 1), a1_reads(e))
    assert XP[7] > XP[2] and XP[7] > XP[1]+2 and XP[8] > XP[7] and XP[6]+1 > XP[8]
    emit(a, silu_main(D0, n), ins)

def phase_y(a, p, acc0, bx0, n=16, last=False):
    e = 1 - p
    ins = {}
    def add(k, l): ins[k] = ins.get(k, []) + l
    ins[-1] = ["s_waitcnt lgkmcnt(0)" if last else "s_waitcnt lgkmcnt(10)"]
    YP = [int(x) for x in opt(f"yp{n}", YPOS[n]).split(",")]
    mf = [mfma32(acc0, A2, MP), mfma32(acc0, A2+4, MP+4), mfma32(D0, A1, W2F, 0)] + [mfma32(D0, A1+4*s, W2F+4*s) for s in range(1, 4)] + [mfma32(D0, XR, bx0)]
    if not last: add(YP[2], ["s_waitcnt lgkmcnt(0)"])
    for i, (k, m) in enumerate(zip(YP[:7], mf)):
        if (n <= 8 and i == 1) or (last and i >= 2): continue
        add(k, [m])
    if not last:
        add(0, g_m0(e))
        add(YP[7], (["s_waitcnt lgkmcnt(5)"] if YP[7] < YP[2] else []) + g_addr())
        for k, d in zip(YP[8:], g_dma()): add(k, [d])
    assert min(YP[8:]) >= YP[2] and min(YP[8:]) >= YP[7]
    emit(a, silu_main(D1, n), ins)

def node_sel(a, cond, vnode, vcnt, vtmp):
    a(cond)
    a(f"v_mov_b32 v{vnode}, s{S_NB}"); a(f"v_mov_b32 v{vcnt}, s{S_NA}")
    a(f"v_cndmask_b32 v{vnode}, v{vnode}, v{vcnt}, vcc")
    a(f"v_mov_b32 v{vcnt}, s{S_CB}"); a(f"v_mov_b32 v{vtmp}, s{S_CA}")
    a(f"v_cndmask_b32 v{vcnt}, v{vcnt}, v{vtmp}, vcc")

def cursor_init(a):
    a(f"v_lshlrev_b32 v13, 2, v{LANE}")
    a("s_mov_b64 exec, 0x1ffff"); a(f"ds_write_b32 v13, v{CURB}"); a("s_mov_b64 exec, -1")

def gen(a):
    a(f"{KN}:")
    a("s_cmp_ge_u32 s2, 256")
    a("s_cbranch_scc1 K_END")
    a("s_load_dwordx16 s[32:47], s[0:1], 0")
    a("s_load_dwordx4 s[48:51], s[0:1], 64")
    a("s_load_dwordx2 s[52:53], s[0:1], 80")
    if opt("cpf", 0) == 2:
        a("s_getpc_b64 s[4:5]")
        a("K_PC:")
        a("s_mov_b32 s3, K_END-K_PC-16")
        a("v_lshlrev_b32 v8, 4, v0")
        for k in range(2):
            a(f"v_add_u32 v12, {8192*k}, v8"); a("v_min_u32 v12, s3, v12")
            a(f"global_load_dwordx4 {vr(PD,4)}, v12, s[4:5]")
    stamp(a, 0); stamp(a, 14, True)
    a("s_cmp_eq_u32 s2, 255")
    a(f"s_movk_i32 s4, {NQ - 512}")
    a(f"s_cselect_b32 s4, {NQ_LAST - 512}, s4")
    a(f"s_mul_i32 s3, s2, {CH*4}")
    a("s_lshl_b32 s5, s3, 1")
    a("v_lshlrev_b32 v8, 4, v0")
    a("v_lshlrev_b32 v9, 5, v0")
    a("v_cmp_gt_u32 s[62:63], s4, v0")
    a(f"v_mov_b32 v12, {hex(HUGE)}")
    a("v_add_u32 v10, 0x2000, v8")
    a("v_add_u32 v11, 0x4000, v9")
    a("v_cndmask_b32 v10, v12, v10, s[62:63]")
    a("v_cndmask_b32 v11, v12, v11, s[62:63]")
    a("v_and_b32 v12, 0xff, v0")
    a("v_lshlrev_b32 v12, 2, v12")
    a(f"v_mov_b32 v{ZERO}, 0")
    a(f"ds_write_b32 v12, v{ZERO} offset:{L_HIST}")
    a("s_waitcnt lgkmcnt(0)")
    if WSO: a(f"s_add_u32 s52, s52, {hex(WSO)}"); a("s_addc_u32 s53, s53, 0")
    srd(a, 8, 40, 41, 0, 3200000)
    srd(a, 12, 38, 39, 0, 3200000)
    srd(a, 16, 36, 37, 0, 6400000)
    nt = " nt" if opt("k1nt", 1) else ""
    a(f"buffer_load_dwordx4 v[16:19], v8, s[8:11], s3 offen{nt}")
    a(f"buffer_load_dwordx4 v[20:23], v10, s[8:11], s3 offen{nt}")
    if opt("dstfirst", 0): a("s_barrier")
    a(f"buffer_load_dwordx4 v[24:27], v8, s[12:15], s3 offen{nt}")
    a(f"buffer_load_dwordx4 v[28:31], v10, s[12:15], s3 offen{nt}")
    a(f"buffer_load_dwordx4 v[32:35], v9, s[16:19], s5 offen{nt}")
    a(f"buffer_load_dwordx4 v[36:39], v9, s[16:19], s5 offen offset:16{nt}")
    a(f"buffer_load_dwordx4 v[40:43], v11, s[16:19], s5 offen{nt}")
    a(f"buffer_load_dwordx4 v[44:47], v11, s[16:19], s5 offen offset:16{nt}")
    NC = 0
    if opt("cpf", 0) == 1:
        a("s_getpc_b64 s[4:5]")
        a("K_PC:")
        a("s_mov_b32 s3, K_END-K_PC-16")
        for k in range(2):
            a(f"v_add_u32 v12, {8192*k}, v8"); a("v_min_u32 v12, s3, v12")
            a(f"global_load_dwordx4 {vr(PD,4)}, v12, s[4:5]")
        NC = 2
    if not opt("dstfirst", 0): a("s_barrier")
    a(f"v_and_b32 v{LANE}, 63, v0")
    a("v_lshrrev_b32 v12, 6, v0")
    a(f"v_readfirstlane_b32 s{S_W}, v12")
    RW = 148
    srd(a, S_ACC, 50, 51, 0, 256)
    a("v_mov_b32 v12, 0")
    a("s_cmp_lg_u32 s2, 0"); a("s_cbranch_scc1 K_NOEP")
    a(f"s_cmp_lg_u32 s{S_W}, 7"); a("s_cbranch_scc1 K_NOEP")
    a("s_memrealtime s[4:5]")
    a("s_waitcnt lgkmcnt(0)")
    a("s_or_b32 s4, s4, 1")
    a("v_mov_b32 v13, s4")
    a("s_mov_b64 exec, 1")
    a(f"buffer_store_dword v13, v12, {sr(S_ACC,4)}, 0 offen sc0 sc1")
    a("s_mov_b64 exec, -1")
    a("K_NOEP:")
    a(f"v_mov_b32 v{ZERO+1}, 0")
    a("s_and_b32 s3, s2, 7"); a("s_lshl_b32 s3, s3, 5")
    a(f"s_lshr_b32 s{S_B}, s2, 3"); a(f"s_add_u32 s{S_B}, s{S_B}, s3")
    a(f"s_lshl_b32 s4, s{S_B}, 20"); a(f"s_add_u32 s4, s4, {GMUL-1}")
    a(f"s_mov_b32 s7, {GMAGIC}")
    a(f"v_lshl_add_u32 v12, v{LANE}, 16, s4")
    a("v_add_u32 v13, 0x10000, v12")
    a("v_mul_hi_u32 v12, v12, s7"); a("v_mul_hi_u32 v13, v13, s7")
    a("v_lshrrev_b32 v12, 7, v12"); a("v_lshrrev_b32 v13, 7, v13")
    a("v_min_u32 v13, 25000, v13")
    a(f"s_mov_b32 s4, s{S_W}"); a("s_add_u32 s5, s4, 8")
    a("v_readlane_b32 s3, v12, 0"); a(f"v_readlane_b32 s{S_CA}, v13, s4")
    a(f"v_readlane_b32 s{S_NA}, v12, s4"); a(f"v_readlane_b32 s{S_NB}, v12, s5"); a(f"v_readlane_b32 s{S_CB}, v13, s5")
    a(f"v_mul_u32_u24 v14, 384, v{LANE}")
    a("s_lshl_b32 s3, s3, 7"); a(f"s_sub_u32 s3, {L_REC}, s3")
    a(f"v_lshl_add_u32 v{CURB}, v12, 7, v14"); a(f"v_add_u32 v{CURB}, s3, v{CURB}")
    a(f"v_lshl_add_u32 v{CURL}, v13, 7, v14"); a("s_add_u32 s3, s3, 384"); a(f"v_add_u32 v{CURL}, s3, v{CURL}")
    a(f"v_cmp_gt_u32 vcc, 16, v{LANE}")
    a(f"s_sub_u32 s{S_CB}, s{S_CB}, s{S_NB}"); a(f"s_sub_u32 s{S_CA}, s{S_CA}, s{S_NA}")
    a(f"v_cndmask_b32 v{CURB}, 0, v{CURB}, vcc")
    a(f"v_and_b32 v9, 31, v{LANE}")
    a(f"v_lshrrev_b32 v10, 5, v{LANE}")
    a(f"v_lshlrev_b32 v11, 4, v{LANE}")
    a(f"v_and_b32 v12, 7, v{LANE}")
    node_sel(a, f"v_cmp_gt_u32 vcc, 8, v{LANE}", 13, 14, 15)
    a("v_cmp_lt_u32 vcc, v12, v14")
    a(f"v_cmp_gt_u32 s[60:61], 16, v{LANE}")
    a("v_add_u32 v13, v13, v12"); a("v_mov_b32 v14, 0x7fff")
    a("s_and_b64 vcc, vcc, s[60:61]")
    a(f"v_cndmask_b32 v{PIX}, v14, v13, vcc")
    a(f"v_mul_u32_u24 v{D2}, 6, v{PIX}")
    srd(a, S_POS, 34, 35, 0, 150000)
    N1 = NC
    a("v_and_b32 v12, 3, v9"); a("v_bfe_u32 v13, v9, 3, 1"); a("v_lshl_or_b32 v12, v13, 2, v12")
    node_sel(a, "v_cmp_gt_u32 vcc, 16, v9", 13, 14, 15)
    a("v_and_b32 v15, 4, v9"); a("v_lshl_or_b32 v15, v15, 1, v12")
    a("v_cmp_lt_u32 vcc, v15, v14")
    a("v_add_u32 v13, v13, v12"); a("v_lshlrev_b32 v13, 7, v13"); a("v_lshl_add_u32 v13, v10, 4, v13")
    a(f"v_mov_b32 v14, {hex(HUGE)}")
    a(f"v_cndmask_b32 v{S8}, v14, v13, vcc")
    srd(a, S_H, 32, 33, 0, 3200000)
    srd(a, 56, 42, 43, 0, 133 * 128)
    srd(a, 40, 46, 47, 0, 128 * 128)
    srd(a, S_POSF, 52, 53, WS_POSF, 25000, stride=16)
    srd(a, S_REC, 52, 53, 0, WS_GRAN + 256 * 4096)
    if opt("tlb", 0):
        srd(a, S_OUT, 48, 49, 0, 3350000)
        srd(a, S_WX, 52, 53, 0, WS_POSF + 400000)
        a(f"s_cmp_lg_u32 s{S_W}, 5"); a("s_cbranch_scc1 K_NOTLB")
        a(f"v_lshlrev_b32 v12, {opt('tlb', 0)}, v{LANE}")
        a(f"buffer_load_dword v{PD}, v12, {sr(S_WX,4)}, 0 offen")
        a(f"buffer_load_dword v{PD}, v12, {sr(S_H,4)}, 0 offen")
        a(f"buffer_load_dword v{PD}, v12, {sr(S_OUT,4)}, 0 offen")
        a("K_NOTLB:")
    a("v_mov_b32 v14, 12")
    a(f"s_mul_i32 s54, s2, {CHS}")
    for g in range(2):
        a(f"s_waitcnt vmcnt({N1 + 7 - g})")
        if g == 0: stamp(a, 1)
        if g == 1: a("s_mov_b64 exec, s[62:63]")
        for k in range(4):
            i = 4*g + k
            a(f"v_mul_u32_u24 v{48+i}, {hex(GMUL)}, v{16+i}")
            a(f"v_lshrrev_b32 v{56+i}, 18, v{48+i}")
            a(f"v_and_b32 v{56+i}, 0x3fc, v{56+i}")
            a(f"ds_add_rtn_u32 v{64+i}, v{56+i}, v14 offset:{L_HIST}")
    a("s_mov_b64 exec, -1")
    for j in range(3): a(f"buffer_load_ushort v{RW+8+j}, v{D2}, {sr(S_POS,4)}, 0 offen offset:{2*j}")
    a(f"buffer_load_dword v{RW+12}, v{ZERO}, {sr(S_ACC,4)}, 0 offen sc0 sc1")
    for s in range(4): a(f"buffer_load_dwordx4 {vr(A1+4*s,4)}, v{S8}, {sr(S_H,4)}, 0 offen offset:{32*s}")
    N1 += 8
    if opt("wpf", 0):
        a("s_lshr_b32 s4, s2, 3"); a("s_lshl_b32 s4, s4, 10"); a("s_and_b32 s5, s4, 0x3fff")
        a(f"s_cmp_lg_u32 s{S_W}, 6"); a("s_cbranch_scc1 K_NOWPF")
        a(f"buffer_load_dwordx4 {vr(PD,4)}, v11, s[56:59], s4 offen")
        a(f"buffer_load_dwordx4 {vr(PD,4)}, v11, s[40:43], s5 offen")
        a("K_NOWPF:")
    a("s_mov_b32 s6, 400016")
    for i in range(8):
        a(f"v_and_b32 v{16+i}, 0xffff, v{48+i}")
        a(f"v_mul_hi_u32 v{16+i}, v{16+i}, s6")
        a(f"v_bfe_u32 v{48+i}, v{48+i}, 16, 4")
        a(f"v_lshlrev_b32 v{16+i}, 3, v{16+i}")
        a(f"v_lshl_or_b32 v{16+i}, v{48+i}, 24, v{16+i}")
    a("s_waitcnt lgkmcnt(0)")
    a("s_barrier")
    stamp(a, 2)
    a(f"ds_read_b128 v[72:75], v11 offset:{L_HIST}")
    a(f"s_lshl_b32 s4, s{S_W}, 8")
    a(f"v_lshl_add_u32 v15, v{LANE}, 2, s4")
    a(f"ds_read_b32 v76, v15 offset:{L_HIST}")
    a("s_waitcnt lgkmcnt(1)")
    a("v_add_u32 v49, v72, v73"); a("v_add_u32 v50, v49, v74"); a("v_add_u32 v51, v50, v75")
    a("v_mov_b32 v52, v51")
    for sh in (1, 2, 4, 8): a(f"v_add_u32_dpp v52, v52, v52 row_shr:{sh} row_mask:0xf bank_mask:0xf bound_ctrl:0")
    a("v_add_u32_dpp v52, v52, v52 row_bcast:15 row_mask:0xa bank_mask:0xf")
    a("v_add_u32_dpp v52, v52, v52 row_bcast:31 row_mask:0xc bank_mask:0xf")
    a("v_sub_u32 v52, v52, v51"); a("v_add_u32 v53, v52, v72"); a("v_add_u32 v54, v52, v49"); a("v_add_u32 v55, v52, v50")
    a(f"ds_write_b128 v11, v[52:55] offset:{L_OFFS}")
    a("s_waitcnt lgkmcnt(0)")
    for i in range(8): a(f"ds_read_b32 v{48+i}, v{56+i} offset:{L_OFFS}")
    a(f"ds_read_b32 v77, v15 offset:{L_OFFS}")
    a(f"s_waitcnt vmcnt({N1 + 4})")
    for i in range(8): a(f"v_lshl_or_b32 v{16+i}, v{24+i}, 7, v{16+i}")
    a("s_waitcnt lgkmcnt(0)")
    for i in range(8): a(f"v_add_u32 v{48+i}, v{48+i}, v{64+i}")
    a("v_lshl_or_b32 v76, v76, 16, v77")
    for g in range(2):
        if g == 1: a("s_mov_b64 exec, s[62:63]")
        for k in range(4): a(f"ds_write_b32 v{48+4*g+k}, v{16+4*g+k} offset:{L_STG+8}")
        for k in range(4): a(f"v_add_u32 v{56+4*g+k}, {L_STG}, v{48+4*g+k}")
        a(f"s_waitcnt vmcnt({N1 + 2 - 2*g})")
        for k in range(4):
            i = 4*g + k
            a(f"ds_write2_b32 v{56+i}, v{32+2*i}, v{33+2*i} offset0:0 offset1:1")
    a("s_mov_b64 exec, -1")
    N2 = 9
    a(f"v_cmp_gt_u32 vcc, {CHS//16 - 2048}, v0")
    a(f"v_mov_b32 v12, {hex(HUGE)}")
    a("v_cndmask_b32 v12, v12, v8, vcc")
    a("s_waitcnt vmcnt(5)")
    for j in range(3): a(f"v_lshlrev_b32 v{68+j}, 16, v{RW+8+j}")
    a("v_mov_b32 v71, 0")
    a("s_mov_b64 exec, 0xffff")
    a(f"buffer_store_dwordx4 v[68:71], v{PIX}, {sr(S_POSF,4)}, 0 idxen sc1")
    a("s_mov_b64 exec, -1")
    a("s_movk_i32 s4, 0x2000")
    a(f"buffer_load_dwordx4 {vr(RW,4)}, v8, {sr(56,4)}, s4 offen")
    a("s_movk_i32 s4, 0x4000")
    a(f"buffer_load_dwordx4 {vr(RW+4,4)}, v11, {sr(56,4)}, s4 offen")
    a(f"s_lshl_b32 s5, s{S_W}, 10")
    a(f"s_add_u32 m0, s5, {L_WF + 8192}"); a("s_nop 0")
    a(f"buffer_load_dwordx4 v8, {sr(56,4)}, 0 offen lds")
    a(f"s_add_u32 m0, s5, {L_WH}"); a("s_nop 0")
    a(f"buffer_load_dwordx4 v8, s[40:43], 0 offen lds")
    a(f"s_add_u32 m0, s5, {L_WH + 8192}"); a("s_movk_i32 s4, 0x2000")
    a(f"buffer_load_dwordx4 v8, s[40:43], s4 offen lds")
    stamp(a, 3)
    a("s_waitcnt lgkmcnt(0)")
    a("s_barrier")
    if opt("cprio", 1): a("s_setprio 3")
    for j in range(5): a(f"ds_read_b128 {vr(16+4*j,4)}, v8 offset:{L_STG + 8192*j}")
    for j in range(5):
        a(f"s_waitcnt lgkmcnt({4-j})")
        a(f"buffer_store_dwordx4 {vr(16+4*j,4)}, v{8 if j < 4 else 12}, {sr(S_REC,4)}, s54 offen {opt('stp', 'sc1').replace('+', ' ')}")
        if j < 4: a("s_add_u32 s54, s54, 8192")
    if opt("cprio", 1): a("s_setprio 0")
    stamp(a, 4)
    if opt("lateconst", 0):
        pass
    cursor_init(a)
    a(f"s_mov_b32 s{S_LO}, -1"); a(f"s_mov_b32 s{S_LO+1}, 0"); a(f"s_mov_b32 s{S_HI}, 0"); a(f"s_mov_b32 s{S_HI+1}, -1")
    if not opt("lateconst", 0):
        a(f"s_lshl_b32 s{S_TBLA}, s{S_W}, 8"); a(f"s_add_u32 s{S_TBLA}, s{S_TBLA}, {L_TBL}"); a(f"s_add_u32 s{S_TBLB}, s{S_TBLA}, 2048")
        a(f"v_and_b32 v12, 7, v{LANE}"); a("v_lshrrev_b32 v13, 1, v12"); a("v_and_b32 v14, 1, v12"); a("v_lshlrev_b32 v14, 4, v14")
        a("v_mov_b32 v60, 0x3f80"); a("v_lshlrev_b32 v14, v14, v60")
        for j in range(4):
            a(f"v_cmp_eq_u32 vcc, {j}, v13"); a(f"v_cndmask_b32 v{48+j}, 0, v14, vcc")
        a(f"v_bfe_u32 v13, v{LANE}, 3, 1"); a("v_lshlrev_b32 v13, 11, v13"); a("v_lshl_add_u32 v13, v12, 4, v13")
        a(f"v_add_u32 v{TMP}, s{S_TBLA}, v13")
        a("s_mov_b64 exec, 0xffff"); a(f"ds_write_b128 v{TMP}, v[48:51]"); a(f"ds_write_b128 v{TMP}, v[68:71] offset:128"); a("s_mov_b64 exec, -1")
        srd(a, S_OUT, 48, 49, 0, 3350000)
        srd(a, S_WX, 44, 45, 0, 128)
        a(f"s_mov_b32 s{S_GM}, 0x3fff80")
        a(f"s_lshl_b32 s{S_GB}, s{S_W}, 13"); a(f"s_add_u32 s{S_GB}, s{S_GB}, {L_GB}")
        a(f"s_mov_b32 s{S_WIN}, {32*12}"); a(f"s_mov_b32 s{S_ROUND}, 1"); a(f"s_mov_b32 s{S_PADB}, {L_PAD}"); a(f"s_mov_b32 s{S_PADE}, {L_PAD+128}")
        a(f"s_lshl_b32 s{S_ACCO}, s2, 3"); a(f"s_add_u32 s{S_ACCO}, s{S_ACCO}, s{S_W}"); a(f"s_lshl_b32 s{S_ACCO}, s{S_ACCO}, 14")
        a(f"s_mul_i32 s{S_SEG}, s{S_W}, {32*CHS}")
        a(f"v_mov_b32 v{FOUR}, 4")
        a(f"v_mul_u32_u24 v{I12}, 12, v9"); a(f"v_mul_u32_u24 v{I12H}, {CHS}, v10"); a(f"v_add_u32 v{I12H}, v{I12H}, v{I12}")
        a(f"v_lshlrev_b32 v{BPX}, 2, v10")
        a(f"s_lshl_b32 s4, s{S_W}, 11"); a(f"s_add_u32 s4, s4, {L_IMG}")
        for j in range(4): a(f"v_mov_b32 v{48+j}, 0")
        a("v_add_u32 v12, s4, v11")
        a("ds_write_b128 v12, v[48:51]"); a("ds_write_b128 v12, v[48:51] offset:1024")
        a(f"v_lshl_add_u32 v{IMGB}, v9, 6, s4")
        a(f"v_bfe_u32 v12, v{LANE}, 2, 2"); a("v_lshl_add_u32 v12, v10, 2, v12"); a("v_lshlrev_b32 v12, 6, v12")
        a(f"v_bfe_u32 v13, v{LANE}, 4, 1"); a("v_lshl_add_u32 v12, v13, 5, v12")
        a(f"v_and_b32 v13, 3, v{LANE}"); a("v_lshl_add_u32 v12, v13, 3, v12")
        a(f"v_add_u32 v{TRA}, s4, v12")
        a(f"v_and_b32 v12, 7, v{LANE}"); a(f"v_bfe_u32 v13, v{LANE}, 4, 1"); a("v_lshlrev_b32 v13, 2, v13"); a("v_xor_b32 v12, v12, v13")
        for j in range(4):
            a(f"v_xor_b32 v13, {j}, v12"); a(f"v_lshlrev_b32 v{COLC+j}, 4, v13")
        a("v_and_b32 v12, 3, v9"); a("v_lshrrev_b32 v13, 2, v9"); a("v_lshl_add_u32 v13, v12, 3, v13"); a("v_lshlrev_b32 v13, 7, v13")
        a(f"v_add_u32 v13, s{S_GB}, v13")
        a("v_bfe_u32 v14, v9, 3, 1"); a("v_lshl_or_b32 v12, v14, 2, v12"); a("v_xor_b32 v12, v12, v10")
        for s in range(4):
            a(f"v_xor_b32 v14, {2*s}, v12"); a(f"v_lshl_add_u32 v{RDA+s}, v14, 4, v13")
        a(f"v_lshrrev_b32 v12, 3, v{LANE}"); a(f"v_lshlrev_b32 v{LANEQ}, 4, v12"); a(f"v_lshlrev_b32 v{LANEE}, 2, v9")
        a(f"v_mov_b32 v12, {hex(PADW)}"); a(f"v_add_u32 v13, s{S_PADB}, v{LANEE}")
        a("ds_write_b32 v13, v12"); a(f"ds_write2st64_b32 v13, v{ZERO}, v{ZERO} offset0:{PO1} offset1:{PO2}")
        a(f"v_mov_b32 v{XR+3}, 0")
    a(f"s_mov_b32 s4, {hex(NLOG2E)}"); a("s_mov_b32 s5, s4")
    a("s_waitcnt vmcnt(8)")
    for j in range(8):
        a(f"v_lshlrev_b32 v{32+2*j}, 16, v{RW+j}"); a(f"v_and_b32 v{33+2*j}, 0xffff0000, v{RW+j}")
    for j in range(8): a(f"v_pk_mul_f32 {vr(32+2*j,2)}, {vr(32+2*j,2)}, s[4:5]")
    for j in range(8): a(f"v_cvt_pk_bf16_f32 v{48+j}, v{32+2*j}, v{33+2*j}")
    a(f"v_add_u32 v16, {L_WF}, v8")
    a("ds_write_b128 v16, v[48:51]")
    for j in range(4):
        a(f"v_lshlrev_b32 v{56+2*j}, 16, v{52+j}"); a(f"v_and_b32 v{57+2*j}, 0xffff0000, v{52+j}")
    for j in range(4): a(f"v_pk_add_f32 {vr(56+2*j,2)}, {vr(40+2*j,2)}, {vr(56+2*j,2)} neg_lo:[0,1] neg_hi:[0,1]")
    for j in range(4): a(f"v_cvt_pk_bf16_f32 v{56+j}, v{56+2*j}, v{57+2*j}")
    a(f"v_add_u32 v16, {L_WF + 16384 - 128}, v11")
    a(f"v_add_u32 v17, {L_WF + 16384 + 512}, v11")
    a("s_mov_b64 exec, 0xff")
    a("ds_write_b128 v17, v[52:55]"); a("ds_write_b128 v17, v[56:59] offset:128")
    a("s_mov_b32 s6, 0xffffff00"); a("s_mov_b32 s7, 0xff0000ff"); a("s_mov_b64 exec, s[6:7]")
    a("ds_write_b128 v16, v[52:55]")
    a("s_mov_b32 s6, 0"); a("s_mov_b32 s7, 0xff000000"); a("s_mov_b64 exec, s[6:7]")
    a("ds_write_b128 v16, v[52:55] offset:128")
    a("s_mov_b64 exec, -1")
    a(f"v_bfe_u32 v18, v{LANE}, 2, 2"); a("v_lshlrev_b32 v16, 7, v18")
    a(f"v_bfe_u32 v18, v{LANE}, 4, 1"); a("v_lshl_add_u32 v16, v18, 5, v16")
    a(f"v_and_b32 v18, 3, v{LANE}"); a("v_lshl_add_u32 v16, v18, 3, v16")
    a(f"v_add_u32 v{VAL}, {L_WF + 16384}, v16")
    a("v_lshl_add_u32 v16, v10, 10, v16"); a(f"v_add_u32 v{VAL+1}, {L_WF}, v16")
    a("s_mov_b32 s5, 200000")
    a("s_memrealtime s[6:7]")
    a("s_waitcnt lgkmcnt(0)")
    a("K_EPW:")
    a(f"v_readfirstlane_b32 s4, v{RW+12}")
    a("s_sub_u32 s7, s6, s4"); a("s_add_u32 s7, s7, 100000")
    a("s_cmp_eq_u32 s4, 0"); a("s_cselect_b32 s7, -1, s7")
    a("s_cmp_lt_u32 s7, 200000"); a("s_cbranch_scc1 K_EPOK")
    a("s_cmp_eq_u32 s4, 0"); a("s_cselect_b32 s7, 1, 64")
    a("s_sub_u32 s5, s5, s7"); a("s_cbranch_scc1 K_EPOK")
    a(f"buffer_load_dword v{RW+12}, v{ZERO}, {sr(S_ACC,4)}, 0 offen sc0 sc1")
    a("s_waitcnt vmcnt(0)")
    a("s_branch K_EPW")
    a("K_EPOK:")
    srd(a, S_ACC, 52, 53, WS_ACC, 256 * 8 * 16384)
    a(f"v_mov_b32 v77, v{RW+12}")
    a("s_lshl_b32 s3, s2, 12"); a(f"s_add_u32 s3, s3, {hex(WS_GRAN)}")
    a("v_lshlrev_b32 v15, 2, v15")
    a(f"s_mov_b32 s4, {hex(TAGK)}")
    a("v_not_b32 v79, v77"); a(f"v_xor_b32 v{PS+2}, s4, v77"); a(f"v_xor_b32 v78, v76, v{PS+2}")
    a(f"v_mov_b32 v{PS}, v77"); a(f"v_mov_b32 v{PS+1}, v79")
    a(f"v_lshlrev_b32 v{IMGA}, 12, v9")
    a(f"s_lshl_b32 s5, s{S_W}, 17"); a(f"s_lshl_b32 s6, s{S_B}, 4"); a("s_add_u32 s5, s5, s6"); a(f"s_add_u32 s{S_T3}, s5, {hex(WS_GRAN)}")
    a("s_waitcnt vmcnt(0) lgkmcnt(0)")
    stamp(a, 5)
    a("s_barrier")
    a(f"s_cmp_ge_u32 s{S_W}, 4")
    a("s_cbranch_scc1 K_NOPUB")
    a(f"buffer_store_dwordx4 v[76:79], v15, {sr(S_REC,4)}, s3 offen sc1")
    a("K_NOPUB:")
    HPF = opt("hpf", 0)
    if HPF:
        a("s_lshr_b32 s3, s2, 3"); a("s_mul_i32 s3, s3, 100000")
        for k in range(HPF):
            a(f"buffer_load_dwordx4 {vr(PD,4)}, v8, {sr(S_H,4)}, s3 offen")
            a("s_add_u32 s3, s3, 8192")
    WT = ACCB0
    for f in range(8):
        for kk in range(2): a(f"ds_read_b64_tr_b16 {vr(WT+4*f+2*kk,2)}, v{VAL+1} offset:{8192 + (f&3)*2048 + kk*512 + (f>>2)*64}")
    a("s_waitcnt lgkmcnt(8)")
    for s in range(4): a(mfma32(ACCA0, A1+4*s, WT + 4*s, 0 if s == 0 else None))
    for nh, b in ((0, BXA0), (1, BXA1), (0, BXB0), (1, BXB1)):
        for kk in range(2): a(f"ds_read_b64_tr_b16 {vr(b+2*kk,2)}, v{VAL} offset:{kk*512 + nh*64}")
    a("s_waitcnt lgkmcnt(8)")
    for s in range(4): a(mfma32(ACCA1, A1+4*s, WT + 16 + 4*s, 0 if s == 0 else None))
    a("s_waitcnt lgkmcnt(0)")
    for f in range(8):
        for kk in range(2): a(f"ds_read_b64_tr_b16 {vr(W2F+4*f+2*kk,2)}, v{VAL+1} offset:{(f&3)*2048 + kk*512 + (f>>2)*64}")
    a(f"s_mov_b32 s4, {hex(NLOG2E)}"); a("s_mov_b32 s5, s4")
    a(f"s_mov_b64 exec, {sr(S_LO,2)}")
    for nh, d, ba, bb in ((0, ACCA0, BXA0, BXB0), (1, ACCA1, BXA1, BXB1)):
        for j in range(8): a(f"v_pk_mul_f32 {vr(d+2*j,2)}, {vr(d+2*j,2)}, s[4:5]")
        for j in range(4):
            a(f"v_cvt_pk_bf16_f32 v{ba+j}, v{d+2*j}, v{d+2*j+1}")
            a(f"v_cvt_pk_bf16_f32 v{bb+j}, v{d+8+2*j}, v{d+8+2*j+1}")
    a("s_mov_b64 exec, -1")
    for i in range(64): a(f"v_mov_b32 v{ACCA0+i}, 0")
    if opt("lateconst", 0):
        a(f"s_lshl_b32 s{S_TBLA}, s{S_W}, 8"); a(f"s_add_u32 s{S_TBLA}, s{S_TBLA}, {L_TBL}"); a(f"s_add_u32 s{S_TBLB}, s{S_TBLA}, 2048")
        a(f"v_and_b32 v12, 7, v{LANE}"); a("v_lshrrev_b32 v13, 1, v12"); a("v_and_b32 v14, 1, v12"); a("v_lshlrev_b32 v14, 4, v14")
        a("v_mov_b32 v60, 0x3f80"); a("v_lshlrev_b32 v14, v14, v60")
        for j in range(4):
            a(f"v_cmp_eq_u32 vcc, {j}, v13"); a(f"v_cndmask_b32 v{48+j}, 0, v14, vcc")
        a(f"v_bfe_u32 v13, v{LANE}, 3, 1"); a("v_lshlrev_b32 v13, 11, v13"); a("v_lshl_add_u32 v13, v12, 4, v13")
        a(f"v_add_u32 v{TMP}, s{S_TBLA}, v13")
        a("s_mov_b64 exec, 0xffff"); a(f"ds_write_b128 v{TMP}, v[48:51]"); a(f"ds_write_b128 v{TMP}, v[68:71] offset:128"); a("s_mov_b64 exec, -1")
        srd(a, S_OUT, 48, 49, 0, 3350000)
        srd(a, S_WX, 44, 45, 0, 128)
        a(f"s_mov_b32 s{S_GM}, 0x3fff80")
        a(f"s_lshl_b32 s{S_GB}, s{S_W}, 13"); a(f"s_add_u32 s{S_GB}, s{S_GB}, {L_GB}")
        a(f"s_mov_b32 s{S_WIN}, {32*12}"); a(f"s_mov_b32 s{S_ROUND}, 1"); a(f"s_mov_b32 s{S_PADB}, {L_PAD}"); a(f"s_mov_b32 s{S_PADE}, {L_PAD+128}")
        a(f"s_lshl_b32 s{S_ACCO}, s2, 3"); a(f"s_add_u32 s{S_ACCO}, s{S_ACCO}, s{S_W}"); a(f"s_lshl_b32 s{S_ACCO}, s{S_ACCO}, 14")
        a(f"s_mul_i32 s{S_SEG}, s{S_W}, {32*CHS}")
        a(f"v_mov_b32 v{FOUR}, 4")
        a(f"v_mul_u32_u24 v{I12}, 12, v9"); a(f"v_mul_u32_u24 v{I12H}, {CHS}, v10"); a(f"v_add_u32 v{I12H}, v{I12H}, v{I12}")
        a(f"v_lshlrev_b32 v{BPX}, 2, v10")
        a(f"s_lshl_b32 s4, s{S_W}, 11"); a(f"s_add_u32 s4, s4, {L_IMG}")
        for j in range(4): a(f"v_mov_b32 v{48+j}, 0")
        a("v_add_u32 v12, s4, v11")
        a("ds_write_b128 v12, v[48:51]"); a("ds_write_b128 v12, v[48:51] offset:1024")
        a(f"v_lshl_add_u32 v{IMGB}, v9, 6, s4")
        a(f"v_bfe_u32 v12, v{LANE}, 2, 2"); a("v_lshl_add_u32 v12, v10, 2, v12"); a("v_lshlrev_b32 v12, 6, v12")
        a(f"v_bfe_u32 v13, v{LANE}, 4, 1"); a("v_lshl_add_u32 v12, v13, 5, v12")
        a(f"v_and_b32 v13, 3, v{LANE}"); a("v_lshl_add_u32 v12, v13, 3, v12")
        a(f"v_add_u32 v{TRA}, s4, v12")
        a(f"v_and_b32 v12, 7, v{LANE}"); a(f"v_bfe_u32 v13, v{LANE}, 4, 1"); a("v_lshlrev_b32 v13, 2, v13"); a("v_xor_b32 v12, v12, v13")
        for j in range(4):
            a(f"v_xor_b32 v13, {j}, v12"); a(f"v_lshlrev_b32 v{COLC+j}, 4, v13")
        a("v_and_b32 v12, 3, v9"); a("v_lshrrev_b32 v13, 2, v9"); a("v_lshl_add_u32 v13, v12, 3, v13"); a("v_lshlrev_b32 v13, 7, v13")
        a(f"v_add_u32 v13, s{S_GB}, v13")
        a("v_bfe_u32 v14, v9, 3, 1"); a("v_lshl_or_b32 v12, v14, 2, v12"); a("v_xor_b32 v12, v12, v10")
        for s in range(4):
            a(f"v_xor_b32 v14, {2*s}, v12"); a(f"v_lshl_add_u32 v{RDA+s}, v14, 4, v13")
        a(f"v_lshrrev_b32 v12, 3, v{LANE}"); a(f"v_lshlrev_b32 v{LANEQ}, 4, v12"); a(f"v_lshlrev_b32 v{LANEE}, 2, v9")
        a(f"v_mov_b32 v12, {hex(PADW)}"); a(f"v_add_u32 v13, s{S_PADB}, v{LANEE}")
        a("ds_write_b32 v13, v12"); a(f"ds_write2st64_b32 v13, v{ZERO}, v{ZERO} offset0:{PO1} offset1:{PO2}")
        a(f"v_mov_b32 v{XR+3}, 0")
    stamp(a, 22)
    a(f"v_and_b32 v12, 7, v{LANE}"); a(f"v_and_b32 v13, 8, v{LANE}")
    node_sel(a, "v_cmp_eq_u32 vcc, 0, v13", 13, 14, 15)
    a("v_cmp_lt_u32 vcc, v12, v14")
    a("v_add_u32 v13, v13, v12"); a("v_lshlrev_b32 v13, 7, v13")
    a(f"v_lshrrev_b32 v14, 4, v{LANE}"); a("v_lshl_add_u32 v13, v14, 5, v13")
    a(f"v_mov_b32 v15, {hex(HUGE)}")
    a(f"v_cndmask_b32 v{HA}, v15, v13, vcc")
    a(f"v_bfe_u32 v12, v{LANE}, 2, 2"); a(f"v_lshrrev_b32 v13, 5, v{LANE}"); a("v_lshl_add_u32 v12, v12, 1, v13")
    a(f"v_and_b32 v13, 16, v{LANE}")
    node_sel(a, "v_cmp_eq_u32 vcc, 0, v13", 13, 14, 15)
    a("v_cmp_lt_u32 vcc, v12, v14")
    a("v_add_u32 v13, v13, v12"); a("v_mul_u32_u24 v13, 6, v13")
    a(f"v_and_b32 v14, 3, v{LANE}"); a("v_lshl_add_u32 v13, v14, 1, v13")
    a(f"v_cmp_gt_u32 {sr(S_T0,2)}, 3, v14")
    a(f"v_mov_b32 v15, {hex(HUGE)}")
    a(f"s_and_b64 vcc, vcc, {sr(S_T0,2)}")
    a(f"v_cndmask_b32 v{PA}, v15, v13, vcc")
    VL = S8
    a(f"v_mov_b32 v{SW}, 0"); a("v_mov_b32 v0, 0"); a(f"v_mov_b32 v{VL}, 0")
    a(f"s_mov_b32 s{S_PEND}, -1"); a(f"s_mov_b32 s{S_PEND+1}, 0"); a(f"s_mov_b32 s{S_LEFT}, 0")
    a(f"s_mov_b32 s{S_SPIN}, {opt('spin', 200000)}")
    a(f"s_mov_b32 s{S_SUB}, 0")
    a("s_waitcnt lgkmcnt(0)")
    a("K_POLL:")
    a(f"s_mov_b64 exec, {sr(S_PEND,2)}")
    a(f"buffer_load_dwordx4 {vr(PD,4)}, v{IMGA}, {sr(S_REC,4)}, s{S_T3} offen sc1")
    a("s_waitcnt vmcnt(0)")
    a(f"v_xor_b32 v{PD+2}, v{PD}, v{PD+2}")
    a(f"v_cmp_eq_u32 vcc, v{PD+1}, v{PS}"); a(f"v_cmp_eq_u32 s[60:61], v{PD+3}, v{PS+1}"); a(f"v_cmp_eq_u32 s[58:59], v{PD+2}, v{PS+2}")
    a("s_and_b64 vcc, vcc, s[60:61]"); a("s_and_b64 vcc, vcc, s[58:59]")
    a(f"v_cndmask_b32 v{SW}, v{SW}, v{PD}, vcc")
    a(f"v_cndmask_b32 v0, v0, v{PD}, vcc")
    a("s_mov_b64 exec, -1")
    a(f"s_andn2_b32 s{S_PEND}, s{S_PEND}, vcc_lo")
    a("s_cbranch_scc0 K_ALLIN")
    a(f"s_bcnt1_i32_b32 s4, s{S_PEND}")
    a(f"s_cmp_le_u32 s4, {opt('pth', 0)}")
    a("s_cbranch_scc0 K_PWAIT")
    a("v_cmp_ne_u32 vcc, 0, v0")
    a("s_cmp_lg_u32 vcc_lo, 0")
    a("s_cbranch_scc1 K_ROUND")
    a("K_PWAIT:")
    a(f"s_sub_u32 s{S_SPIN}, s{S_SPIN}, 1")
    a(f"s_cmp_eq_u32 s{S_SPIN}, 0")
    a(f"s_cselect_b32 s{S_PEND}, 0, s{S_PEND}")
    a("s_cbranch_scc1 K_ALLIN")
    if opt("slp", 4): a(f"s_sleep {opt('slp', 4)}")
    a("s_branch K_POLL")
    a("K_ALLIN:")
    if STAMP and STAMP != 4: a(f"v_writelane_b32 v255, s{S_SPIN}, 15")
    stamp(a, 6)
    a("s_branch K_ROUND")
    a("K_RESET:")
    cursor_init(a)
    a(f"v_mov_b32 v0, v{SW}")
    a(f"s_mov_b32 s{S_SUB}, 1")
    a("s_waitcnt lgkmcnt(0)")
    a("s_barrier")
    a("K_ROUND:")
    for p in range(16): a(f"ds_bpermute_b32 v{16+4*p+3}, v{BPX}, v0 offset:{8*p}")
    a(f"s_mov_b32 s3, s{S_SEG}")
    for p in range(16):
        r = 16 + 4*p
        a(f"s_waitcnt lgkmcnt({15-p})")
        a(f"v_cmp_lt_u32_sdwa {sr(S_MASK+2*p,2)}, v{I12}, v{r+3} src0_sel:DWORD src1_sel:WORD_1")
        a(f"v_add_u32_sdwa v{r+3}, v{r+3}, v{I12H} dst_sel:DWORD dst_unused:UNUSED_PAD src0_sel:WORD_0 src1_sel:DWORD")
        a(f"s_or_b64 exec, {sr(S_MASK+2*p,2)}, 1")
        a(f"buffer_load_dwordx3 {vr(r,3)}, v{r+3}, {sr(S_REC,4)}, s3 offen {opt('ldp', 'sc1').replace('+', ' ')}")
        a("s_mov_b64 exec, -1")
        a(f"s_add_u32 s3, s3, {2*CHS}")
    stamp(a, 7)
    a("v_lshrrev_b32 v12, 16, v0")
    a(f"v_cmp_lt_u32 vcc, s{S_WIN}, v12")
    a(f"v_min_u32 v12, s{S_WIN}, v12")
    a("v_add_u32 v0, v0, v12"); a("v_lshlrev_b32 v12, 16, v12"); a("v_sub_u32 v0, v0, v12")
    a(f"s_mov_b32 s{S_MORE}, vcc_lo")
    a(f"v_cndmask_b32 v{VL}, v{VL}, v0, vcc")
    for p in range(16):
        r = 16 + 4*p
        a(f"s_waitcnt vmcnt({15-p + min(p, NPF)})")
        a(f"s_mov_b64 exec, {sr(S_MASK+2*p,2)}")
        a(f"v_bfe_u32 v{r+3}, v{r+2}, 22, 6")
        a(f"ds_add_rtn_u32 v{r+3}, v{r+3}, v{FOUR}")
        if p < NPF:
            a(f"v_and_b32 v{ADQ}, s{S_GM}, v{r+2}")
            a(f"s_or_b64 exec, {sr(S_MASK+2*p,2)}, 1")
            a(f"buffer_load_dword v{S16}, v{ADQ}, {sr(S_H,4)}, 0 offen")
        if p % 4 == 3:
            a("s_waitcnt lgkmcnt(0)")
            for q in range(p-3, p+1):
                rq = 16 + 4*q
                a(f"s_mov_b64 exec, {sr(S_MASK+2*q,2)}")
                a(f"ds_write_b32 v{rq+3}, v{rq+2}")
                a(f"ds_write2st64_b32 v{rq+3}, v{rq}, v{rq+1} offset0:{PO1} offset1:{PO2}")
    a("s_mov_b64 exec, -1")
    a(f"s_cmp_lg_u32 s{S_SUB}, 0")
    a("s_cbranch_scc1 K_LAST")
    a(f"s_or_b32 s{S_LEFT}, s{S_LEFT}, s{S_MORE}")
    a("v_mov_b32 v0, 0")
    a(f"s_cmp_lg_u32 s{S_PEND}, 0")
    a("s_cbranch_scc1 K_POLL")
    a(f"s_cmp_eq_u32 s{S_LEFT}, 0")
    a("s_cbranch_scc1 K_BINNED")
    a(f"v_mov_b32 v0, v{VL}")
    a(f"s_mov_b32 s{S_SUB}, 1")
    a("s_branch K_ROUND")
    a("K_LAST:")
    a(f"s_cmp_eq_u32 s{S_MORE}, 0")
    a("s_cbranch_scc1 K_BINNED")
    a(f"v_mov_b32 v13, {L_FLAG}")
    a(f"ds_write_b32 v13, v{FOUR}")
    a("K_BINNED:")
    stamp(a, 8)
    a(f"buffer_load_dwordx4 {vr(HB,4)}, v{HA}, {sr(S_H,4)}, 0 offen")
    a(f"buffer_load_dwordx4 {vr(HB+4,4)}, v{HA}, {sr(S_H,4)}, 0 offen offset:16")
    a(f"v_lshrrev_b32 v16, 1, v{LANEE}")
    a(f"buffer_load_ushort v{WX0}, v16, {sr(S_WX,4)}, 0 offen")
    a(f"buffer_load_ushort v{WX1}, v16, {sr(S_WX,4)}, 0 offen offset:64")
    a(f"buffer_load_ushort v{PV}, v{PA}, {sr(S_POS,4)}, 0 offen")
    for j in range(4): srd(a, S_HJ+4*j, S_H, S_H+1, -1024*j, 3200000 + 1024*j)
    for i in range(16): a(f"v_mov_b32 v{MP+i}, 0")
    a(f"v_lshlrev_b32 v17, 2, v{LANE}")
    a(f"s_mov_b32 s4, s{S_W}"); a("s_add_u32 s5, s4, 8")
    a("s_xor_b32 s48, s4, 4"); a("s_xor_b32 s49, s5, 4")
    a(f"v_readlane_b32 s{S_NEXT}, v{CURB}, s4"); a(f"v_readlane_b32 s{S_JUMP}, v{CURB}, s5")
    a(f"v_mov_b32 v19, {hex(PADW)}")
    a(f"s_mov_b32 s{S_TBL}, s{S_TBLA}")
    a("s_waitcnt lgkmcnt(0)")
    a("s_barrier")
    stamp(a, 19)
    a("ds_read_b32 v16, v17")
    a("s_waitcnt lgkmcnt(0)")
    a(f"v_cmp_gt_u32 vcc, v16, v{CURL}")
    a(f"v_sub_u32 v18, v16, v{CURB}"); a("v_add_u32 v18, 127, v18"); a("v_lshrrev_b32 v18, 7, v18")
    a("v_med3_u32 v18, v18, 1, 10")
    a(f"v_sub_u32 v20, v16, v{CURB}"); a(f"v_add_u32 v20, {opt('fq', 64)}, v20"); a("v_lshrrev_b32 v20, 5, v20")
    a(f"v_readlane_b32 s{S_T0}, v16, s4"); a(f"v_readlane_b32 s{S_T1}, v16, s5"); a(f"v_readlane_b32 s{S_MORE}, v16, 16")
    a(f"v_readlane_b32 s{S_REM}, v18, s4"); a(f"v_readlane_b32 s{S_TB}, v18, s5")
    a("v_readlane_b32 s50, v20, s48"); a("v_readlane_b32 s51, v20, s49")
    a("v_readlane_b32 s54, v20, s4"); a("v_readlane_b32 s55, v20, s5")
    a("s_and_b32 s6, vcc_lo, 0xffff")
    a("s_cbranch_scc0 K_FITS")
    a(f"s_cmp_le_u32 s{S_WIN}, 12")
    a("s_cbranch_scc1 K_FITS")
    a("s_barrier")
    a(f"s_lshr_b32 s{S_WIN}, s{S_WIN}, 1")
    a(f"v_mov_b32 v16, {hex(HUGE)}")
    a(f"v_cmp_gt_u32 vcc, s{S_WIN}, v{I12}")
    a(f"v_cndmask_b32 v{I12}, v16, v{I12}, vcc")
    a("s_waitcnt vmcnt(0)")
    a("s_branch K_RESET")
    a("K_FITS:")
    a(f"s_lshl_b32 s4, s{S_REM}, 7"); a(f"s_add_u32 s{S_END}, s4, s{S_NEXT}")
    a(f"s_lshl_b32 s5, s{S_TB}, 7"); a(f"s_add_u32 s{S_END2}, s5, s{S_JUMP}")
    G = 5 if opt("quart", 1) else 6
    for end, cur, d in ((S_END, S_T0, S_QA), (S_END2, S_T1, S_HB)):
        a(f"s_sub_u32 s4, s{end}, s{cur}"); a(f"s_lshr_b32 s4, s4, {G}"); a(f"s_lshl_b32 s4, s4, {G-3}")
        a(f"s_sub_u32 s{d}, 16, s4"); a(f"s_max_u32 s{d}, s{d}, {1 << (G-3)}")
    a(f"s_cmp_lt_u32 s{S_QA}, 16"); a(f"s_cselect_b32 s{S_HA}, 1, -1")
    for cur, end, m in ((S_T0, S_END, S_LO), (S_T1, S_END2, S_HI)):
        a(f"v_add_u32 v16, s{cur}, v{LANEE}")
        a(f"v_cmp_gt_u32 vcc, s{end}, v16")
        a(f"s_and_b64 exec, vcc, {sr(m,2)}")
        a("ds_write_b32 v16, v19")
        a(f"ds_write2st64_b32 v16, v{ZERO}, v{ZERO} offset0:{PO1} offset1:{PO2}")
        a("s_mov_b64 exec, -1")
    WQ2 = 20
    for t in g_reads(0, WQ2) + g_reads(1): a(t)
    a(f"v_mov_b32 v{SW}, v0")
    a("s_add_u32 s50, s50, s51"); a("s_add_u32 s51, s54, s55")
    a(f"s_mul_i32 s50, s50, {opt('fa', 125)}"); a(f"s_mul_i32 s51, s51, {opt('fb', 51)}"); a("s_sub_i32 s50, s50, s51"); a(f"s_add_i32 s50, s50, {opt('fc', 128)}")
    a("s_ashr_i32 s50, s50, 9"); a("s_max_i32 s50, s50, 0")
    a("s_lshr_b32 s51, s50, 1")
    a(f"s_sub_i32 s{S_FLIP}, s{S_REM}, s51"); a(f"s_sub_i32 s{S_FLIP}, s{S_FLIP}, 1"); a(f"s_max_i32 s{S_FLIP}, s{S_FLIP}, 0")
    a(f"s_cmp_lt_u32 s{S_W}, 4"); a(f"s_cselect_b32 s{S_FLIP}, -1, s{S_FLIP}")
    a(f"s_mov_b32 s{S_FLIP2}, s{S_FLIP}")
    a("s_bitcmp1_b32 s50, 0"); a(f"s_cselect_b32 s{S_FLIP}, -1, s{S_FLIP}")
    a("s_waitcnt lgkmcnt(2)")
    a(f"v_bfe_u32 v{PIX}, v{W2E}, 7, 15")
    for t in g_addr(WQ2) + g_m0(0): a(t)
    a(f"s_mov_b64 exec, {sr(S_HI,2)}"); a(pos_gather()); a("s_mov_b64 exec, -1")
    for t in g_dma(WQ2): a(t)
    a("s_waitcnt lgkmcnt(0)")
    if opt("g1late", 0): a("s_barrier")
    for t in g_addr() + g_m0(1) + ["s_nop 0"] + g_dma(): a(t)
    stamp(a, 20)
    a(f"s_cmp_eq_u32 s{S_ROUND}, 1")
    a("s_cbranch_scc1 K_FILL2")
    a(f"v_lshlrev_b32 v16, 4, v{LANE}")
    a(f"s_mov_b32 s3, s{S_ACCO}")
    for i in range(16):
        a(f"buffer_load_dwordx4 {vr(ACCA0+4*i,4)}, v16, {sr(S_ACC,4)}, s3 offen offset:{(i%4)*1024} sc0 sc1")
        if i % 4 == 3: a("s_add_u32 s3, s3, 4096")
    a("s_waitcnt vmcnt(0)")
    a("K_FILL2:")
    for t in e_head(0): a(t)
    a("s_waitcnt vmcnt(4) lgkmcnt(0)")
    stamp(a, 21)
    for t in a1_reads(0) + e_sect(0, zero=False) + g_reads(0): a(t)
    a("s_waitcnt lgkmcnt(5)")
    a(mfma32(D0, A1, W2F, 0))
    for s in range(1, 4): a(mfma32(D0, A1+4*s, W2F+4*s))
    a("s_waitcnt lgkmcnt(0)")
    a(mfma32(D0, XR, BXA0))
    for t in g_addr() + g_m0(0) + ["s_nop 0"] + g_dma(): a(t)
    a("s_nop 3")
    stamp(a, 9); stamp(a, 10, True)
    if STAMP and STAMP != 4: a(f"v_writelane_b32 v255, s{S_REM}, 12"); a(f"v_writelane_b32 v255, s{S_TB}, 13"); a("s_mov_b32 s5, 24")
    HALF = opt("half", 1)
    a("K_XA0:")
    if HALF: a(f"s_cmp_eq_u32 s{S_REM}, s{S_HA}"); a("s_cbranch_scc1 K_XAH0")
    phase_x(a, 0, ACCA1, BXA1, True)
    a(f"s_cmp_eq_u32 s{S_REM}, 0"); a("s_cbranch_scc1 K_YT0")
    phase_y(a, 0, ACCA0, BXA0)
    if HALF: a(f"s_cmp_eq_u32 s{S_REM}, s{S_HA}"); a("s_cbranch_scc1 K_XAH1")
    phase_x(a, 1, ACCA1, BXA1, True)
    a(f"s_cmp_eq_u32 s{S_REM}, 0"); a("s_cbranch_scc1 K_YT1")
    phase_y(a, 1, ACCA0, BXA0)
    a("s_branch K_XA0")
    NS = (12, 8, 4) if opt("quart", 1) else (8,)
    if HALF:
        for p in (0, 1):
            a(f"K_XAH{p}:")
            for n in NS[:-1]:
                a(f"s_cmp_eq_u32 s{S_QA}, {n}"); a(f"s_cbranch_scc1 K_XAH{p}_{n}")
            for n in reversed(NS):
                a(f"K_XAH{p}_{n}:")
                phase_x(a, p, ACCA1, BXA1, True, n=n)
                phase_y(a, p, ACCA0, BXB0, n=n)
                a("s_nop 10"); a(f"s_branch K_XT{1-p}")
    a("K_YT0:")
    phase_y(a, 0, ACCA0, BXB0)
    a("K_XT1:")
    phase_x(a, 1, ACCA1, BXB1, False)
    a("s_branch K_YB1")
    a("K_YT1:")
    phase_y(a, 1, ACCA0, BXB0)
    a("K_XT0:")
    phase_x(a, 0, ACCA1, BXB1, False)
    a("K_YB0:")
    phase_y(a, 0, ACCB0, BXB0)
    a(f"s_sub_u32 s{S_TB}, s{S_TB}, 1"); a(f"s_cmp_le_u32 s{S_TB}, {HALF}"); a("s_cbranch_scc1 K_TAIL")
    phase_x(a, 1, ACCB1, BXB1, False)
    a("K_YB1:")
    phase_y(a, 1, ACCB0, BXB0)
    a(f"s_sub_u32 s{S_TB}, s{S_TB}, 1"); a(f"s_cmp_le_u32 s{S_TB}, {HALF}"); a("s_cbranch_scc1 K_TAIL")
    phase_x(a, 0, ACCB1, BXB1, False)
    a("s_branch K_YB0")
    a("K_TAIL:")
    if HALF:
        a(f"s_cmp_eq_u32 s{S_TB}, 0"); a("s_cbranch_scc1 K_DRAIN")
        for n in NS:
            a(f"s_cmp_eq_u32 s{S_HB}, {n}"); a(f"s_cbranch_scc1 K_TAIL{n}")
        for n in (16,) + NS:
            a(f"K_TAIL{n}:")
            phase_x(a, 0, ACCB1, BXB1, False, n=n, last=True)
            phase_y(a, 0, ACCB0, BXB0, n=n, last=True)
            if n != NS[-1]: a("s_nop 0"); a("s_branch K_DRAIN")
    a("K_DRAIN:")
    a(mfma32(ACCB1, A2, MP))
    a(mfma32(ACCB1, A2+4, MP+4))
    stamp(a, 16); stamp(a, 11, True)
    a(f"s_cmp_eq_u32 s{S_MORE}, 0")
    a("s_cbranch_scc1 K_EPI")
    a("s_setprio 0")
    a(f"s_mov_b64 exec, {sr(S_HI,2)}"); a(f"ds_write_b64 v{IMGA}, {vr(ZERO,2)}"); a("s_mov_b64 exec, -1")
    a(f"v_lshlrev_b32 v16, 4, v{LANE}")
    a(f"s_mov_b32 s3, s{S_ACCO}")
    a("s_nop 7")
    for i in range(16):
        a(f"buffer_store_dwordx4 {vr(ACCA0+4*i,4)}, v16, {sr(S_ACC,4)}, s3 offen offset:{(i%4)*1024} sc0 sc1")
        if i % 4 == 3: a("s_add_u32 s3, s3, 4096")
    a(f"s_mov_b32 s{S_ROUND}, 2")
    a("s_waitcnt vmcnt(0) lgkmcnt(0)")
    a("s_barrier")
    a("s_branch K_RESET")
    a("K_EPI:")
    whf = lambda f: (16 + 4*f) if f < 12 else (80 + 4*(f-12))
    MB = 108; DO = 116; AD = 100
    a(f"v_lshrrev_b32 v{AD}, 4, v{LANE}"); a(f"v_lshlrev_b32 v{AD}, 4, v{AD}")
    a(f"v_bfe_u32 v{AD+1}, v{LANE}, 2, 2"); a(f"v_add_u32 v{AD}, v{AD}, v{AD+1}"); a(f"v_lshlrev_b32 v{AD}, 7, v{AD}")
    a(f"v_and_b32 v{AD+1}, 3, v{LANE}"); a(f"v_lshl_add_u32 v{AD}, v{AD+1}, 5, v{AD}"); a(f"v_add_u32 v{AD}, {L_WH}, v{AD}")
    a(f"s_mov_b32 s4, {hex(NLN2)}")
    a(f"v_lshrrev_b32 v{AD+2}, 5, v{LANE}"); a(f"v_lshlrev_b32 v{AD+2}, 7, v{AD+2}"); a(f"v_lshrrev_b32 v{AD+3}, 1, v{LANEE}")
    a(f"s_lshl_b32 s5, s{S_W}, 11"); a(f"s_add_u32 s5, s5, {L_IMG}")
    a(f"v_add3_u32 v{AD+2}, v{AD+2}, v{AD+3}, s5")
    a(f"v_and_b32 v{AD+3}, 15, v{LANE}"); a(f"v_lshlrev_b32 v{AD+3}, 7, v{AD+3}"); a(f"v_lshrrev_b32 v{AD+4}, 4, v{LANE}")
    a(f"v_lshl_add_u32 v{AD+3}, v{AD+4}, 5, v{AD+3}"); a(f"v_add_u32 v{AD+3}, s5, v{AD+3}")
    for s in range(4):
        for t in range(4):
            for kk in range(2):
                a(f"ds_read_b64_tr_b16 {vr(whf(t*4+s)+2*kk,2)}, v{AD} offset:{(s>>1)*8192 + (s&1)*1024 + kk*512 + t*8}")
        g, (c0, c1) = list(enumerate(((ACCA0, ACCA1), (ACCB0, ACCB1))))[s >> 1]
        for q in range(2*(s&1), 2*(s&1)+2):
            a(f"v_mul_f32 v{c0+4*q}, s4, v{c0+4*q}"); a(f"v_mul_f32 v{c1+4*q}, s4, v{c1+4*q}")
            a(f"v_cvt_pk_bf16_f32 v{c0+4*q}, v{c0+4*q}, v{c1+4*q}")
            a(f"ds_write_b16 v{AD+2}, v{c0+4*q} offset:{g*1024 + q*256}")
            a(f"ds_write_b16_d16_hi v{AD+2}, v{c0+4*q} offset:{g*1024 + q*256 + 64}")
    a(f"ds_read_b128 {vr(MB,4)}, v{AD+3}"); a(f"ds_read_b128 {vr(MB+4,4)}, v{AD+3} offset:16")
    for w in (WX0, WX1): a(f"v_lshlrev_b32 v{w}, 16, v{w}"); a(f"v_mul_f32 v{w}, s4, v{w}")
    for (c0, c1) in ((ACCA0, ACCA1), (ACCB0, ACCB1)):
        for q in range(4):
            for k in (1, 2, 3):
                a(f"v_mul_f32 v{c0+4*q+k}, v{WX0}, v{c0+4*q+k}"); a(f"v_fmac_f32 v{c0+4*q+k}, v{WX1}, v{c1+4*q+k}")
    a("s_waitcnt lgkmcnt(0)")
    bsrc = (HB, HB+4, MB, MB+4)
    mf = []
    for s in range(4):
        for t in range(4):
            c = "0" if s == 0 else vr(DO+4*t, 4)
            mf.append(f"v_mfma_f32_16x16x32_bf16 {vr(DO+4*t,4)}, {vr(whf(t*4+s),4)}, {vr(bsrc[s],4)}, {c}")
    red = []
    for q in range(4):
        for k in (1, 2, 3): red.append(f"v_permlane16_swap_b32 v{ACCA0+4*q+k}, v{ACCB0+4*q+k}")
    for q in range(4):
        for k in (1, 2, 3): red.append(f"v_add_f32 v{ACCA0+4*q+k}, v{ACCA0+4*q+k}, v{ACCB0+4*q+k}")
    for q in range(2):
        for k in (1, 2, 3):
            red.append(f"v_add_f32_dpp v{ACCA1+4*q+k}, v{ACCA0+4*q+k}, v{ACCA0+4*q+k} row_ror:8 row_mask:0xf bank_mask:0x3")
            red.append(f"v_add_f32_dpp v{ACCA1+4*q+k}, v{ACCA0+4*q+8+k}, v{ACCA0+4*q+8+k} row_ror:8 row_mask:0xf bank_mask:0xc")
    for i, m in enumerate(mf):
        a(m)
        for t in red[2*i:2*i+2]: a(t)
    for t in red[32:]: a(t)
    for k in (1, 2, 3):
        a(f"v_add_f32_dpp v{ACCB1+k}, v{ACCA1+k}, v{ACCA1+k} row_shl:4 row_mask:0xf bank_mask:0x5")
        a(f"v_add_f32_dpp v{ACCB1+k}, v{ACCA1+4+k}, v{ACCA1+4+k} row_shr:4 row_mask:0xf bank_mask:0xa")
    for perm in ("[1,0,3,2]", "[2,3,0,1]"):
        for k in (1, 2, 3): a(f"v_add_f32_dpp v{ACCB1+k}, v{ACCB1+k}, v{ACCB1+k} quad_perm:{perm} row_mask:0xf bank_mask:0xf")
    a(f"v_cmp_eq_u32 vcc, 1, v{AD+1}"); a(f"v_lshlrev_b32 v{PV}, 16, v{PV}"); a(f"s_mov_b32 s4, {hex(NLOG2E)}")
    a(f"v_cndmask_b32 v{AD+5}, v{ACCB1+1}, v{ACCB1+2}, vcc")
    a(f"v_cmp_eq_u32 vcc, 2, v{AD+1}"); a("s_mov_b32 s5, s4"); a("s_mov_b32 s3, 3200000")
    a(f"v_cndmask_b32 v{AD+5}, v{AD+5}, v{ACCB1+3}, vcc")
    a(f"v_add_f32 v{AD+5}, v{AD+5}, v{PV}"); a(f"v_cvt_pk_bf16_f32 v{AD+5}, v{AD+5}, v{AD+5}")
    a(f"buffer_store_short v{AD+5}, v{PA}, {sr(S_OUT,4)}, s3 offen {OP}")
    E = 148
    for j in range(8): a(f"v_pk_mul_f32 {vr(E+2*j,2)}, {vr(DO+2*j,2)}, s[4:5]")
    for j in range(16): a(f"v_exp_f32 v{E+j}, v{E+j}")
    for j in range(8): a(f"v_pk_add_f32 {vr(E+2*j,2)}, {vr(E+2*j,2)}, 1.0 op_sel_hi:[1,0]")
    for j in range(16): a(f"v_rcp_f32 v{E+j}, v{E+j}")
    for j in range(8):
        a(f"v_lshlrev_b32 v{E+16+2*j}, 16, v{HB+j}"); a(f"v_and_b32 v{E+17+2*j}, 0xffff0000, v{HB+j}")
    for j in range(8): a(f"v_pk_fma_f32 {vr(E+2*j,2)}, {vr(E+2*j,2)}, {vr(DO+2*j,2)}, {vr(E+16+2*j,2)}")
    for j in range(8): a(f"v_cvt_pk_bf16_f32 v{E+32+j}, v{E+2*j}, v{E+2*j+1}")
    a(f"buffer_store_dwordx4 {vr(E+32,4)}, v{HA}, {sr(S_OUT,4)}, 0 offen {OP}")
    a(f"buffer_store_dwordx4 {vr(E+36,4)}, v{HA}, {sr(S_OUT,4)}, 0 offen offset:16 {OP}")
    stamp(a, 17)
    if STAMP: a("s_waitcnt vmcnt(0)")
    stamp(a, 18)
    stamp_out(a)
    a("K_END:")
    a("s_endpgm")

def main():
    ref = open(f"cdna_kernels/{NAME}.s.ref").read().split("\n")
    head = [l for l in ref if l.startswith(";") and "@launch" not in l and not l.startswith("; Override") and not l.startswith("; grid=")]
    out = "\n".join(head) + "\n"
    if opt("aslist", 0): out += f"; @launch kernel={KN} grid=(256,1,1) block=(512,1,1) lds={LDS}\n"
    else: out += f"; @launch grid=(256,1,1) block=(512,1,1) lds={LDS}\n"
    out += '.amdgcn_target "amdgcn-amd-amdhsa--gfx950"\n.text\n'
    a = Asm(); gen(a)
    for b in a.check_edges(): print("EDGE HAZARD", b, file=sys.stderr)
    out += f".globl {KN}\n.p2align 8\n.type {KN},@function\n" + a.text()
    out += f""".section .rodata,"a"
.p2align 6
.amdhsa_kernel {KN}
  .amdhsa_next_free_vgpr 256
  .amdhsa_next_free_sgpr 102
  .amdhsa_accum_offset 256
  .amdhsa_group_segment_fixed_size 0
  .amdhsa_kernarg_size 88
  .amdhsa_user_sgpr_count 2
  .amdhsa_user_sgpr_kernarg_segment_ptr 1
  .amdhsa_system_sgpr_workgroup_id_x 1
  .amdhsa_float_denorm_mode_32 3
.end_amdhsa_kernel
"""
    open(sys.argv[1], "w").write(out)
main()
```

```python
import sys, math, struct
from asmlib import Asm

NAME = "gather_scatter__cheap_equivariant_egnn__graph"
KN = NAME + "_kernel"
def f32bits(x): return struct.unpack("<I", struct.pack("<f", x))[0]
NLOG2E = f32bits(-math.log2(math.e)); NLN2 = f32bits(-math.log(2.0))
OPT = dict(a.split("=") for a in sys.argv[2:]) if len(sys.argv) > 2 else {}
def opt(k, d): return type(d)(OPT.get(k, d))
STAMP = opt("stamp", 0)

CH = 3128; CHB = CH * 12; CHS = opt('chs', 37632); NQ = CH // 4; NQ_LAST = (800000 - 255 * CH) // 4
WSO = opt('wso', 0) << 20
WS_GRAN = 0x00A00000; WS_POSF = 0x00B00000; WS_ACC = 0x01000000; WS_STAMP = 0x08000000
GMUL = 10737; GMAGIC = 51201995
L_CUR = 0; L_FLAG = 64; L_EPOCH = 68; L_TBL = 0x100; L_IMG = 0x1100; L_GB = 0x5100
L_WH = L_GB + 8 * 8192
L_REC = L_WH + 16384
PADO = 128 * 98 + 384 * 16; PLANE = 18944; PO1 = PLANE // 256; PO2 = 2 * PO1
L_PAD = L_REC + PADO
LDS = L_REC + 3 * PLANE
L_STG = L_GB; L_HIST = L_GB + 37632; L_OFFS = L_HIST + 1024; L_WF = L_GB + 40960
assert LDS <= 163840 and PADO + 128 <= PLANE and L_GB % 256 == 0
PADW = (32767 << 7) | (7 << 3)
HUGE = 0x40000000
TAGK = 0x9E3779B9

D0 = 16; D1 = 32; T = 48; MP = 64; A2 = 72; A1 = 80; XR = 96
W2F = 100; BXA0 = 132; BXA1 = 136; BXB0 = 140; BXB1 = 144
ACCA0 = 148; ACCA1 = 164; ACCB0 = 180; ACCB1 = 196
COLC = 212; RDA = 216; TRA = 220; IMGB = 221; LANEQ = 222; LANEE = 223
WQ = 224; W2E = 228; ADE = 230; PS = 232; CURB = 235; HA = 236; PA = 237; PV = 238; CURL = 239
PD = 240; WX0 = 243; VAL = 244; IMGA = 246; S8 = 247; S16 = 248; ADQ = 249
ZERO = 250; D2 = 252; PIX = 253; WX1 = 254
LANE = 1; SW = 2; I12 = 3; I12H = 4; BPX = 5; FOUR = 6; TMP = 7; HB = 8
S_H = 8; S_POSF = 12; S_REC = 16; S_POS = 20; S_OUT = 24; S_ACC = 28; S_MASK = 32; S_HJ = 32
S_W = 64; S_B = 65; S_NA = 66; S_NB = 67; S_CA = 68; S_CB = 69
S_LO = 70; S_HI = 72; S_GM = 74; S_TBL = 75; S_TBLA = 76; S_TBLB = 77
S_NEXT = 78; S_END = 79; S_JUMP = 80; S_END2 = 81; S_PADB = 82; S_PADE = 83
S_REM = 84; S_TB = 85; S_GB = 86; S_WIN = 87; S_ROUND = 88; S_MORE = 89; S_T0 = 90; S_T1 = 91; S_T3 = 92
S_SEG = 93; S_ACCO = 94; S_FLIP = 95; S_WX = 96; S_SUB = 100; S_SPIN = 101; S_FLIP2 = 101; S_HA = 52; S_HB = 53; S_QA = 56; S_PEND = 78; S_LEFT = 80

def vr(b, n): return f"v[{b}:{b+n-1}]"
def sr(b, n): return f"s[{b}:{b+n-1}]"
def srd(a, d, lo, hi, off, num, stride=0):
    if off > 0:
        a(f"s_add_u32 s{d}, s{lo}, {hex(off)}"); a(f"s_addc_u32 s{d+1}, s{hi}, 0")
    elif off < 0:
        a(f"s_sub_u32 s{d}, s{lo}, {hex(-off)}"); a(f"s_subb_u32 s{d+1}, s{hi}, 0")
    else:
        a(f"s_mov_b32 s{d}, s{lo}"); a(f"s_mov_b32 s{d+1}, s{hi}")
    if stride: a(f"s_or_b32 s{d+1}, s{d+1}, {hex(stride << 16)}")
    a(f"s_mov_b32 s{d+2}, {hex(num)}"); a(f"s_mov_b32 s{d+3}, 0x20000")
def stamp(a, idx, cyc=False):
    if not STAMP: return
    if STAMP == 4:
        if cyc or idx in (0, 18, 20, 21, 22): return
        idx = {16: 10, 17: 11, 19: 12}.get(idx, idx)
    a(f"{'s_memtime' if cyc else 's_memrealtime'} s[6:7]"); a("s_waitcnt lgkmcnt(0)"); a(f"v_writelane_b32 v255, s6, {idx}")
def stamp_out(a):
    if not STAMP: return
    if STAMP == 4:
        a("s_mov_b64 exec, -1")
        a("s_load_dwordx2 s[32:33], s[0:1], 72"); a("s_waitcnt lgkmcnt(0)")
        srd(a, 36, 32, 33, 0, 256)
        a(f"buffer_load_dword v17, v{ZERO}, s[36:39], 0 offen sc0 sc1")
        a("v_readlane_b32 s4, v255, 9"); a("v_readlane_b32 s5, v255, 10"); a("v_readlane_b32 s6, v255, 6")
        a("s_waitcnt vmcnt(0)")
        a("v_readfirstlane_b32 s7, v17")
        a("s_lshl_b32 s32, s7, 1"); a("s_add_u32 s32, s32, 10000")
        a("s_sub_u32 s4, s32, s4"); a("s_sub_u32 s5, s32, s5"); a("s_sub_u32 s6, s32, s6")
        a("v_writelane_b32 v255, s4, 13"); a("v_writelane_b32 v255, s5, 14"); a("v_writelane_b32 v255, s6, 15")
        a("v_sub_u32 v255, v255, v17")
        a(f"v_lshlrev_b32 v16, 2, v{LANE}")
        a("s_mov_b64 exec, 0xfffe")
        a("buffer_atomic_umax v255, v16, s[36:39], 0 offen sc1")
        return
    a("s_mov_b64 exec, -1")
    a("s_load_dwordx2 s[32:33], s[0:1], 80"); a("s_waitcnt lgkmcnt(0)")
    srd(a, 36, 32, 33, WS_STAMP, 1 << 22)
    a("s_lshl_b32 s32, s2, 4"); a(f"s_add_u32 s32, s32, s{S_W}"); a("s_lshl_b32 s32, s32, 8")
    a(f"v_lshlrev_b32 v16, 2, v{LANE}")
    a("buffer_store_dword v255, v16, s[36:39], s32 offen")

def mfma32(d, a_, b_, c=None):
    return f"v_mfma_f32_32x32x16_bf16 {vr(d,16)}, {vr(a_,4)}, {vr(b_,4)}, {'0' if c == 0 else vr(d,16)}"
def silu_main(d, n=16):
    m = [f"v_exp_f32 v{T+j}, v{d+j}" for j in range(n)]
    m += [f"v_pk_add_f32 {vr(T+2*j,2)}, {vr(T+2*j,2)}, 1.0 op_sel_hi:[1,0]" for j in range(n//2)]
    m += [f"v_rcp_f32 v{T+j}, v{T+j}" for j in range(n)]
    m += [f"v_pk_mul_f32 {vr(T+2*j,2)}, {vr(T+2*j,2)}, {vr(d+2*j,2)}" for j in range(n//2)]
    m += [f"v_cvt_pk_bf16_f32 v{MP+j}, v{T+2*j}, v{T+2*j+1}" for j in range(n//2)]
    return m
def emit(a, main, ins):
    for t in ins.get(-1, []): a(t)
    for i, m in enumerate(main):
        a(m)
        for t in ins.get(i, []): a(t)
def gstate(isA=True):
    o = [f"s_add_u32 s{S_NEXT}, s{S_NEXT}, 128", f"s_cmp_eq_u32 s{S_NEXT}, s{S_END}",
         f"s_cselect_b32 s{S_NEXT}, s{S_JUMP}, s{S_NEXT}", f"s_cselect_b32 s{S_END}, s{S_END2}, s{S_END}"]
    if isA: o += [f"s_cselect_b32 s{S_JUMP}, s{S_PADB}, s{S_JUMP}", f"s_cselect_b32 s{S_END2}, s{S_PADE}, s{S_END2}"]
    return o
def g_reads(e, wq=WQ, isA=True):
    return [f"v_add_u32 v{ADQ}, s{S_NEXT}, v{LANEQ}", f"v_add_u32 v{ADE+e}, s{S_NEXT}, v{LANEE}",
            f"ds_read_b128 {vr(wq,4)}, v{ADQ}", f"ds_read_b32 v{W2E+e}, v{ADE+e}"] + gstate(isA)
def g_addr(wq=WQ): return [f"v_and_or_b32 v{wq+j}, v{wq+j}, s{S_GM}, v{COLC+j}" for j in range(4)]
def g_m0(e): return [f"s_add_u32 m0, s{S_GB}, {e*4096}"]
def g_dma(wq=WQ): return [f"buffer_load_dwordx4 v{wq+j}, {sr(S_HJ+4*j,4)}, 0 offen offset:{j*1024} {opt('gp', '')} lds" for j in range(4)]
def pos_gather(): return f"buffer_load_dwordx3 {vr(PS,3)}, v{PIX}, {sr(S_POSF,4)}, 0 idxen sc1"
def e_head(e):
    return [f"v_and_b32 v{S8}, 0x38, v{W2E+e}", f"v_lshl_add_u32 v{S16}, v{S8}, 1, s{S_TBL}", f"ds_read_b96 {vr(PD,3)}, v{S16} offset:128",
            f"v_bfe_u32 v{PIX}, v{W2E+1-e}, 7, 15"]
def e_sect(e, zero=True):
    o = [f"s_mov_b64 exec, {sr(S_LO,2)}", f"ds_read_b128 {vr(XR,4)}, v{S16}", f"s_mov_b64 exec, {sr(S_HI,2)}"]
    o += [f"v_sub_f32 v{PD+k}, v{PD+k}, v{PS+k}" for k in range(3)]
    o += [f"v_cvt_pk_bf16_f32 v{VAL}, 1.0, v{PD}", f"v_cvt_pk_bf16_f32 v{VAL+1}, v{PD+1}, v{PD+2}",
          f"v_dot2_f32_bf16 v{D2}, v{VAL}, v{VAL}, -1.0", f"v_dot2_f32_bf16 v{D2}, v{VAL+1}, v{VAL+1}, v{D2}",
          f"ds_read2st64_b32 {vr(XR,2)}, v{ADE+e} offset0:{PO1} offset1:{PO2}"]
    if zero: o += [f"ds_write_b64 v{IMGA}, {vr(ZERO,2)}"]
    o += [f"v_add_u32 v{IMGA}, v{S8}, v{IMGB}", f"ds_write_b64 v{IMGA}, {vr(VAL,2)}", pos_gather(),
          f"v_cvt_pk_bf16_f32 v{XR+2}, v{D2}, v{D2}", "s_mov_b64 exec, -1"]
    return o
def a1_reads(e): return [f"ds_read_b128 {vr(A1+4*s,4)}, v{RDA+s} offset:{e*4096}" for s in range(4)]
def tr_reads(): return [f"ds_read_b64_tr_b16 {vr(A2+2*k,2)}, v{TRA} offset:{k*512}" for k in range(4)]

OP = opt('op', 'nt').replace('+', ' ')
NPF = opt('npf', 0)
PRIO = opt("prio", 2)
_lbl = [0]
XPOS = {16: "0,3,24,27,30,33,36,25,26", 12: "0,3,6,18,21,24,36,11,13", 8: "0,3,12,15,18,24,26,13,14", 4: "0,3,6,9,12,13,13,7,8"}
YPOS = {16: "0,3,6,24,27,30,33,1,7,8,10,11", 12: "0,3,6,18,21,24,36,1,7,8,10,11", 8: "0,0,4,12,15,18,24,1,5,6,7,13", 4: "0,0,2,6,9,12,13,1,3,6,7,8"}
def phase_x(a, p, acc1, bx1, isA, n=16, last=False):
    e = 1 - p
    ins = {}; pre = []
    def add(k, l): ins[k] = ins.get(k, []) + l
    if isA:
        pre += [f"s_sub_u32 s{S_REM}, s{S_REM}, 1", f"s_cmp_eq_u32 s{S_REM}, 0", f"s_cselect_b32 s{S_TBL}, s{S_TBLB}, s{S_TBLA}"]
        if PRIO == 2:
            _lbl[0] += 1; L = f"KP{_lbl[0]}"
            add(2, [f"s_cmp_lg_u32 s{S_REM}, s{S_FLIP}", f"s_cbranch_scc1 {L}", "s_setprio 1", f"{L}:"])
            _lbl[0] += 1; L = f"KP{_lbl[0]}"
            add(n*7//2 - 2, [f"s_cmp_lg_u32 s{S_REM}, s{S_FLIP2}", f"s_cbranch_scc1 {L}", "s_setprio 1", f"{L}:"])
    if STAMP == 2:
        pre += ["s_memtime s[6:7]", "s_waitcnt lgkmcnt(0)", "s_mov_b32 m0, s5", "s_add_u32 s5, s5, 1", "v_writelane_b32 v255, s6, m0"]
    if STAMP == 3:
        pre += ["s_memtime s[6:7]", "s_memrealtime s[54:55]", "s_waitcnt lgkmcnt(0)", "s_mov_b32 m0, s5", "s_add_u32 s5, s5, 1", "v_writelane_b32 v255, s6, m0",
                "s_mov_b32 m0, s5", "s_add_u32 s5, s5, 1", "v_writelane_b32 v255, s54, m0"]
    ins[-1] = pre
    XP = [int(x) for x in opt(f"xp{n}", XPOS[n]).split(",")]
    mf = [mfma32(acc1, A2, MP), mfma32(acc1, A2+4, MP+4), mfma32(D1, XR, bx1, 0)] + [mfma32(D1, A1+4*s, W2F+16+4*s) for s in range(4)]
    for k, m in zip(XP[:7], mf): add(k, [m])
    tr = tr_reads()
    add(XP[1]+1, tr[:2]); add(XP[1]+2, tr[2:])
    if not last:
        add(0, e_head(e))
        add(XP[7], ["s_waitcnt vmcnt(4) lgkmcnt(4)"] + e_sect(e))
        add(XP[8], g_reads(e, isA=isA))
        add(min(XP[6]+1, n*7//2 - 1), a1_reads(e))
    assert XP[7] > XP[2] and XP[7] > XP[1]+2 and XP[8] > XP[7] and XP[6]+1 > XP[8]
    emit(a, silu_main(D0, n), ins)

def phase_y(a, p, acc0, bx0, n=16, last=False):
    e = 1 - p
    ins = {}
    def add(k, l): ins[k] = ins.get(k, []) + l
    ins[-1] = ["s_waitcnt lgkmcnt(0)" if last else "s_waitcnt lgkmcnt(10)"]
    YP = [int(x) for x in opt(f"yp{n}", YPOS[n]).split(",")]
    mf = [mfma32(acc0, A2, MP), mfma32(acc0, A2+4, MP+4), mfma32(D0, A1, W2F, 0)] + [mfma32(D0, A1+4*s, W2F+4*s) for s in range(1, 4)] + [mfma32(D0, XR, bx0)]
    if not last: add(YP[2], ["s_waitcnt lgkmcnt(0)"])
    for i, (k, m) in enumerate(zip(YP[:7], mf)):
        if (n <= 8 and i == 1) or (last and i >= 2): continue
        add(k, [m])
    if not last:
        add(0, g_m0(e))
        add(YP[7], (["s_waitcnt lgkmcnt(5)"] if YP[7] < YP[2] else []) + g_addr())
        for k, d in zip(YP[8:], g_dma()): add(k, [d])
    assert min(YP[8:]) >= YP[2] and min(YP[8:]) >= YP[7]
    emit(a, silu_main(D1, n), ins)

def node_sel(a, cond, vnode, vcnt, vtmp):
    a(cond)
    a(f"v_mov_b32 v{vnode}, s{S_NB}"); a(f"v_mov_b32 v{vcnt}, s{S_NA}")
    a(f"v_cndmask_b32 v{vnode}, v{vnode}, v{vcnt}, vcc")
    a(f"v_mov_b32 v{vcnt}, s{S_CB}"); a(f"v_mov_b32 v{vtmp}, s{S_CA}")
    a(f"v_cndmask_b32 v{vcnt}, v{vcnt}, v{vtmp}, vcc")

def cursor_init(a):
    a(f"v_lshlrev_b32 v13, 2, v{LANE}")
    a("s_mov_b64 exec, 0x1ffff"); a(f"ds_write_b32 v13, v{CURB}"); a("s_mov_b64 exec, -1")

def gen(a):
    a(f"{KN}:")
    a("s_cmp_ge_u32 s2, 256")
    a("s_cbranch_scc1 K_END")
    a("s_load_dwordx16 s[32:47], s[0:1], 0")
    a("s_load_dwordx4 s[48:51], s[0:1], 64")
    a("s_load_dwordx2 s[52:53], s[0:1], 80")
    if opt("cpf", 0) == 2:
        a("s_getpc_b64 s[4:5]")
        a("K_PC:")
        a("s_mov_b32 s3, K_END-K_PC-16")
        a("v_lshlrev_b32 v8, 4, v0")
        for k in range(2):
            a(f"v_add_u32 v12, {8192*k}, v8"); a("v_min_u32 v12, s3, v12")
            a(f"global_load_dwordx4 {vr(PD,4)}, v12, s[4:5]")
    stamp(a, 0); stamp(a, 14, True)
    a("s_cmp_eq_u32 s2, 255")
    a(f"s_movk_i32 s4, {NQ - 512}")
    a(f"s_cselect_b32 s4, {NQ_LAST - 512}, s4")
    a(f"s_mul_i32 s3, s2, {CH*4}")
    a("s_lshl_b32 s5, s3, 1")
    a("v_lshlrev_b32 v8, 4, v0")
    a("v_lshlrev_b32 v9, 5, v0")
    a("v_cmp_gt_u32 s[62:63], s4, v0")
    a(f"v_mov_b32 v12, {hex(HUGE)}")
    a("v_add_u32 v10, 0x2000, v8")
    a("v_add_u32 v11, 0x4000, v9")
    a("v_cndmask_b32 v10, v12, v10, s[62:63]")
    a("v_cndmask_b32 v11, v12, v11, s[62:63]")
    a("v_and_b32 v12, 0xff, v0")
    a("v_lshlrev_b32 v12, 2, v12")
    a(f"v_mov_b32 v{ZERO}, 0")
    a(f"ds_write_b32 v12, v{ZERO} offset:{L_HIST}")
    a("s_waitcnt lgkmcnt(0)")
    if WSO: a(f"s_add_u32 s52, s52, {hex(WSO)}"); a("s_addc_u32 s53, s53, 0")
    srd(a, 8, 40, 41, 0, 3200000)
    srd(a, 12, 38, 39, 0, 3200000)
    srd(a, 16, 36, 37, 0, 6400000)
    nt = " nt" if opt("k1nt", 1) else ""
    a(f"buffer_load_dwordx4 v[16:19], v8, s[8:11], s3 offen{nt}")
    a(f"buffer_load_dwordx4 v[20:23], v10, s[8:11], s3 offen{nt}")
    if opt("dstfirst", 0): a("s_barrier")
    a(f"buffer_load_dwordx4 v[24:27], v8, s[12:15], s3 offen{nt}")
    a(f"buffer_load_dwordx4 v[28:31], v10, s[12:15], s3 offen{nt}")
    a(f"buffer_load_dwordx4 v[32:35], v9, s[16:19], s5 offen{nt}")
    a(f"buffer_load_dwordx4 v[36:39], v9, s[16:19], s5 offen offset:16{nt}")
    a(f"buffer_load_dwordx4 v[40:43], v11, s[16:19], s5 offen{nt}")
    a(f"buffer_load_dwordx4 v[44:47], v11, s[16:19], s5 offen offset:16{nt}")
    NC = 0
    if opt("cpf", 0) == 1:
        a("s_getpc_b64 s[4:5]")
        a("K_PC:")
        a("s_mov_b32 s3, K_END-K_PC-16")
        for k in range(2):
            a(f"v_add_u32 v12, {8192*k}, v8"); a("v_min_u32 v12, s3, v12")
            a(f"global_load_dwordx4 {vr(PD,4)}, v12, s[4:5]")
        NC = 2
    if not opt("dstfirst", 0): a("s_barrier")
    a(f"v_and_b32 v{LANE}, 63, v0")
    a("v_lshrrev_b32 v12, 6, v0")
    a(f"v_readfirstlane_b32 s{S_W}, v12")
    RW = 148
    srd(a, S_ACC, 50, 51, 0, 256)
    a("v_mov_b32 v12, 0")
    a("s_cmp_lg_u32 s2, 0"); a("s_cbranch_scc1 K_NOEP")
    a(f"s_cmp_lg_u32 s{S_W}, 7"); a("s_cbranch_scc1 K_NOEP")
    a("s_memrealtime s[4:5]")
    a("s_waitcnt lgkmcnt(0)")
    a("s_or_b32 s4, s4, 1")
    a("v_mov_b32 v13, s4")
    a("s_mov_b64 exec, 1")
    a(f"buffer_store_dword v13, v12, {sr(S_ACC,4)}, 0 offen sc0 sc1")
    a("s_mov_b64 exec, -1")
    a("K_NOEP:")
    a(f"v_mov_b32 v{ZERO+1}, 0")
    a("s_and_b32 s3, s2, 7"); a("s_lshl_b32 s3, s3, 5")
    a(f"s_lshr_b32 s{S_B}, s2, 3"); a(f"s_add_u32 s{S_B}, s{S_B}, s3")
    a(f"s_lshl_b32 s4, s{S_B}, 20"); a(f"s_add_u32 s4, s4, {GMUL-1}")
    a(f"s_mov_b32 s7, {GMAGIC}")
    a(f"v_lshl_add_u32 v12, v{LANE}, 16, s4")
    a("v_add_u32 v13, 0x10000, v12")
    a("v_mul_hi_u32 v12, v12, s7"); a("v_mul_hi_u32 v13, v13, s7")
    a("v_lshrrev_b32 v12, 7, v12"); a("v_lshrrev_b32 v13, 7, v13")
    a("v_min_u32 v13, 25000, v13")
    a(f"s_mov_b32 s4, s{S_W}"); a("s_add_u32 s5, s4, 8")
    a("v_readlane_b32 s3, v12, 0"); a(f"v_readlane_b32 s{S_CA}, v13, s4")
    a(f"v_readlane_b32 s{S_NA}, v12, s4"); a(f"v_readlane_b32 s{S_NB}, v12, s5"); a(f"v_readlane_b32 s{S_CB}, v13, s5")
    a(f"v_mul_u32_u24 v14, 384, v{LANE}")
    a("s_lshl_b32 s3, s3, 7"); a(f"s_sub_u32 s3, {L_REC}, s3")
    a(f"v_lshl_add_u32 v{CURB}, v12, 7, v14"); a(f"v_add_u32 v{CURB}, s3, v{CURB}")
    a(f"v_lshl_add_u32 v{CURL}, v13, 7, v14"); a("s_add_u32 s3, s3, 384"); a(f"v_add_u32 v{CURL}, s3, v{CURL}")
    a(f"v_cmp_gt_u32 vcc, 16, v{LANE}")
    a(f"s_sub_u32 s{S_CB}, s{S_CB}, s{S_NB}"); a(f"s_sub_u32 s{S_CA}, s{S_CA}, s{S_NA}")
    a(f"v_cndmask_b32 v{CURB}, 0, v{CURB}, vcc")
    a(f"v_and_b32 v9, 31, v{LANE}")
    a(f"v_lshrrev_b32 v10, 5, v{LANE}")
    a(f"v_lshlrev_b32 v11, 4, v{LANE}")
    a(f"v_and_b32 v12, 7, v{LANE}")
    node_sel(a, f"v_cmp_gt_u32 vcc, 8, v{LANE}", 13, 14, 15)
    a("v_cmp_lt_u32 vcc, v12, v14")
    a(f"v_cmp_gt_u32 s[60:61], 16, v{LANE}")
    a("v_add_u32 v13, v13, v12"); a("v_mov_b32 v14, 0x7fff")
    a("s_and_b64 vcc, vcc, s[60:61]")
    a(f"v_cndmask_b32 v{PIX}, v14, v13, vcc")
    a(f"v_mul_u32_u24 v{D2}, 6, v{PIX}")
    srd(a, S_POS, 34, 35, 0, 150000)
    N1 = NC
    a("v_and_b32 v12, 3, v9"); a("v_bfe_u32 v13, v9, 3, 1"); a("v_lshl_or_b32 v12, v13, 2, v12")
    node_sel(a, "v_cmp_gt_u32 vcc, 16, v9", 13, 14, 15)
    a("v_and_b32 v15, 4, v9"); a("v_lshl_or_b32 v15, v15, 1, v12")
    a("v_cmp_lt_u32 vcc, v15, v14")
    a("v_add_u32 v13, v13, v12"); a("v_lshlrev_b32 v13, 7, v13"); a("v_lshl_add_u32 v13, v10, 4, v13")
    a(f"v_mov_b32 v14, {hex(HUGE)}")
    a(f"v_cndmask_b32 v{S8}, v14, v13, vcc")
    srd(a, S_H, 32, 33, 0, 3200000)
    srd(a, 56, 42, 43, 0, 133 * 128)
    srd(a, 40, 46, 47, 0, 128 * 128)
    srd(a, S_POSF, 52, 53, WS_POSF, 25000, stride=16)
    srd(a, S_REC, 52, 53, 0, WS_GRAN + 256 * 4096)
    if opt("tlb", 0):
        srd(a, S_OUT, 48, 49, 0, 3350000)
        srd(a, S_WX, 52, 53, 0, WS_POSF + 400000)
        a(f"s_cmp_lg_u32 s{S_W}, 5"); a("s_cbranch_scc1 K_NOTLB")
        a(f"v_lshlrev_b32 v12, {opt('tlb', 0)}, v{LANE}")
        a(f"buffer_load_dword v{PD}, v12, {sr(S_WX,4)}, 0 offen")
        a(f"buffer_load_dword v{PD}, v12, {sr(S_H,4)}, 0 offen")
        a(f"buffer_load_dword v{PD}, v12, {sr(S_OUT,4)}, 0 offen")
        a("K_NOTLB:")
    a("v_mov_b32 v14, 12")
    a(f"s_mul_i32 s54, s2, {CHS}")
    for g in range(2):
        a(f"s_waitcnt vmcnt({N1 + 7 - g})")
        if g == 0: stamp(a, 1)
        if g == 1: a("s_mov_b64 exec, s[62:63]")
        for k in range(4):
            i = 4*g + k
            a(f"v_mul_u32_u24 v{48+i}, {hex(GMUL)}, v{16+i}")
            a(f"v_lshrrev_b32 v{56+i}, 18, v{48+i}")
            a(f"v_and_b32 v{56+i}, 0x3fc, v{56+i}")
            a(f"ds_add_rtn_u32 v{64+i}, v{56+i}, v14 offset:{L_HIST}")
    a("s_mov_b64 exec, -1")
    for j in range(3): a(f"buffer_load_ushort v{RW+8+j}, v{D2}, {sr(S_POS,4)}, 0 offen offset:{2*j}")
    a(f"buffer_load_dword v{RW+12}, v{ZERO}, {sr(S_ACC,4)}, 0 offen sc0 sc1")
    for s in range(4): a(f"buffer_load_dwordx4 {vr(A1+4*s,4)}, v{S8}, {sr(S_H,4)}, 0 offen offset:{32*s}")
    N1 += 8
    if opt("wpf", 0):
        a("s_lshr_b32 s4, s2, 3"); a("s_lshl_b32 s4, s4, 10"); a("s_and_b32 s5, s4, 0x3fff")
        a(f"s_cmp_lg_u32 s{S_W}, 6"); a("s_cbranch_scc1 K_NOWPF")
        a(f"buffer_load_dwordx4 {vr(PD,4)}, v11, s[56:59], s4 offen")
        a(f"buffer_load_dwordx4 {vr(PD,4)}, v11, s[40:43], s5 offen")
        a("K_NOWPF:")
    a("s_mov_b32 s6, 400016")
    for i in range(8):
        a(f"v_and_b32 v{16+i}, 0xffff, v{48+i}")
        a(f"v_mul_hi_u32 v{16+i}, v{16+i}, s6")
        a(f"v_bfe_u32 v{48+i}, v{48+i}, 16, 4")
        a(f"v_lshlrev_b32 v{16+i}, 3, v{16+i}")
        a(f"v_lshl_or_b32 v{16+i}, v{48+i}, 24, v{16+i}")
    a("s_waitcnt lgkmcnt(0)")
    a("s_barrier")
    stamp(a, 2)
    a(f"ds_read_b128 v[72:75], v11 offset:{L_HIST}")
    a(f"s_lshl_b32 s4, s{S_W}, 8")
    a(f"v_lshl_add_u32 v15, v{LANE}, 2, s4")
    a(f"ds_read_b32 v76, v15 offset:{L_HIST}")
    a("s_waitcnt lgkmcnt(1)")
    a("v_add_u32 v49, v72, v73"); a("v_add_u32 v50, v49, v74"); a("v_add_u32 v51, v50, v75")
    a("v_mov_b32 v52, v51")
    for sh in (1, 2, 4, 8): a(f"v_add_u32_dpp v52, v52, v52 row_shr:{sh} row_mask:0xf bank_mask:0xf bound_ctrl:0")
    a("v_add_u32_dpp v52, v52, v52 row_bcast:15 row_mask:0xa bank_mask:0xf")
    a("v_add_u32_dpp v52, v52, v52 row_bcast:31 row_mask:0xc bank_mask:0xf")
    a("v_sub_u32 v52, v52, v51"); a("v_add_u32 v53, v52, v72"); a("v_add_u32 v54, v52, v49"); a("v_add_u32 v55, v52, v50")
    a(f"ds_write_b128 v11, v[52:55] offset:{L_OFFS}")
    a("s_waitcnt lgkmcnt(0)")
    for i in range(8): a(f"ds_read_b32 v{48+i}, v{56+i} offset:{L_OFFS}")
    a(f"ds_read_b32 v77, v15 offset:{L_OFFS}")
    a(f"s_waitcnt vmcnt({N1 + 4})")
    for i in range(8): a(f"v_lshl_or_b32 v{16+i}, v{24+i}, 7, v{16+i}")
    a("s_waitcnt lgkmcnt(0)")
    for i in range(8): a(f"v_add_u32 v{48+i}, v{48+i}, v{64+i}")
    a("v_lshl_or_b32 v76, v76, 16, v77")
    for g in range(2):
        if g == 1: a("s_mov_b64 exec, s[62:63]")
        for k in range(4): a(f"ds_write_b32 v{48+4*g+k}, v{16+4*g+k} offset:{L_STG+8}")
        for k in range(4): a(f"v_add_u32 v{56+4*g+k}, {L_STG}, v{48+4*g+k}")
        a(f"s_waitcnt vmcnt({N1 + 2 - 2*g})")
        for k in range(4):
            i = 4*g + k
            a(f"ds_write2_b32 v{56+i}, v{32+2*i}, v{33+2*i} offset0:0 offset1:1")
    a("s_mov_b64 exec, -1")
    N2 = 9
    a(f"v_cmp_gt_u32 vcc, {CHS//16 - 2048}, v0")
    a(f"v_mov_b32 v12, {hex(HUGE)}")
    a("v_cndmask_b32 v12, v12, v8, vcc")
    a("s_waitcnt vmcnt(5)")
    for j in range(3): a(f"v_lshlrev_b32 v{68+j}, 16, v{RW+8+j}")
    a("v_mov_b32 v71, 0")
    a("s_mov_b64 exec, 0xffff")
    a(f"buffer_store_dwordx4 v[68:71], v{PIX}, {sr(S_POSF,4)}, 0 idxen sc1")
    a("s_mov_b64 exec, -1")
    a("s_movk_i32 s4, 0x2000")
    a(f"buffer_load_dwordx4 {vr(RW,4)}, v8, {sr(56,4)}, s4 offen")
    a("s_movk_i32 s4, 0x4000")
    a(f"buffer_load_dwordx4 {vr(RW+4,4)}, v11, {sr(56,4)}, s4 offen")
    a(f"s_lshl_b32 s5, s{S_W}, 10")
    a(f"s_add_u32 m0, s5, {L_WF + 8192}"); a("s_nop 0")
    a(f"buffer_load_dwordx4 v8, {sr(56,4)}, 0 offen lds")
    a(f"s_add_u32 m0, s5, {L_WH}"); a("s_nop 0")
    a(f"buffer_load_dwordx4 v8, s[40:43], 0 offen lds")
    a(f"s_add_u32 m0, s5, {L_WH + 8192}"); a("s_movk_i32 s4, 0x2000")
    a(f"buffer_load_dwordx4 v8, s[40:43], s4 offen lds")
    stamp(a, 3)
    a("s_waitcnt lgkmcnt(0)")
    a("s_barrier")
    if opt("cprio", 1): a("s_setprio 3")
    for j in range(5): a(f"ds_read_b128 {vr(16+4*j,4)}, v8 offset:{L_STG + 8192*j}")
    for j in range(5):
        a(f"s_waitcnt lgkmcnt({4-j})")
        a(f"buffer_store_dwordx4 {vr(16+4*j,4)}, v{8 if j < 4 else 12}, {sr(S_REC,4)}, s54 offen {opt('stp', 'sc1').replace('+', ' ')}")
        if j < 4: a("s_add_u32 s54, s54, 8192")
    if opt("cprio", 1): a("s_setprio 0")
    stamp(a, 4)
    cursor_init(a)
    a(f"s_mov_b32 s{S_LO}, -1"); a(f"s_mov_b32 s{S_LO+1}, 0"); a(f"s_mov_b32 s{S_HI}, 0"); a(f"s_mov_b32 s{S_HI+1}, -1")
    a(f"s_lshl_b32 s{S_TBLA}, s{S_W}, 8"); a(f"s_add_u32 s{S_TBLA}, s{S_TBLA}, {L_TBL}"); a(f"s_add_u32 s{S_TBLB}, s{S_TBLA}, 2048")
    a(f"v_and_b32 v12, 7, v{LANE}"); a("v_lshrrev_b32 v13, 1, v12"); a("v_and_b32 v14, 1, v12"); a("v_lshlrev_b32 v14, 4, v14")
    a("v_mov_b32 v60, 0x3f80"); a("v_lshlrev_b32 v14, v14, v60")
    for j in range(4):
        a(f"v_cmp_eq_u32 vcc, {j}, v13"); a(f"v_cndmask_b32 v{48+j}, 0, v14, vcc")
    a(f"v_bfe_u32 v13, v{LANE}, 3, 1"); a("v_lshlrev_b32 v13, 11, v13"); a("v_lshl_add_u32 v13, v12, 4, v13")
    a(f"v_add_u32 v{TMP}, s{S_TBLA}, v13")
    a("s_mov_b64 exec, 0xffff"); a(f"ds_write_b128 v{TMP}, v[48:51]"); a(f"ds_write_b128 v{TMP}, v[68:71] offset:128"); a("s_mov_b64 exec, -1")
    srd(a, S_OUT, 48, 49, 0, 3350000)
    srd(a, S_WX, 44, 45, 0, 128)
    a(f"s_mov_b32 s{S_GM}, 0x3fff80")
    a(f"s_lshl_b32 s{S_GB}, s{S_W}, 13"); a(f"s_add_u32 s{S_GB}, s{S_GB}, {L_GB}")
    a(f"s_mov_b32 s{S_WIN}, {32*12}"); a(f"s_mov_b32 s{S_ROUND}, 1"); a(f"s_mov_b32 s{S_PADB}, {L_PAD}"); a(f"s_mov_b32 s{S_PADE}, {L_PAD+128}")
    a(f"s_lshl_b32 s{S_ACCO}, s2, 3"); a(f"s_add_u32 s{S_ACCO}, s{S_ACCO}, s{S_W}"); a(f"s_lshl_b32 s{S_ACCO}, s{S_ACCO}, 14")
    a(f"s_mul_i32 s{S_SEG}, s{S_W}, {32*CHS}")
    a(f"v_mov_b32 v{FOUR}, 4")
    a(f"v_mul_u32_u24 v{I12}, 12, v9"); a(f"v_mul_u32_u24 v{I12H}, {CHS}, v10"); a(f"v_add_u32 v{I12H}, v{I12H}, v{I12}")
    a(f"v_lshlrev_b32 v{BPX}, 2, v10")
    a(f"s_lshl_b32 s4, s{S_W}, 11"); a(f"s_add_u32 s4, s4, {L_IMG}")
    for j in range(4): a(f"v_mov_b32 v{48+j}, 0")
    a("v_add_u32 v12, s4, v11")
    a("ds_write_b128 v12, v[48:51]"); a("ds_write_b128 v12, v[48:51] offset:1024")
    a(f"v_lshl_add_u32 v{IMGB}, v9, 6, s4")
    a(f"v_bfe_u32 v12, v{LANE}, 2, 2"); a("v_lshl_add_u32 v12, v10, 2, v12"); a("v_lshlrev_b32 v12, 6, v12")
    a(f"v_bfe_u32 v13, v{LANE}, 4, 1"); a("v_lshl_add_u32 v12, v13, 5, v12")
    a(f"v_and_b32 v13, 3, v{LANE}"); a("v_lshl_add_u32 v12, v13, 3, v12")
    a(f"v_add_u32 v{TRA}, s4, v12")
    a(f"v_and_b32 v12, 7, v{LANE}"); a(f"v_bfe_u32 v13, v{LANE}, 4, 1"); a("v_lshlrev_b32 v13, 2, v13"); a("v_xor_b32 v12, v12, v13")
    for j in range(4):
        a(f"v_xor_b32 v13, {j}, v12"); a(f"v_lshlrev_b32 v{COLC+j}, 4, v13")
    a("v_and_b32 v12, 3, v9"); a("v_lshrrev_b32 v13, 2, v9"); a("v_lshl_add_u32 v13, v12, 3, v13"); a("v_lshlrev_b32 v13, 7, v13")
    a(f"v_add_u32 v13, s{S_GB}, v13")
    a("v_bfe_u32 v14, v9, 3, 1"); a("v_lshl_or_b32 v12, v14, 2, v12"); a("v_xor_b32 v12, v12, v10")
    for s in range(4):
        a(f"v_xor_b32 v14, {2*s}, v12"); a(f"v_lshl_add_u32 v{RDA+s}, v14, 4, v13")
    a(f"v_lshrrev_b32 v12, 3, v{LANE}"); a(f"v_lshlrev_b32 v{LANEQ}, 4, v12"); a(f"v_lshlrev_b32 v{LANEE}, 2, v9")
    a(f"v_mov_b32 v12, {hex(PADW)}"); a(f"v_add_u32 v13, s{S_PADB}, v{LANEE}")
    a("ds_write_b32 v13, v12"); a(f"ds_write2st64_b32 v13, v{ZERO}, v{ZERO} offset0:{PO1} offset1:{PO2}")
    a(f"v_mov_b32 v{XR+3}, 0")
    a(f"s_mov_b32 s4, {hex(NLOG2E)}"); a("s_mov_b32 s5, s4")
    a("s_waitcnt vmcnt(8)")
    for j in range(8):
        a(f"v_lshlrev_b32 v{32+2*j}, 16, v{RW+j}"); a(f"v_and_b32 v{33+2*j}, 0xffff0000, v{RW+j}")
    for j in range(8): a(f"v_pk_mul_f32 {vr(32+2*j,2)}, {vr(32+2*j,2)}, s[4:5]")
    for j in range(8): a(f"v_cvt_pk_bf16_f32 v{48+j}, v{32+2*j}, v{33+2*j}")
    a(f"v_add_u32 v16, {L_WF}, v8")
    a("ds_write_b128 v16, v[48:51]")
    for j in range(4):
        a(f"v_lshlrev_b32 v{56+2*j}, 16, v{52+j}"); a(f"v_and_b32 v{57+2*j}, 0xffff0000, v{52+j}")
    for j in range(4): a(f"v_pk_add_f32 {vr(56+2*j,2)}, {vr(40+2*j,2)}, {vr(56+2*j,2)} neg_lo:[0,1] neg_hi:[0,1]")
    for j in range(4): a(f"v_cvt_pk_bf16_f32 v{56+j}, v{56+2*j}, v{57+2*j}")
    a(f"v_add_u32 v16, {L_WF + 16384 - 128}, v11")
    a(f"v_add_u32 v17, {L_WF + 16384 + 512}, v11")
    a("s_mov_b64 exec, 0xff")
    a("ds_write_b128 v17, v[52:55]"); a("ds_write_b128 v17, v[56:59] offset:128")
    a("s_mov_b32 s6, 0xffffff00"); a("s_mov_b32 s7, 0xff0000ff"); a("s_mov_b64 exec, s[6:7]")
    a("ds_write_b128 v16, v[52:55]")
    a("s_mov_b32 s6, 0"); a("s_mov_b32 s7, 0xff000000"); a("s_mov_b64 exec, s[6:7]")
    a("ds_write_b128 v16, v[52:55] offset:128")
    a("s_mov_b64 exec, -1")
    a(f"v_bfe_u32 v18, v{LANE}, 2, 2"); a("v_lshlrev_b32 v16, 7, v18")
    a(f"v_bfe_u32 v18, v{LANE}, 4, 1"); a("v_lshl_add_u32 v16, v18, 5, v16")
    a(f"v_and_b32 v18, 3, v{LANE}"); a("v_lshl_add_u32 v16, v18, 3, v16")
    a(f"v_add_u32 v{VAL}, {L_WF + 16384}, v16")
    a("v_lshl_add_u32 v16, v10, 10, v16"); a(f"v_add_u32 v{VAL+1}, {L_WF}, v16")
    a("s_mov_b32 s5, 200000")
    a("s_memrealtime s[6:7]")
    a("s_waitcnt lgkmcnt(0)")
    a("K_EPW:")
    a(f"v_readfirstlane_b32 s4, v{RW+12}")
    a("s_sub_u32 s7, s6, s4"); a("s_add_u32 s7, s7, 100000")
    a("s_cmp_eq_u32 s4, 0"); a("s_cselect_b32 s7, -1, s7")
    a("s_cmp_lt_u32 s7, 200000"); a("s_cbranch_scc1 K_EPOK")
    a("s_cmp_eq_u32 s4, 0"); a("s_cselect_b32 s7, 1, 64")
    a("s_sub_u32 s5, s5, s7"); a("s_cbranch_scc1 K_EPOK")
    a(f"buffer_load_dword v{RW+12}, v{ZERO}, {sr(S_ACC,4)}, 0 offen sc0 sc1")
    a("s_waitcnt vmcnt(0)")
    a("s_branch K_EPW")
    a("K_EPOK:")
    srd(a, S_ACC, 52, 53, WS_ACC, 256 * 8 * 16384)
    a(f"v_mov_b32 v77, v{RW+12}")
    a("s_lshl_b32 s3, s2, 12"); a(f"s_add_u32 s3, s3, {hex(WS_GRAN)}")
    a("v_lshlrev_b32 v15, 2, v15")
    a(f"s_mov_b32 s4, {hex(TAGK)}")
    a("v_not_b32 v79, v77"); a(f"v_xor_b32 v{PS+2}, s4, v77"); a(f"v_xor_b32 v78, v76, v{PS+2}")
    a(f"v_mov_b32 v{PS}, v77"); a(f"v_mov_b32 v{PS+1}, v79")
    a(f"v_lshlrev_b32 v{IMGA}, 12, v9")
    a(f"s_lshl_b32 s5, s{S_W}, 17"); a(f"s_lshl_b32 s6, s{S_B}, 4"); a("s_add_u32 s5, s5, s6"); a(f"s_add_u32 s{S_T3}, s5, {hex(WS_GRAN)}")
    a("s_waitcnt vmcnt(0) lgkmcnt(0)")
    stamp(a, 5)
    a("s_barrier")
    a(f"s_cmp_ge_u32 s{S_W}, 4")
    a("s_cbranch_scc1 K_NOPUB")
    a(f"buffer_store_dwordx4 v[76:79], v15, {sr(S_REC,4)}, s3 offen sc1")
    a("K_NOPUB:")
    HPF = opt("hpf", 0)
    if HPF:
        a("s_lshr_b32 s3, s2, 3"); a("s_mul_i32 s3, s3, 100000")
        for k in range(HPF):
            a(f"buffer_load_dwordx4 {vr(PD,4)}, v8, {sr(S_H,4)}, s3 offen")
            a("s_add_u32 s3, s3, 8192")
    WT = ACCB0
    for f in range(8):
        for kk in range(2): a(f"ds_read_b64_tr_b16 {vr(WT+4*f+2*kk,2)}, v{VAL+1} offset:{8192 + (f&3)*2048 + kk*512 + (f>>2)*64}")
    a("s_waitcnt lgkmcnt(8)")
    for s in range(4): a(mfma32(ACCA0, A1+4*s, WT + 4*s, 0 if s == 0 else None))
    for nh, b in ((0, BXA0), (1, BXA1), (0, BXB0), (1, BXB1)):
        for kk in range(2): a(f"ds_read_b64_tr_b16 {vr(b+2*kk,2)}, v{VAL} offset:{kk*512 + nh*64}")
    a("s_waitcnt lgkmcnt(8)")
    for s in range(4): a(mfma32(ACCA1, A1+4*s, WT + 16 + 4*s, 0 if s == 0 else None))
    a("s_waitcnt lgkmcnt(0)")
    for f in range(8):
        for kk in range(2): a(f"ds_read_b64_tr_b16 {vr(W2F+4*f+2*kk,2)}, v{VAL+1} offset:{(f&3)*2048 + kk*512 + (f>>2)*64}")
    a(f"s_mov_b32 s4, {hex(NLOG2E)}"); a("s_mov_b32 s5, s4")
    a(f"s_mov_b64 exec, {sr(S_LO,2)}")
    for nh, d, ba, bb in ((0, ACCA0, BXA0, BXB0), (1, ACCA1, BXA1, BXB1)):
        for j in range(8): a(f"v_pk_mul_f32 {vr(d+2*j,2)}, {vr(d+2*j,2)}, s[4:5]")
        for j in range(4):
            a(f"v_cvt_pk_bf16_f32 v{ba+j}, v{d+2*j}, v{d+2*j+1}")
            a(f"v_cvt_pk_bf16_f32 v{bb+j}, v{d+8+2*j}, v{d+8+2*j+1}")
    a("s_mov_b64 exec, -1")
    for i in range(64): a(f"v_mov_b32 v{ACCA0+i}, 0")
    stamp(a, 22)
    a(f"v_and_b32 v12, 7, v{LANE}"); a(f"v_and_b32 v13, 8, v{LANE}")
    node_sel(a, "v_cmp_eq_u32 vcc, 0, v13", 13, 14, 15)
    a("v_cmp_lt_u32 vcc, v12, v14")
    a("v_add_u32 v13, v13, v12"); a("v_lshlrev_b32 v13, 7, v13")
    a(f"v_lshrrev_b32 v14, 4, v{LANE}"); a("v_lshl_add_u32 v13, v14, 5, v13")
    a(f"v_mov_b32 v15, {hex(HUGE)}")
    a(f"v_cndmask_b32 v{HA}, v15, v13, vcc")
    a(f"v_bfe_u32 v12, v{LANE}, 2, 2"); a(f"v_lshrrev_b32 v13, 5, v{LANE}"); a("v_lshl_add_u32 v12, v12, 1, v13")
    a(f"v_and_b32 v13, 16, v{LANE}")
    node_sel(a, "v_cmp_eq_u32 vcc, 0, v13", 13, 14, 15)
    a("v_cmp_lt_u32 vcc, v12, v14")
    a("v_add_u32 v13, v13, v12"); a("v_mul_u32_u24 v13, 6, v13")
    a(f"v_and_b32 v14, 3, v{LANE}"); a("v_lshl_add_u32 v13, v14, 1, v13")
    a(f"v_cmp_gt_u32 {sr(S_T0,2)}, 3, v14")
    a(f"v_mov_b32 v15, {hex(HUGE)}")
    a(f"s_and_b64 vcc, vcc, {sr(S_T0,2)}")
    a(f"v_cndmask_b32 v{PA}, v15, v13, vcc")
    VL = S8
    a(f"v_mov_b32 v{SW}, 0"); a("v_mov_b32 v0, 0"); a(f"v_mov_b32 v{VL}, 0")
    a(f"s_mov_b32 s{S_PEND}, -1"); a(f"s_mov_b32 s{S_PEND+1}, 0"); a(f"s_mov_b32 s{S_LEFT}, 0")
    a(f"s_mov_b32 s{S_SPIN}, {opt('spin', 200000)}")
    a(f"s_mov_b32 s{S_SUB}, 0")
    a("s_waitcnt lgkmcnt(0)")
    if opt("pdel", 0): a(f"s_sleep {opt('pdel', 0)}")
    a("K_POLL:")
    a(f"s_mov_b64 exec, {sr(S_PEND,2)}")
    a(f"buffer_load_dwordx4 {vr(PD,4)}, v{IMGA}, {sr(S_REC,4)}, s{S_T3} offen sc1")
    a("s_waitcnt vmcnt(0)")
    a(f"v_xor_b32 v{PD+2}, v{PD}, v{PD+2}")
    a(f"v_cmp_eq_u32 vcc, v{PD+1}, v{PS}"); a(f"v_cmp_eq_u32 s[60:61], v{PD+3}, v{PS+1}"); a(f"v_cmp_eq_u32 s[58:59], v{PD+2}, v{PS+2}")
    a("s_and_b64 vcc, vcc, s[60:61]"); a("s_and_b64 vcc, vcc, s[58:59]")
    a(f"v_cndmask_b32 v{SW}, v{SW}, v{PD}, vcc")
    a(f"v_cndmask_b32 v0, v0, v{PD}, vcc")
    a("s_mov_b64 exec, -1")
    a(f"s_andn2_b32 s{S_PEND}, s{S_PEND}, vcc_lo")
    a("s_cbranch_scc0 K_ALLIN")
    a(f"s_bcnt1_i32_b32 s4, s{S_PEND}")
    a(f"s_cmp_le_u32 s4, {opt('pth', 0)}")
    a("s_cbranch_scc0 K_PWAIT")
    a("v_cmp_ne_u32 vcc, 0, v0")
    a("s_cmp_lg_u32 vcc_lo, 0")
    a("s_cbranch_scc1 K_ROUND")
    a("K_PWAIT:")
    a(f"s_sub_u32 s{S_SPIN}, s{S_SPIN}, 1")
    a(f"s_cmp_eq_u32 s{S_SPIN}, 0")
    a(f"s_cselect_b32 s{S_PEND}, 0, s{S_PEND}")
    a("s_cbranch_scc1 K_ALLIN")
    if opt("slp", 0): a(f"s_sleep {opt('slp', 0)}")
    a("s_branch K_POLL")
    a("K_ALLIN:")
    if STAMP and STAMP != 4: a(f"v_writelane_b32 v255, s{S_SPIN}, 15")
    stamp(a, 6)
    a("s_branch K_ROUND")
    a("K_RESET:")
    cursor_init(a)
    a(f"v_mov_b32 v0, v{SW}")
    a(f"s_mov_b32 s{S_SUB}, 1")
    a("s_waitcnt lgkmcnt(0)")
    a("s_barrier")
    a("K_ROUND:")
    for p in range(16): a(f"ds_bpermute_b32 v{16+4*p+3}, v{BPX}, v0 offset:{8*p}")
    a(f"s_mov_b32 s3, s{S_SEG}")
    for p in range(16):
        r = 16 + 4*p
        a(f"s_waitcnt lgkmcnt({15-p})")
        a(f"v_cmp_lt_u32_sdwa {sr(S_MASK+2*p,2)}, v{I12}, v{r+3} src0_sel:DWORD src1_sel:WORD_1")
        a(f"v_add_u32_sdwa v{r+3}, v{r+3}, v{I12H} dst_sel:DWORD dst_unused:UNUSED_PAD src0_sel:WORD_0 src1_sel:DWORD")
        a(f"s_or_b64 exec, {sr(S_MASK+2*p,2)}, 1")
        a(f"buffer_load_dwordx3 {vr(r,3)}, v{r+3}, {sr(S_REC,4)}, s3 offen {opt('ldp', 'sc1').replace('+', ' ')}")
        a("s_mov_b64 exec, -1")
        a(f"s_add_u32 s3, s3, {2*CHS}")
    stamp(a, 7)
    a("v_lshrrev_b32 v12, 16, v0")
    a(f"v_cmp_lt_u32 vcc, s{S_WIN}, v12")
    a(f"v_min_u32 v12, s{S_WIN}, v12")
    a("v_add_u32 v0, v0, v12"); a("v_lshlrev_b32 v12, 16, v12"); a("v_sub_u32 v0, v0, v12")
    a(f"s_mov_b32 s{S_MORE}, vcc_lo")
    a(f"v_cndmask_b32 v{VL}, v{VL}, v0, vcc")
    for p in range(16):
        r = 16 + 4*p
        a(f"s_waitcnt vmcnt({15-p + min(p, NPF)})")
        a(f"s_mov_b64 exec, {sr(S_MASK+2*p,2)}")
        a(f"v_bfe_u32 v{r+3}, v{r+2}, 22, 6")
        a(f"ds_add_rtn_u32 v{r+3}, v{r+3}, v{FOUR}")
        if p < NPF:
            a(f"v_and_b32 v{ADQ}, s{S_GM}, v{r+2}")
            a(f"s_or_b64 exec, {sr(S_MASK+2*p,2)}, 1")
            a(f"buffer_load_dword v{S16}, v{ADQ}, {sr(S_H,4)}, 0 offen")
        if p % 4 == 3:
            a("s_waitcnt lgkmcnt(0)")
            for q in range(p-3, p+1):
                rq = 16 + 4*q
                a(f"s_mov_b64 exec, {sr(S_MASK+2*q,2)}")
                a(f"ds_write_b32 v{rq+3}, v{rq+2}")
                a(f"ds_write2st64_b32 v{rq+3}, v{rq}, v{rq+1} offset0:{PO1} offset1:{PO2}")
    a("s_mov_b64 exec, -1")
    a(f"s_cmp_lg_u32 s{S_SUB}, 0")
    a("s_cbranch_scc1 K_LAST")
    a(f"s_or_b32 s{S_LEFT}, s{S_LEFT}, s{S_MORE}")
    a("v_mov_b32 v0, 0")
    a(f"s_cmp_lg_u32 s{S_PEND}, 0")
    a("s_cbranch_scc1 K_POLL")
    a(f"s_cmp_eq_u32 s{S_LEFT}, 0")
    a("s_cbranch_scc1 K_BINNED")
    a(f"v_mov_b32 v0, v{VL}")
    a(f"s_mov_b32 s{S_SUB}, 1")
    a("s_branch K_ROUND")
    a("K_LAST:")
    a(f"s_cmp_eq_u32 s{S_MORE}, 0")
    a("s_cbranch_scc1 K_BINNED")
    a(f"v_mov_b32 v13, {L_FLAG}")
    a(f"ds_write_b32 v13, v{FOUR}")
    a("K_BINNED:")
    stamp(a, 8)
    a(f"buffer_load_dwordx4 {vr(HB,4)}, v{HA}, {sr(S_H,4)}, 0 offen")
    a(f"buffer_load_dwordx4 {vr(HB+4,4)}, v{HA}, {sr(S_H,4)}, 0 offen offset:16")
    a(f"v_lshrrev_b32 v16, 1, v{LANEE}")
    a(f"buffer_load_ushort v{WX0}, v16, {sr(S_WX,4)}, 0 offen")
    a(f"buffer_load_ushort v{WX1}, v16, {sr(S_WX,4)}, 0 offen offset:64")
    a(f"buffer_load_ushort v{PV}, v{PA}, {sr(S_POS,4)}, 0 offen")
    for j in range(4): srd(a, S_HJ+4*j, S_H, S_H+1, -1024*j, 3200000 + 1024*j)
    for i in range(16): a(f"v_mov_b32 v{MP+i}, 0")
    a(f"v_lshlrev_b32 v17, 2, v{LANE}")
    a(f"s_mov_b32 s4, s{S_W}"); a("s_add_u32 s5, s4, 8")
    a("s_xor_b32 s48, s4, 4"); a("s_xor_b32 s49, s5, 4")
    a(f"v_readlane_b32 s{S_NEXT}, v{CURB}, s4"); a(f"v_readlane_b32 s{S_JUMP}, v{CURB}, s5")
    a(f"v_mov_b32 v19, {hex(PADW)}")
    a(f"s_mov_b32 s{S_TBL}, s{S_TBLA}")
    a("s_waitcnt lgkmcnt(0)")
    a("s_barrier")
    stamp(a, 19)
    a("ds_read_b32 v16, v17")
    a("s_waitcnt lgkmcnt(0)")
    a(f"v_cmp_gt_u32 vcc, v16, v{CURL}")
    a(f"v_sub_u32 v18, v16, v{CURB}"); a("v_add_u32 v18, 127, v18"); a("v_lshrrev_b32 v18, 7, v18")
    a("v_med3_u32 v18, v18, 1, 10")
    a(f"v_sub_u32 v20, v16, v{CURB}"); a(f"v_add_u32 v20, {opt('fq', 64)}, v20"); a("v_lshrrev_b32 v20, 5, v20")
    a(f"v_readlane_b32 s{S_T0}, v16, s4"); a(f"v_readlane_b32 s{S_T1}, v16, s5"); a(f"v_readlane_b32 s{S_MORE}, v16, 16")
    a(f"v_readlane_b32 s{S_REM}, v18, s4"); a(f"v_readlane_b32 s{S_TB}, v18, s5")
    a("v_readlane_b32 s50, v20, s48"); a("v_readlane_b32 s51, v20, s49")
    a("v_readlane_b32 s54, v20, s4"); a("v_readlane_b32 s55, v20, s5")
    a("s_and_b32 s6, vcc_lo, 0xffff")
    a("s_cbranch_scc0 K_FITS")
    a(f"s_cmp_le_u32 s{S_WIN}, 12")
    a("s_cbranch_scc1 K_FITS")
    a("s_barrier")
    a(f"s_lshr_b32 s{S_WIN}, s{S_WIN}, 1")
    a(f"v_mov_b32 v16, {hex(HUGE)}")
    a(f"v_cmp_gt_u32 vcc, s{S_WIN}, v{I12}")
    a(f"v_cndmask_b32 v{I12}, v16, v{I12}, vcc")
    a("s_waitcnt vmcnt(0)")
    a("s_branch K_RESET")
    a("K_FITS:")
    a(f"s_lshl_b32 s4, s{S_REM}, 7"); a(f"s_add_u32 s{S_END}, s4, s{S_NEXT}")
    a(f"s_lshl_b32 s5, s{S_TB}, 7"); a(f"s_add_u32 s{S_END2}, s5, s{S_JUMP}")
    G = 5 if opt("quart", 1) else 6
    for end, cur, d in ((S_END, S_T0, S_QA), (S_END2, S_T1, S_HB)):
        a(f"s_sub_u32 s4, s{end}, s{cur}"); a(f"s_lshr_b32 s4, s4, {G}"); a(f"s_lshl_b32 s4, s4, {G-3}")
        a(f"s_sub_u32 s{d}, 16, s4"); a(f"s_max_u32 s{d}, s{d}, {1 << (G-3)}")
    a(f"s_cmp_lt_u32 s{S_QA}, 16"); a(f"s_cselect_b32 s{S_HA}, 1, -1")
    for cur, end, m in ((S_T0, S_END, S_LO), (S_T1, S_END2, S_HI)):
        a(f"v_add_u32 v16, s{cur}, v{LANEE}")
        a(f"v_cmp_gt_u32 vcc, s{end}, v16")
        a(f"s_and_b64 exec, vcc, {sr(m,2)}")
        a("ds_write_b32 v16, v19")
        a(f"ds_write2st64_b32 v16, v{ZERO}, v{ZERO} offset0:{PO1} offset1:{PO2}")
        a("s_mov_b64 exec, -1")
    WQ2 = 20
    for t in g_reads(0, WQ2) + g_reads(1): a(t)
    a(f"v_mov_b32 v{SW}, v0")
    a("s_add_u32 s50, s50, s51"); a("s_add_u32 s51, s54, s55")
    a(f"s_mul_i32 s50, s50, {opt('fa', 125)}"); a(f"s_mul_i32 s51, s51, {opt('fb', 51)}"); a("s_sub_i32 s50, s50, s51"); a(f"s_add_i32 s50, s50, {opt('fc', 128)}")
    a("s_ashr_i32 s50, s50, 9"); a("s_max_i32 s50, s50, 0")
    a("s_lshr_b32 s51, s50, 1")
    a(f"s_sub_i32 s{S_FLIP}, s{S_REM}, s51"); a(f"s_sub_i32 s{S_FLIP}, s{S_FLIP}, 1"); a(f"s_max_i32 s{S_FLIP}, s{S_FLIP}, 0")
    a(f"s_cmp_lt_u32 s{S_W}, 4"); a(f"s_cselect_b32 s{S_FLIP}, -1, s{S_FLIP}")
    a(f"s_mov_b32 s{S_FLIP2}, s{S_FLIP}")
    a("s_bitcmp1_b32 s50, 0"); a(f"s_cselect_b32 s{S_FLIP}, -1, s{S_FLIP}")
    a("s_waitcnt lgkmcnt(2)")
    a(f"v_bfe_u32 v{PIX}, v{W2E}, 7, 15")
    for t in g_addr(WQ2) + g_m0(0): a(t)
    a(f"s_mov_b64 exec, {sr(S_HI,2)}"); a(pos_gather()); a("s_mov_b64 exec, -1")
    for t in g_dma(WQ2): a(t)
    a("s_waitcnt lgkmcnt(0)")
    if opt("g1late", 0): a("s_barrier")
    for t in g_addr() + g_m0(1) + ["s_nop 0"] + g_dma(): a(t)
    stamp(a, 20)
    a(f"s_cmp_eq_u32 s{S_ROUND}, 1")
    a("s_cbranch_scc1 K_FILL2")
    a(f"v_lshlrev_b32 v16, 4, v{LANE}")
    a(f"s_mov_b32 s3, s{S_ACCO}")
    for i in range(16):
        a(f"buffer_load_dwordx4 {vr(ACCA0+4*i,4)}, v16, {sr(S_ACC,4)}, s3 offen offset:{(i%4)*1024} sc0 sc1")
        if i % 4 == 3: a("s_add_u32 s3, s3, 4096")
    a("s_waitcnt vmcnt(0)")
    a("K_FILL2:")
    for t in e_head(0): a(t)
    a("s_waitcnt vmcnt(4) lgkmcnt(0)")
    stamp(a, 21)
    for t in a1_reads(0) + e_sect(0, zero=False) + g_reads(0): a(t)
    a("s_waitcnt lgkmcnt(5)")
    a(mfma32(D0, A1, W2F, 0))
    for s in range(1, 4): a(mfma32(D0, A1+4*s, W2F+4*s))
    a("s_waitcnt lgkmcnt(0)")
    a(mfma32(D0, XR, BXA0))
    for t in g_addr() + g_m0(0) + ["s_nop 0"] + g_dma(): a(t)
    a("s_nop 3")
    stamp(a, 9); stamp(a, 10, True)
    if STAMP and STAMP != 4: a(f"v_writelane_b32 v255, s{S_REM}, 12"); a(f"v_writelane_b32 v255, s{S_TB}, 13"); a("s_mov_b32 s5, 24")
    HALF = opt("half", 1)
    a("K_XA0:")
    if HALF: a(f"s_cmp_eq_u32 s{S_REM}, s{S_HA}"); a("s_cbranch_scc1 K_XAH0")
    phase_x(a, 0, ACCA1, BXA1, True)
    a(f"s_cmp_eq_u32 s{S_REM}, 0"); a("s_cbranch_scc1 K_YT0")
    phase_y(a, 0, ACCA0, BXA0)
    if HALF: a(f"s_cmp_eq_u32 s{S_REM}, s{S_HA}"); a("s_cbranch_scc1 K_XAH1")
    phase_x(a, 1, ACCA1, BXA1, True)
    a(f"s_cmp_eq_u32 s{S_REM}, 0"); a("s_cbranch_scc1 K_YT1")
    phase_y(a, 1, ACCA0, BXA0)
    a("s_branch K_XA0")
    NS = (12, 8, 4) if opt("quart", 1) else (8,)
    if HALF:
        for p in (0, 1):
            a(f"K_XAH{p}:")
            for n in NS[:-1]:
                a(f"s_cmp_eq_u32 s{S_QA}, {n}"); a(f"s_cbranch_scc1 K_XAH{p}_{n}")
            for n in reversed(NS):
                a(f"K_XAH{p}_{n}:")
                phase_x(a, p, ACCA1, BXA1, True, n=n)
                phase_y(a, p, ACCA0, BXB0, n=n)
                a("s_nop 10"); a(f"s_branch K_XT{1-p}")
    a("K_YT0:")
    phase_y(a, 0, ACCA0, BXB0)
    a("K_XT1:")
    phase_x(a, 1, ACCA1, BXB1, False)
    a("s_branch K_YB1")
    a("K_YT1:")
    phase_y(a, 1, ACCA0, BXB0)
    a("K_XT0:")
    phase_x(a, 0, ACCA1, BXB1, False)
    a("K_YB0:")
    phase_y(a, 0, ACCB0, BXB0)
    a(f"s_sub_u32 s{S_TB}, s{S_TB}, 1"); a(f"s_cmp_le_u32 s{S_TB}, {HALF}"); a("s_cbranch_scc1 K_TAIL")
    phase_x(a, 1, ACCB1, BXB1, False)
    a("K_YB1:")
    phase_y(a, 1, ACCB0, BXB0)
    a(f"s_sub_u32 s{S_TB}, s{S_TB}, 1"); a(f"s_cmp_le_u32 s{S_TB}, {HALF}"); a("s_cbranch_scc1 K_TAIL")
    phase_x(a, 0, ACCB1, BXB1, False)
    a("s_branch K_YB0")
    a("K_TAIL:")
    if HALF:
        a(f"s_cmp_eq_u32 s{S_TB}, 0"); a("s_cbranch_scc1 K_DRAIN")
        for n in NS:
            a(f"s_cmp_eq_u32 s{S_HB}, {n}"); a(f"s_cbranch_scc1 K_TAIL{n}")
        for n in (16,) + NS:
            a(f"K_TAIL{n}:")
            phase_x(a, 0, ACCB1, BXB1, False, n=n, last=True)
            phase_y(a, 0, ACCB0, BXB0, n=n, last=True)
            if n != NS[-1]: a("s_nop 0"); a("s_branch K_DRAIN")
    a("K_DRAIN:")
    a(mfma32(ACCB1, A2, MP))
    a(mfma32(ACCB1, A2+4, MP+4))
    stamp(a, 16); stamp(a, 11, True)
    a(f"s_cmp_eq_u32 s{S_MORE}, 0")
    a("s_cbranch_scc1 K_EPI")
    a("s_setprio 0")
    a(f"s_mov_b64 exec, {sr(S_HI,2)}"); a(f"ds_write_b64 v{IMGA}, {vr(ZERO,2)}"); a("s_mov_b64 exec, -1")
    a(f"v_lshlrev_b32 v16, 4, v{LANE}")
    a(f"s_mov_b32 s3, s{S_ACCO}")
    a("s_nop 7")
    for i in range(16):
        a(f"buffer_store_dwordx4 {vr(ACCA0+4*i,4)}, v16, {sr(S_ACC,4)}, s3 offen offset:{(i%4)*1024} sc0 sc1")
        if i % 4 == 3: a("s_add_u32 s3, s3, 4096")
    a(f"s_mov_b32 s{S_ROUND}, 2")
    a("s_waitcnt vmcnt(0) lgkmcnt(0)")
    a("s_barrier")
    a("s_branch K_RESET")
    a("K_EPI:")
    whf = lambda f: (16 + 4*f) if f < 12 else (80 + 4*(f-12))
    MB = 108; DO = 116; AD = 100
    a(f"v_lshrrev_b32 v{AD}, 4, v{LANE}"); a(f"v_lshlrev_b32 v{AD}, 4, v{AD}")
    a(f"v_bfe_u32 v{AD+1}, v{LANE}, 2, 2"); a(f"v_add_u32 v{AD}, v{AD}, v{AD+1}"); a(f"v_lshlrev_b32 v{AD}, 7, v{AD}")
    a(f"v_and_b32 v{AD+1}, 3, v{LANE}"); a(f"v_lshl_add_u32 v{AD}, v{AD+1}, 5, v{AD}"); a(f"v_add_u32 v{AD}, {L_WH}, v{AD}")
    a(f"s_mov_b32 s4, {hex(NLN2)}")
    a(f"v_lshrrev_b32 v{AD+2}, 5, v{LANE}"); a(f"v_lshlrev_b32 v{AD+2}, 7, v{AD+2}"); a(f"v_lshrrev_b32 v{AD+3}, 1, v{LANEE}")
    a(f"s_lshl_b32 s5, s{S_W}, 11"); a(f"s_add_u32 s5, s5, {L_IMG}")
    a(f"v_add3_u32 v{AD+2}, v{AD+2}, v{AD+3}, s5")
    a(f"v_and_b32 v{AD+3}, 15, v{LANE}"); a(f"v_lshlrev_b32 v{AD+3}, 7, v{AD+3}"); a(f"v_lshrrev_b32 v{AD+4}, 4, v{LANE}")
    a(f"v_lshl_add_u32 v{AD+3}, v{AD+4}, 5, v{AD+3}"); a(f"v_add_u32 v{AD+3}, s5, v{AD+3}")
    for s in range(4):
        for t in range(4):
            for kk in range(2):
                a(f"ds_read_b64_tr_b16 {vr(whf(t*4+s)+2*kk,2)}, v{AD} offset:{(s>>1)*8192 + (s&1)*1024 + kk*512 + t*8}")
        g, (c0, c1) = list(enumerate(((ACCA0, ACCA1), (ACCB0, ACCB1))))[s >> 1]
        for q in range(2*(s&1), 2*(s&1)+2):
            a(f"v_mul_f32 v{c0+4*q}, s4, v{c0+4*q}"); a(f"v_mul_f32 v{c1+4*q}, s4, v{c1+4*q}")
            a(f"v_cvt_pk_bf16_f32 v{c0+4*q}, v{c0+4*q}, v{c1+4*q}")
            a(f"ds_write_b16 v{AD+2}, v{c0+4*q} offset:{g*1024 + q*256}")
            a(f"ds_write_b16_d16_hi v{AD+2}, v{c0+4*q} offset:{g*1024 + q*256 + 64}")
    a(f"ds_read_b128 {vr(MB,4)}, v{AD+3}"); a(f"ds_read_b128 {vr(MB+4,4)}, v{AD+3} offset:16")
    for w in (WX0, WX1): a(f"v_lshlrev_b32 v{w}, 16, v{w}"); a(f"v_mul_f32 v{w}, s4, v{w}")
    for (c0, c1) in ((ACCA0, ACCA1), (ACCB0, ACCB1)):
        for q in range(4):
            for k in (1, 2, 3):
                a(f"v_mul_f32 v{c0+4*q+k}, v{WX0}, v{c0+4*q+k}"); a(f"v_fmac_f32 v{c0+4*q+k}, v{WX1}, v{c1+4*q+k}")
    a("s_waitcnt lgkmcnt(0)")
    bsrc = (HB, HB+4, MB, MB+4)
    mf = []
    for s in range(4):
        for t in range(4):
            c = "0" if s == 0 else vr(DO+4*t, 4)
            mf.append(f"v_mfma_f32_16x16x32_bf16 {vr(DO+4*t,4)}, {vr(whf(t*4+s),4)}, {vr(bsrc[s],4)}, {c}")
    red = []
    for q in range(4):
        for k in (1, 2, 3): red.append(f"v_permlane16_swap_b32 v{ACCA0+4*q+k}, v{ACCB0+4*q+k}")
    for q in range(4):
        for k in (1, 2, 3): red.append(f"v_add_f32 v{ACCA0+4*q+k}, v{ACCA0+4*q+k}, v{ACCB0+4*q+k}")
    for q in range(2):
        for k in (1, 2, 3):
            red.append(f"v_add_f32_dpp v{ACCA1+4*q+k}, v{ACCA0+4*q+k}, v{ACCA0+4*q+k} row_ror:8 row_mask:0xf bank_mask:0x3")
            red.append(f"v_add_f32_dpp v{ACCA1+4*q+k}, v{ACCA0+4*q+8+k}, v{ACCA0+4*q+8+k} row_ror:8 row_mask:0xf bank_mask:0xc")
    for i, m in enumerate(mf):
        a(m)
        for t in red[2*i:2*i+2]: a(t)
    for t in red[32:]: a(t)
    for k in (1, 2, 3):
        a(f"v_add_f32_dpp v{ACCB1+k}, v{ACCA1+k}, v{ACCA1+k} row_shl:4 row_mask:0xf bank_mask:0x5")
        a(f"v_add_f32_dpp v{ACCB1+k}, v{ACCA1+4+k}, v{ACCA1+4+k} row_shr:4 row_mask:0xf bank_mask:0xa")
    for perm in ("[1,0,3,2]", "[2,3,0,1]"):
        for k in (1, 2, 3): a(f"v_add_f32_dpp v{ACCB1+k}, v{ACCB1+k}, v{ACCB1+k} quad_perm:{perm} row_mask:0xf bank_mask:0xf")
    a(f"v_cmp_eq_u32 vcc, 1, v{AD+1}"); a(f"v_lshlrev_b32 v{PV}, 16, v{PV}"); a(f"s_mov_b32 s4, {hex(NLOG2E)}")
    a(f"v_cndmask_b32 v{AD+5}, v{ACCB1+1}, v{ACCB1+2}, vcc")
    a(f"v_cmp_eq_u32 vcc, 2, v{AD+1}"); a("s_mov_b32 s5, s4"); a("s_mov_b32 s3, 3200000")
    a(f"v_cndmask_b32 v{AD+5}, v{AD+5}, v{ACCB1+3}, vcc")
    a(f"v_add_f32 v{AD+5}, v{AD+5}, v{PV}"); a(f"v_cvt_pk_bf16_f32 v{AD+5}, v{AD+5}, v{AD+5}")
    a(f"buffer_store_short v{AD+5}, v{PA}, {sr(S_OUT,4)}, s3 offen {OP}")
    E = 148
    for j in range(8): a(f"v_pk_mul_f32 {vr(E+2*j,2)}, {vr(DO+2*j,2)}, s[4:5]")
    for j in range(16): a(f"v_exp_f32 v{E+j}, v{E+j}")
    for j in range(8): a(f"v_pk_add_f32 {vr(E+2*j,2)}, {vr(E+2*j,2)}, 1.0 op_sel_hi:[1,0]")
    for j in range(16): a(f"v_rcp_f32 v{E+j}, v{E+j}")
    for j in range(8):
        a(f"v_lshlrev_b32 v{E+16+2*j}, 16, v{HB+j}"); a(f"v_and_b32 v{E+17+2*j}, 0xffff0000, v{HB+j}")
    for j in range(8): a(f"v_pk_fma_f32 {vr(E+2*j,2)}, {vr(E+2*j,2)}, {vr(DO+2*j,2)}, {vr(E+16+2*j,2)}")
    for j in range(8): a(f"v_cvt_pk_bf16_f32 v{E+32+j}, v{E+2*j}, v{E+2*j+1}")
    a(f"buffer_store_dwordx4 {vr(E+32,4)}, v{HA}, {sr(S_OUT,4)}, 0 offen {OP}")
    a(f"buffer_store_dwordx4 {vr(E+36,4)}, v{HA}, {sr(S_OUT,4)}, 0 offen offset:16 {OP}")
    stamp(a, 17)
    if STAMP: a("s_waitcnt vmcnt(0)")
    stamp(a, 18)
    stamp_out(a)
    a("K_END:")
    a("s_endpgm")

def main():
    ref = open(f"cdna_kernels/{NAME}.s.ref").read().split("\n")
    head = [l for l in ref if l.startswith(";") and "@launch" not in l and not l.startswith("; Override") and not l.startswith("; grid=")]
    out = "\n".join(head) + "\n"
    if opt("aslist", 0): out += f"; @launch kernel={KN} grid=(256,1,1) block=(512,1,1) lds={LDS}\n"
    else: out += f"; @launch grid=(256,1,1) block=(512,1,1) lds={LDS}\n"
    out += '.amdgcn_target "amdgcn-amd-amdhsa--gfx950"\n.text\n'
    a = Asm(); gen(a)
    for b in a.check_edges(): print("EDGE HAZARD", b, file=sys.stderr)
    out += f".globl {KN}\n.p2align 8\n.type {KN},@function\n" + a.text()
    out += f""".section .rodata,"a"
.p2align 6
.amdhsa_kernel {KN}
  .amdhsa_next_free_vgpr 256
  .amdhsa_next_free_sgpr 102
  .amdhsa_accum_offset 256
  .amdhsa_group_segment_fixed_size 0
  .amdhsa_kernarg_size 88
  .amdhsa_user_sgpr_count 2
  .amdhsa_user_sgpr_kernarg_segment_ptr 1
  .amdhsa_system_sgpr_workgroup_id_x 1
  .amdhsa_float_denorm_mode_32 3
.end_amdhsa_kernel
"""
    open(sys.argv[1], "w").write(out)
main()
```

```python
import sys, math, struct
from asmlib import Asm

NAME = "gather_scatter__cheap_equivariant_egnn__graph"
KN = NAME + "_kernel"
def f32bits(x): return struct.unpack("<I", struct.pack("<f", x))[0]
NLOG2E = f32bits(-math.log2(math.e)); NLN2 = f32bits(-math.log(2.0))
OPT = dict(a.split("=") for a in sys.argv[2:]) if len(sys.argv) > 2 else {}
def opt(k, d): return type(d)(OPT.get(k, d))
STAMP = opt("stamp", 0)

CH = 3128; CHB = CH * 12; CHS = opt('chs', 37632); NQ = CH // 4; NQ_LAST = (800000 - 255 * CH) // 4
WSO = opt('wso', 0) << 20
WS_GRAN = 0x00A00000; WS_POSF = 0x00B00000; WS_ACC = 0x01000000; WS_STAMP = 0x08000000
GMUL = 10737; GMAGIC = 51201995
L_CUR = 0; L_FLAG = 64; L_EPOCH = 68; L_TBL = 0x100; L_IMG = 0x1100; L_GB = 0x5100
L_WH = L_GB + 8 * 8192
L_REC = L_WH + 16384
PADO = 128 * 98 + 384 * 16; PLANE = 18944; PO1 = PLANE // 256; PO2 = 2 * PO1
L_PAD = L_REC + PADO
LDS = L_REC + 3 * PLANE
L_STG = L_GB; L_HIST = L_GB + 37632; L_OFFS = L_HIST + 1024; L_WF = L_GB + 40960
assert LDS <= 163840 and PADO + 128 <= PLANE and L_GB % 256 == 0
PADW = (32767 << 7) | (7 << 3)
HUGE = 0x40000000
TAGK = 0x9E3779B9

D0 = 16; D1 = 32; T = 48; MP = 64; A2 = 72; A1 = 80; XR = 96
W2F = 100; BXA0 = 132; BXA1 = 136; BXB0 = 140; BXB1 = 144
ACCA0 = 148; ACCA1 = 164; ACCB0 = 180; ACCB1 = 196
COLC = 212; RDA = 216; TRA = 220; IMGB = 221; LANEQ = 222; LANEE = 223
WQ = 224; W2E = 228; ADE = 230; PS = 232; CURB = 235; HA = 236; PA = 237; PV = 238; CURL = 239
PD = 240; WX0 = 243; VAL = 244; IMGA = 246; S8 = 247; S16 = 248; ADQ = 249
ZERO = 250; D2 = 252; PIX = 253; WX1 = 254
LANE = 1; SW = 2; I12 = 3; I12H = 4; BPX = 5; FOUR = 6; TMP = 7; HB = 8
S_H = 8; S_POSF = 12; S_REC = 16; S_POS = 20; S_OUT = 24; S_ACC = 28; S_MASK = 32; S_HJ = 32
S_W = 64; S_B = 65; S_NA = 66; S_NB = 67; S_CA = 68; S_CB = 69
S_LO = 70; S_HI = 72; S_GM = 74; S_TBL = 75; S_TBLA = 76; S_TBLB = 77
S_NEXT = 78; S_END = 79; S_JUMP = 80; S_END2 = 81; S_PADB = 82; S_PADE = 83
S_REM = 84; S_TB = 85; S_GB = 86; S_WIN = 87; S_ROUND = 88; S_MORE = 89; S_T0 = 90; S_T1 = 91; S_T3 = 92
S_SEG = 93; S_ACCO = 94; S_FLIP = 95; S_WX = 96; S_SUB = 100; S_SPIN = 101; S_FLIP2 = 101; S_EARLY = 57; S_HA = 52; S_HB = 53; S_QA = 56; S_PEND = 78; S_LEFT = 80

def vr(b, n): return f"v[{b}:{b+n-1}]"
def sr(b, n): return f"s[{b}:{b+n-1}]"
def srd(a, d, lo, hi, off, num, stride=0):
    if off > 0:
        a(f"s_add_u32 s{d}, s{lo}, {hex(off)}"); a(f"s_addc_u32 s{d+1}, s{hi}, 0")
    elif off < 0:
        a(f"s_sub_u32 s{d}, s{lo}, {hex(-off)}"); a(f"s_subb_u32 s{d+1}, s{hi}, 0")
    else:
        a(f"s_mov_b32 s{d}, s{lo}"); a(f"s_mov_b32 s{d+1}, s{hi}")
    if stride: a(f"s_or_b32 s{d+1}, s{d+1}, {hex(stride << 16)}")
    a(f"s_mov_b32 s{d+2}, {hex(num)}"); a(f"s_mov_b32 s{d+3}, 0x20000")
def stamp(a, idx, cyc=False):
    if not STAMP: return
    if STAMP == 4:
        if cyc or idx in (0, 18, 20, 21, 22): return
        idx = {16: 10, 17: 11, 19: 12}.get(idx, idx)
    a(f"{'s_memtime' if cyc else 's_memrealtime'} s[6:7]"); a("s_waitcnt lgkmcnt(0)"); a(f"v_writelane_b32 v255, s6, {idx}")
def stamp_out(a):
    if not STAMP: return
    if STAMP == 4:
        a("s_mov_b64 exec, -1")
        a("s_load_dwordx2 s[32:33], s[0:1], 72"); a("s_waitcnt lgkmcnt(0)")
        srd(a, 36, 32, 33, 0, 256)
        a(f"buffer_load_dword v17, v{ZERO}, s[36:39], 0 offen sc0 sc1")
        a("v_readlane_b32 s4, v255, 9"); a("v_readlane_b32 s5, v255, 10"); a("v_readlane_b32 s6, v255, 6")
        a("s_waitcnt vmcnt(0)")
        a("v_readfirstlane_b32 s7, v17")
        a("s_lshl_b32 s32, s7, 1"); a("s_add_u32 s32, s32, 10000")
        a("s_sub_u32 s4, s32, s4"); a("s_sub_u32 s5, s32, s5"); a("s_sub_u32 s6, s32, s6")
        a("v_writelane_b32 v255, s4, 13"); a("v_writelane_b32 v255, s5, 14"); a("v_writelane_b32 v255, s6, 15")
        a("v_sub_u32 v255, v255, v17")
        a(f"v_lshlrev_b32 v16, 2, v{LANE}")
        a("s_mov_b64 exec, 0xfffe")
        a("buffer_atomic_umax v255, v16, s[36:39], 0 offen sc1")
        return
    a("s_mov_b64 exec, -1")
    a("s_load_dwordx2 s[32:33], s[0:1], 80"); a("s_waitcnt lgkmcnt(0)")
    srd(a, 36, 32, 33, WS_STAMP, 1 << 22)
    a("s_lshl_b32 s32, s2, 4"); a(f"s_add_u32 s32, s32, s{S_W}"); a("s_lshl_b32 s32, s32, 8")
    a(f"v_lshlrev_b32 v16, 2, v{LANE}")
    a("buffer_store_dword v255, v16, s[36:39], s32 offen")

def mfma32(d, a_, b_, c=None):
    return f"v_mfma_f32_32x32x16_bf16 {vr(d,16)}, {vr(a_,4)}, {vr(b_,4)}, {'0' if c == 0 else vr(d,16)}"
def silu_main(d, n=16):
    m = [f"v_exp_f32 v{T+j}, v{d+j}" for j in range(n)]
    m += [f"v_pk_add_f32 {vr(T+2*j,2)}, {vr(T+2*j,2)}, 1.0 op_sel_hi:[1,0]" for j in range(n//2)]
    m += [f"v_rcp_f32 v{T+j}, v{T+j}" for j in range(n)]
    m += [f"v_pk_mul_f32 {vr(T+2*j,2)}, {vr(T+2*j,2)}, {vr(d+2*j,2)}" for j in range(n//2)]
    m += [f"v_cvt_pk_bf16_f32 v{MP+j}, v{T+2*j}, v{T+2*j+1}" for j in range(n//2)]
    return m
def emit(a, main, ins):
    for t in ins.get(-1, []): a(t)
    for i, m in enumerate(main):
        a(m)
        for t in ins.get(i, []): a(t)
def gstate(isA=True):
    o = [f"s_add_u32 s{S_NEXT}, s{S_NEXT}, 128", f"s_cmp_eq_u32 s{S_NEXT}, s{S_END}",
         f"s_cselect_b32 s{S_NEXT}, s{S_JUMP}, s{S_NEXT}", f"s_cselect_b32 s{S_END}, s{S_END2}, s{S_END}"]
    if isA: o += [f"s_cselect_b32 s{S_JUMP}, s{S_PADB}, s{S_JUMP}", f"s_cselect_b32 s{S_END2}, s{S_PADE}, s{S_END2}"]
    return o
def g_reads(e, wq=WQ, isA=True):
    return [f"v_add_u32 v{ADQ}, s{S_NEXT}, v{LANEQ}", f"v_add_u32 v{ADE+e}, s{S_NEXT}, v{LANEE}",
            f"ds_read_b128 {vr(wq,4)}, v{ADQ}", f"ds_read_b32 v{W2E+e}, v{ADE+e}"] + gstate(isA)
def g_addr(wq=WQ): return [f"v_and_or_b32 v{wq+j}, v{wq+j}, s{S_GM}, v{COLC+j}" for j in range(4)]
def g_m0(e): return [f"s_add_u32 m0, s{S_GB}, {e*4096}"]
def g_dma(wq=WQ): return [f"buffer_load_dwordx4 v{wq+j}, {sr(S_HJ+4*j,4)}, 0 offen offset:{j*1024} {opt('gp', '')} lds" for j in range(4)]
def pos_gather(): return f"buffer_load_dwordx3 {vr(PS,3)}, v{PIX}, {sr(S_POSF,4)}, 0 idxen sc1"
def e_head(e):
    return [f"v_and_b32 v{S8}, 0x38, v{W2E+e}", f"v_lshl_add_u32 v{S16}, v{S8}, 1, s{S_TBL}", f"ds_read_b96 {vr(PD,3)}, v{S16} offset:128",
            f"v_bfe_u32 v{PIX}, v{W2E+1-e}, 7, 15"]
def e_sect(e, zero=True):
    o = [f"s_mov_b64 exec, {sr(S_LO,2)}", f"ds_read_b128 {vr(XR,4)}, v{S16}", f"s_mov_b64 exec, {sr(S_HI,2)}"]
    o += [f"v_sub_f32 v{PD+k}, v{PD+k}, v{PS+k}" for k in range(3)]
    o += [f"v_cvt_pk_bf16_f32 v{VAL}, 1.0, v{PD}", f"v_cvt_pk_bf16_f32 v{VAL+1}, v{PD+1}, v{PD+2}",
          f"v_dot2_f32_bf16 v{D2}, v{VAL}, v{VAL}, -1.0", f"v_dot2_f32_bf16 v{D2}, v{VAL+1}, v{VAL+1}, v{D2}",
          f"ds_read2st64_b32 {vr(XR,2)}, v{ADE+e} offset0:{PO1} offset1:{PO2}"]
    if zero: o += [f"ds_write_b64 v{IMGA}, {vr(ZERO,2)}"]
    o += [f"v_add_u32 v{IMGA}, v{S8}, v{IMGB}", f"ds_write_b64 v{IMGA}, {vr(VAL,2)}", pos_gather(),
          f"v_cvt_pk_bf16_f32 v{XR+2}, v{D2}, v{D2}", "s_mov_b64 exec, -1"]
    return o
def a1_reads(e): return [f"ds_read_b128 {vr(A1+4*s,4)}, v{RDA+s} offset:{e*4096}" for s in range(4)]
def tr_reads(): return [f"ds_read_b64_tr_b16 {vr(A2+2*k,2)}, v{TRA} offset:{k*512}" for k in range(4)]

OP = opt('op', 'nt').replace('+', ' ')
EARLY = opt('early', 1); HBL = opt('hbl', 0); G1P = opt('g1post', 0)
NPF = opt('npf', 0)
PRIO = opt("prio", 2)
_lbl = [0]
XPOS = {16: "0,3,24,27,30,33,36,25,26", 12: "0,3,6,18,21,24,36,11,13", 8: "0,3,12,15,18,24,26,13,14", 4: "0,3,6,9,12,13,13,7,8"}
YPOS = {16: "0,3,6,24,27,30,33,1,7,8,10,11", 12: "0,3,6,18,21,24,36,1,7,8,10,11", 8: "0,0,4,12,15,18,24,1,5,6,7,13", 4: "0,0,2,6,9,12,13,1,3,6,7,8"}
def phase_x(a, p, acc1, bx1, isA, n=16, last=False):
    e = 1 - p
    ins = {}; pre = []
    def add(k, l): ins[k] = ins.get(k, []) + l
    if isA:
        pre += [f"s_sub_u32 s{S_REM}, s{S_REM}, 1", f"s_cmp_eq_u32 s{S_REM}, 0", f"s_cselect_b32 s{S_TBL}, s{S_TBLB}, s{S_TBLA}"]
        if PRIO == 2:
            _lbl[0] += 1; L = f"KP{_lbl[0]}"
            add(2, [f"s_cmp_lg_u32 s{S_REM}, s{S_FLIP}", f"s_cbranch_scc1 {L}", "s_setprio 1", f"{L}:"])
            _lbl[0] += 1; L = f"KP{_lbl[0]}"
            add(n*7//2 - 2, [f"s_cmp_lg_u32 s{S_REM}, s{S_FLIP2}", f"s_cbranch_scc1 {L}", "s_setprio 1", f"{L}:"])
    if STAMP == 2:
        pre += ["s_memtime s[6:7]", "s_waitcnt lgkmcnt(0)", "s_mov_b32 m0, s5", "s_add_u32 s5, s5, 1", "v_writelane_b32 v255, s6, m0"]
    if STAMP == 3:
        pre += ["s_memtime s[6:7]", "s_memrealtime s[54:55]", "s_waitcnt lgkmcnt(0)", "s_mov_b32 m0, s5", "s_add_u32 s5, s5, 1", "v_writelane_b32 v255, s6, m0",
                "s_mov_b32 m0, s5", "s_add_u32 s5, s5, 1", "v_writelane_b32 v255, s54, m0"]
    ins[-1] = pre
    XP = [int(x) for x in opt(f"xp{n}", XPOS[n]).split(",")]
    mf = [mfma32(acc1, A2, MP), mfma32(acc1, A2+4, MP+4), mfma32(D1, XR, bx1, 0)] + [mfma32(D1, A1+4*s, W2F+16+4*s) for s in range(4)]
    for k, m in zip(XP[:7], mf): add(k, [m])
    tr = tr_reads()
    add(XP[1]+1, tr[:2]); add(XP[1]+2, tr[2:])
    if not last:
        add(0, e_head(e))
        add(XP[7], ["s_waitcnt vmcnt(4) lgkmcnt(4)"] + e_sect(e))
        add(XP[8], g_reads(e, isA=isA))
        add(min(XP[6]+1, n*7//2 - 1), a1_reads(e))
    assert XP[7] > XP[2] and XP[7] > XP[1]+2 and XP[8] > XP[7] and XP[6]+1 > XP[8]
    emit(a, silu_main(D0, n), ins)

def phase_y(a, p, acc0, bx0, n=16, last=False):
    e = 1 - p
    ins = {}
    def add(k, l): ins[k] = ins.get(k, []) + l
    ins[-1] = ["s_waitcnt lgkmcnt(0)" if last else "s_waitcnt lgkmcnt(10)"]
    YP = [int(x) for x in opt(f"yp{n}", YPOS[n]).split(",")]
    mf = [mfma32(acc0, A2, MP), mfma32(acc0, A2+4, MP+4), mfma32(D0, A1, W2F, 0)] + [mfma32(D0, A1+4*s, W2F+4*s) for s in range(1, 4)] + [mfma32(D0, XR, bx0)]
    if not last: add(YP[2], ["s_waitcnt lgkmcnt(0)"])
    for i, (k, m) in enumerate(zip(YP[:7], mf)):
        if (n <= 8 and i == 1) or (last and i >= 2): continue
        add(k, [m])
    if not last:
        add(0, g_m0(e))
        add(YP[7], (["s_waitcnt lgkmcnt(5)"] if YP[7] < YP[2] else []) + g_addr())
        for k, d in zip(YP[8:], g_dma()): add(k, [d])
    assert min(YP[8:]) >= YP[2] and min(YP[8:]) >= YP[7]
    emit(a, silu_main(D1, n), ins)

def node_sel(a, cond, vnode, vcnt, vtmp):
    a(cond)
    a(f"v_mov_b32 v{vnode}, s{S_NB}"); a(f"v_mov_b32 v{vcnt}, s{S_NA}")
    a(f"v_cndmask_b32 v{vnode}, v{vnode}, v{vcnt}, vcc")
    a(f"v_mov_b32 v{vcnt}, s{S_CB}"); a(f"v_mov_b32 v{vtmp}, s{S_CA}")
    a(f"v_cndmask_b32 v{vcnt}, v{vcnt}, v{vtmp}, vcc")

def cursor_init(a):
    a(f"v_lshlrev_b32 v13, 2, v{LANE}")
    a("s_mov_b64 exec, 0x1ffff"); a(f"ds_write_b32 v13, v{CURB}"); a("s_mov_b64 exec, -1")

def gen(a):
    a(f"{KN}:")
    a("s_cmp_ge_u32 s2, 256")
    a("s_cbranch_scc1 K_END")
    a("s_load_dwordx16 s[32:47], s[0:1], 0")
    a("s_load_dwordx4 s[48:51], s[0:1], 64")
    a("s_load_dwordx2 s[52:53], s[0:1], 80")
    if opt("cpf", 0) == 2:
        a("s_getpc_b64 s[4:5]")
        a("K_PC:")
        a("s_mov_b32 s3, K_END-K_PC-16")
        a("v_lshlrev_b32 v8, 4, v0")
        for k in range(2):
            a(f"v_add_u32 v12, {8192*k}, v8"); a("v_min_u32 v12, s3, v12")
            a(f"global_load_dwordx4 {vr(PD,4)}, v12, s[4:5]")
    stamp(a, 0); stamp(a, 14, True)
    a("s_cmp_eq_u32 s2, 255")
    a(f"s_movk_i32 s4, {NQ - 512}")
    a(f"s_cselect_b32 s4, {NQ_LAST - 512}, s4")
    a(f"s_mul_i32 s3, s2, {CH*4}")
    a("s_lshl_b32 s5, s3, 1")
    a("v_lshlrev_b32 v8, 4, v0")
    a("v_lshlrev_b32 v9, 5, v0")
    a("v_cmp_gt_u32 s[62:63], s4, v0")
    a(f"v_mov_b32 v12, {hex(HUGE)}")
    a("v_add_u32 v10, 0x2000, v8")
    a("v_add_u32 v11, 0x4000, v9")
    a("v_cndmask_b32 v10, v12, v10, s[62:63]")
    a("v_cndmask_b32 v11, v12, v11, s[62:63]")
    a("v_and_b32 v12, 0xff, v0")
    a("v_lshlrev_b32 v12, 2, v12")
    a(f"v_mov_b32 v{ZERO}, 0")
    a(f"ds_write_b32 v12, v{ZERO} offset:{L_HIST}")
    a("s_waitcnt lgkmcnt(0)")
    if WSO: a(f"s_add_u32 s52, s52, {hex(WSO)}"); a("s_addc_u32 s53, s53, 0")
    srd(a, 8, 40, 41, 0, 3200000)
    srd(a, 12, 38, 39, 0, 3200000)
    srd(a, 16, 36, 37, 0, 6400000)
    nt = " nt" if opt("k1nt", 1) else ""
    a(f"buffer_load_dwordx4 v[16:19], v8, s[8:11], s3 offen{nt}")
    a(f"buffer_load_dwordx4 v[20:23], v10, s[8:11], s3 offen{nt}")
    if opt("dstfirst", 0): a("s_barrier")
    a(f"buffer_load_dwordx4 v[24:27], v8, s[12:15], s3 offen{nt}")
    a(f"buffer_load_dwordx4 v[28:31], v10, s[12:15], s3 offen{nt}")
    a(f"buffer_load_dwordx4 v[32:35], v9, s[16:19], s5 offen{nt}")
    a(f"buffer_load_dwordx4 v[36:39], v9, s[16:19], s5 offen offset:16{nt}")
    a(f"buffer_load_dwordx4 v[40:43], v11, s[16:19], s5 offen{nt}")
    a(f"buffer_load_dwordx4 v[44:47], v11, s[16:19], s5 offen offset:16{nt}")
    NC = 0
    if opt("cpf", 0) == 1:
        a("s_getpc_b64 s[4:5]")
        a("K_PC:")
        a("s_mov_b32 s3, K_END-K_PC-16")
        for k in range(2):
            a(f"v_add_u32 v12, {8192*k}, v8"); a("v_min_u32 v12, s3, v12")
            a(f"global_load_dwordx4 {vr(PD,4)}, v12, s[4:5]")
        NC = 2
    if not opt("dstfirst", 0): a("s_barrier")
    a(f"v_and_b32 v{LANE}, 63, v0")
    a("v_lshrrev_b32 v12, 6, v0")
    a(f"v_readfirstlane_b32 s{S_W}, v12")
    RW = 148
    srd(a, S_ACC, 50, 51, 0, 256)
    a("v_mov_b32 v12, 0")
    a("s_cmp_lg_u32 s2, 0"); a("s_cbranch_scc1 K_NOEP")
    a(f"s_cmp_lg_u32 s{S_W}, 7"); a("s_cbranch_scc1 K_NOEP")
    a("s_memrealtime s[4:5]")
    a("s_waitcnt lgkmcnt(0)")
    a("s_or_b32 s4, s4, 1")
    a("v_mov_b32 v13, s4")
    a("s_mov_b64 exec, 1")
    a(f"buffer_store_dword v13, v12, {sr(S_ACC,4)}, 0 offen sc0 sc1")
    a("s_mov_b64 exec, -1")
    a("K_NOEP:")
    a(f"v_mov_b32 v{ZERO+1}, 0")
    a("s_and_b32 s3, s2, 7"); a("s_lshl_b32 s3, s3, 5")
    a(f"s_lshr_b32 s{S_B}, s2, 3"); a(f"s_add_u32 s{S_B}, s{S_B}, s3")
    a(f"s_lshl_b32 s4, s{S_B}, 20"); a(f"s_add_u32 s4, s4, {GMUL-1}")
    a(f"s_mov_b32 s7, {GMAGIC}")
    a(f"v_lshl_add_u32 v12, v{LANE}, 16, s4")
    a("v_add_u32 v13, 0x10000, v12")
    a("v_mul_hi_u32 v12, v12, s7"); a("v_mul_hi_u32 v13, v13, s7")
    a("v_lshrrev_b32 v12, 7, v12"); a("v_lshrrev_b32 v13, 7, v13")
    a("v_min_u32 v13, 25000, v13")
    a(f"s_mov_b32 s4, s{S_W}"); a("s_add_u32 s5, s4, 8")
    a("v_readlane_b32 s3, v12, 0"); a(f"v_readlane_b32 s{S_CA}, v13, s4")
    a(f"v_readlane_b32 s{S_NA}, v12, s4"); a(f"v_readlane_b32 s{S_NB}, v12, s5"); a(f"v_readlane_b32 s{S_CB}, v13, s5")
    a(f"v_mul_u32_u24 v14, 384, v{LANE}")
    a("s_lshl_b32 s3, s3, 7"); a(f"s_sub_u32 s3, {L_REC}, s3")
    a(f"v_lshl_add_u32 v{CURB}, v12, 7, v14"); a(f"v_add_u32 v{CURB}, s3, v{CURB}")
    a(f"v_lshl_add_u32 v{CURL}, v13, 7, v14"); a("s_add_u32 s3, s3, 384"); a(f"v_add_u32 v{CURL}, s3, v{CURL}")
    a(f"v_cmp_gt_u32 vcc, 16, v{LANE}")
    a(f"s_sub_u32 s{S_CB}, s{S_CB}, s{S_NB}"); a(f"s_sub_u32 s{S_CA}, s{S_CA}, s{S_NA}")
    a(f"v_cndmask_b32 v{CURB}, 0, v{CURB}, vcc")
    a(f"v_and_b32 v9, 31, v{LANE}")
    a(f"v_lshrrev_b32 v10, 5, v{LANE}")
    a(f"v_lshlrev_b32 v11, 4, v{LANE}")
    a(f"v_and_b32 v12, 7, v{LANE}")
    node_sel(a, f"v_cmp_gt_u32 vcc, 8, v{LANE}", 13, 14, 15)
    a("v_cmp_lt_u32 vcc, v12, v14")
    a(f"v_cmp_gt_u32 s[60:61], 16, v{LANE}")
    a("v_add_u32 v13, v13, v12"); a("v_mov_b32 v14, 0x7fff")
    a("s_and_b64 vcc, vcc, s[60:61]")
    a(f"v_cndmask_b32 v{PIX}, v14, v13, vcc")
    a(f"v_mul_u32_u24 v{D2}, 6, v{PIX}")
    srd(a, S_POS, 34, 35, 0, 150000)
    N1 = NC
    a("v_and_b32 v12, 3, v9"); a("v_bfe_u32 v13, v9, 3, 1"); a("v_lshl_or_b32 v12, v13, 2, v12")
    node_sel(a, "v_cmp_gt_u32 vcc, 16, v9", 13, 14, 15)
    a("v_and_b32 v15, 4, v9"); a("v_lshl_or_b32 v15, v15, 1, v12")
    a("v_cmp_lt_u32 vcc, v15, v14")
    a("v_add_u32 v13, v13, v12"); a("v_lshlrev_b32 v13, 7, v13"); a("v_lshl_add_u32 v13, v10, 4, v13")
    a(f"v_mov_b32 v14, {hex(HUGE)}")
    a(f"v_cndmask_b32 v{S8}, v14, v13, vcc")
    srd(a, S_H, 32, 33, 0, 3200000)
    srd(a, 56, 42, 43, 0, 133 * 128)
    srd(a, 40, 46, 47, 0, 128 * 128)
    srd(a, S_POSF, 52, 53, WS_POSF, 25000, stride=16)
    srd(a, S_REC, 52, 53, 0, WS_GRAN + 256 * 4096)
    if opt("tlb", 0):
        srd(a, S_OUT, 48, 49, 0, 3350000)
        srd(a, S_WX, 52, 53, 0, WS_POSF + 400000)
        a(f"s_cmp_lg_u32 s{S_W}, 5"); a("s_cbranch_scc1 K_NOTLB")
        a(f"v_lshlrev_b32 v12, {opt('tlb', 0)}, v{LANE}")
        a(f"buffer_load_dword v{PD}, v12, {sr(S_WX,4)}, 0 offen")
        a(f"buffer_load_dword v{PD}, v12, {sr(S_H,4)}, 0 offen")
        a(f"buffer_load_dword v{PD}, v12, {sr(S_OUT,4)}, 0 offen")
        a("K_NOTLB:")
    a("v_mov_b32 v14, 12")
    a(f"s_mul_i32 s54, s2, {CHS}")
    for g in range(2):
        a(f"s_waitcnt vmcnt({N1 + 7 - g})")
        if g == 0: stamp(a, 1)
        if g == 1: a("s_mov_b64 exec, s[62:63]")
        for k in range(4):
            i = 4*g + k
            a(f"v_mul_u32_u24 v{48+i}, {hex(GMUL)}, v{16+i}")
            a(f"v_lshrrev_b32 v{56+i}, 18, v{48+i}")
            a(f"v_and_b32 v{56+i}, 0x3fc, v{56+i}")
            a(f"ds_add_rtn_u32 v{64+i}, v{56+i}, v14 offset:{L_HIST}")
    a("s_mov_b64 exec, -1")
    for j in range(3): a(f"buffer_load_ushort v{RW+8+j}, v{D2}, {sr(S_POS,4)}, 0 offen offset:{2*j}")
    a(f"buffer_load_dword v{RW+12}, v{ZERO}, {sr(S_ACC,4)}, 0 offen sc0 sc1")
    for s in range(4): a(f"buffer_load_dwordx4 {vr(A1+4*s,4)}, v{S8}, {sr(S_H,4)}, 0 offen offset:{32*s}")
    N1 += 8
    if opt("wpf", 0):
        a("s_lshr_b32 s4, s2, 3"); a("s_lshl_b32 s4, s4, 10"); a("s_and_b32 s5, s4, 0x3fff")
        a(f"s_cmp_lg_u32 s{S_W}, 6"); a("s_cbranch_scc1 K_NOWPF")
        a(f"buffer_load_dwordx4 {vr(PD,4)}, v11, s[56:59], s4 offen")
        a(f"buffer_load_dwordx4 {vr(PD,4)}, v11, s[40:43], s5 offen")
        a("K_NOWPF:")
    a("s_mov_b32 s6, 400016")
    for i in range(8):
        a(f"v_and_b32 v{16+i}, 0xffff, v{48+i}")
        a(f"v_mul_hi_u32 v{16+i}, v{16+i}, s6")
        a(f"v_bfe_u32 v{48+i}, v{48+i}, 16, 4")
        a(f"v_lshlrev_b32 v{16+i}, 3, v{16+i}")
        a(f"v_lshl_or_b32 v{16+i}, v{48+i}, 24, v{16+i}")
    a("s_waitcnt lgkmcnt(0)")
    a("s_barrier")
    stamp(a, 2)
    a(f"ds_read_b128 v[72:75], v11 offset:{L_HIST}")
    a(f"s_lshl_b32 s4, s{S_W}, 8")
    a(f"v_lshl_add_u32 v15, v{LANE}, 2, s4")
    a(f"ds_read_b32 v76, v15 offset:{L_HIST}")
    a("s_waitcnt lgkmcnt(1)")
    a("v_add_u32 v49, v72, v73"); a("v_add_u32 v50, v49, v74"); a("v_add_u32 v51, v50, v75")
    a("v_mov_b32 v52, v51")
    for sh in (1, 2, 4, 8): a(f"v_add_u32_dpp v52, v52, v52 row_shr:{sh} row_mask:0xf bank_mask:0xf bound_ctrl:0")
    a("v_add_u32_dpp v52, v52, v52 row_bcast:15 row_mask:0xa bank_mask:0xf")
    a("v_add_u32_dpp v52, v52, v52 row_bcast:31 row_mask:0xc bank_mask:0xf")
    a("v_sub_u32 v52, v52, v51"); a("v_add_u32 v53, v52, v72"); a("v_add_u32 v54, v52, v49"); a("v_add_u32 v55, v52, v50")
    a(f"ds_write_b128 v11, v[52:55] offset:{L_OFFS}")
    a("s_waitcnt lgkmcnt(0)")
    for i in range(8): a(f"ds_read_b32 v{48+i}, v{56+i} offset:{L_OFFS}")
    a(f"ds_read_b32 v77, v15 offset:{L_OFFS}")
    a(f"s_waitcnt vmcnt({N1 + 4})")
    for i in range(8): a(f"v_lshl_or_b32 v{16+i}, v{24+i}, 7, v{16+i}")
    a("s_waitcnt lgkmcnt(0)")
    for i in range(8): a(f"v_add_u32 v{48+i}, v{48+i}, v{64+i}")
    a("v_lshl_or_b32 v76, v76, 16, v77")
    for g in range(2):
        if g == 1: a("s_mov_b64 exec, s[62:63]")
        for k in range(4): a(f"ds_write_b32 v{48+4*g+k}, v{16+4*g+k} offset:{L_STG+8}")
        for k in range(4): a(f"v_add_u32 v{56+4*g+k}, {L_STG}, v{48+4*g+k}")
        a(f"s_waitcnt vmcnt({N1 + 2 - 2*g})")
        for k in range(4):
            i = 4*g + k
            a(f"ds_write2_b32 v{56+i}, v{32+2*i}, v{33+2*i} offset0:0 offset1:1")
    a("s_mov_b64 exec, -1")
    N2 = 9
    a(f"v_cmp_gt_u32 vcc, {CHS//16 - 2048}, v0")
    a(f"v_mov_b32 v12, {hex(HUGE)}")
    a("v_cndmask_b32 v12, v12, v8, vcc")
    a("s_waitcnt vmcnt(5)")
    for j in range(3): a(f"v_lshlrev_b32 v{68+j}, 16, v{RW+8+j}")
    a("v_mov_b32 v71, 0")
    a("s_mov_b64 exec, 0xffff")
    a(f"buffer_store_dwordx4 v[68:71], v{PIX}, {sr(S_POSF,4)}, 0 idxen sc1")
    a("s_mov_b64 exec, -1")
    a("s_movk_i32 s4, 0x2000")
    a(f"buffer_load_dwordx4 {vr(RW,4)}, v8, {sr(56,4)}, s4 offen")
    a("s_movk_i32 s4, 0x4000")
    a(f"buffer_load_dwordx4 {vr(RW+4,4)}, v11, {sr(56,4)}, s4 offen")
    a(f"s_lshl_b32 s5, s{S_W}, 10")
    a(f"s_add_u32 m0, s5, {L_WF + 8192}"); a("s_nop 0")
    a(f"buffer_load_dwordx4 v8, {sr(56,4)}, 0 offen lds")
    a(f"s_add_u32 m0, s5, {L_WH}"); a("s_nop 0")
    a(f"buffer_load_dwordx4 v8, s[40:43], 0 offen lds")
    a(f"s_add_u32 m0, s5, {L_WH + 8192}"); a("s_movk_i32 s4, 0x2000")
    a(f"buffer_load_dwordx4 v8, s[40:43], s4 offen lds")
    stamp(a, 3)
    a("s_waitcnt lgkmcnt(0)")
    a("s_barrier")
    if opt("cprio", 1): a("s_setprio 3")
    for j in range(5): a(f"ds_read_b128 {vr(16+4*j,4)}, v8 offset:{L_STG + 8192*j}")
    for j in range(5):
        a(f"s_waitcnt lgkmcnt({4-j})")
        a(f"buffer_store_dwordx4 {vr(16+4*j,4)}, v{8 if j < 4 else 12}, {sr(S_REC,4)}, s54 offen {opt('stp', 'sc1').replace('+', ' ')}")
        if j < 4: a("s_add_u32 s54, s54, 8192")
    if opt("cprio", 1): a("s_setprio 0")
    stamp(a, 4)
    cursor_init(a)
    if EARLY:
        a(f"v_readlane_b32 s4, v{CURB}, s{S_W}"); a("v_mov_b32 v12, -1"); a("v_add_u32 v13, s4, v13")
        a("ds_write_b32 v13, v12")
    a(f"s_mov_b32 s{S_LO}, -1"); a(f"s_mov_b32 s{S_LO+1}, 0"); a(f"s_mov_b32 s{S_HI}, 0"); a(f"s_mov_b32 s{S_HI+1}, -1")
    a(f"s_lshl_b32 s{S_TBLA}, s{S_W}, 8"); a(f"s_add_u32 s{S_TBLA}, s{S_TBLA}, {L_TBL}"); a(f"s_add_u32 s{S_TBLB}, s{S_TBLA}, 2048")
    a(f"v_and_b32 v12, 7, v{LANE}"); a("v_lshrrev_b32 v13, 1, v12"); a("v_and_b32 v14, 1, v12"); a("v_lshlrev_b32 v14, 4, v14")
    a("v_mov_b32 v60, 0x3f80"); a("v_lshlrev_b32 v14, v14, v60")
    for j in range(4):
        a(f"v_cmp_eq_u32 vcc, {j}, v13"); a(f"v_cndmask_b32 v{48+j}, 0, v14, vcc")
    a(f"v_bfe_u32 v13, v{LANE}, 3, 1"); a("v_lshlrev_b32 v13, 11, v13"); a("v_lshl_add_u32 v13, v12, 4, v13")
    a(f"v_add_u32 v{TMP}, s{S_TBLA}, v13")
    a("s_mov_b64 exec, 0xffff"); a(f"ds_write_b128 v{TMP}, v[48:51]"); a(f"ds_write_b128 v{TMP}, v[68:71] offset:128"); a("s_mov_b64 exec, -1")
    srd(a, S_OUT, 48, 49, 0, 3350000)
    srd(a, S_WX, 44, 45, 0, 128)
    a(f"s_mov_b32 s{S_GM}, 0x3fff80")
    a(f"s_lshl_b32 s{S_GB}, s{S_W}, 13"); a(f"s_add_u32 s{S_GB}, s{S_GB}, {L_GB}")
    a(f"s_mov_b32 s{S_WIN}, {32*12}"); a(f"s_mov_b32 s{S_ROUND}, 1"); a(f"s_mov_b32 s{S_PADB}, {L_PAD}"); a(f"s_mov_b32 s{S_PADE}, {L_PAD+128}")
    a(f"s_lshl_b32 s{S_ACCO}, s2, 3"); a(f"s_add_u32 s{S_ACCO}, s{S_ACCO}, s{S_W}"); a(f"s_lshl_b32 s{S_ACCO}, s{S_ACCO}, 14")
    a(f"s_mul_i32 s{S_SEG}, s{S_W}, {32*CHS}")
    a(f"v_mov_b32 v{FOUR}, 4")
    a(f"v_mul_u32_u24 v{I12}, 12, v9"); a(f"v_mul_u32_u24 v{I12H}, {CHS}, v10"); a(f"v_add_u32 v{I12H}, v{I12H}, v{I12}")
    a(f"v_lshlrev_b32 v{BPX}, 2, v10")
    a(f"s_lshl_b32 s4, s{S_W}, 11"); a(f"s_add_u32 s4, s4, {L_IMG}")
    for j in range(4): a(f"v_mov_b32 v{48+j}, 0")
    a("v_add_u32 v12, s4, v11")
    a("ds_write_b128 v12, v[48:51]"); a("ds_write_b128 v12, v[48:51] offset:1024")
    a(f"v_lshl_add_u32 v{IMGB}, v9, 6, s4")
    a(f"v_bfe_u32 v12, v{LANE}, 2, 2"); a("v_lshl_add_u32 v12, v10, 2, v12"); a("v_lshlrev_b32 v12, 6, v12")
    a(f"v_bfe_u32 v13, v{LANE}, 4, 1"); a("v_lshl_add_u32 v12, v13, 5, v12")
    a(f"v_and_b32 v13, 3, v{LANE}"); a("v_lshl_add_u32 v12, v13, 3, v12")
    a(f"v_add_u32 v{TRA}, s4, v12")
    a(f"v_and_b32 v12, 7, v{LANE}"); a(f"v_bfe_u32 v13, v{LANE}, 4, 1"); a("v_lshlrev_b32 v13, 2, v13"); a("v_xor_b32 v12, v12, v13")
    for j in range(4):
        a(f"v_xor_b32 v13, {j}, v12"); a(f"v_lshlrev_b32 v{COLC+j}, 4, v13")
    a("v_and_b32 v12, 3, v9"); a("v_lshrrev_b32 v13, 2, v9"); a("v_lshl_add_u32 v13, v12, 3, v13"); a("v_lshlrev_b32 v13, 7, v13")
    a(f"v_add_u32 v13, s{S_GB}, v13")
    a("v_bfe_u32 v14, v9, 3, 1"); a("v_lshl_or_b32 v12, v14, 2, v12"); a("v_xor_b32 v12, v12, v10")
    for s in range(4):
        a(f"v_xor_b32 v14, {2*s}, v12"); a(f"v_lshl_add_u32 v{RDA+s}, v14, 4, v13")
    a(f"v_lshrrev_b32 v12, 3, v{LANE}"); a(f"v_lshlrev_b32 v{LANEQ}, 4, v12"); a(f"v_lshlrev_b32 v{LANEE}, 2, v9")
    a(f"v_mov_b32 v12, {hex(PADW)}"); a(f"v_add_u32 v13, s{S_PADB}, v{LANEE}")
    a("ds_write_b32 v13, v12"); a(f"ds_write2st64_b32 v13, v{ZERO}, v{ZERO} offset0:{PO1} offset1:{PO2}")
    a(f"v_mov_b32 v{XR+3}, 0")
    a(f"s_mov_b32 s4, {hex(NLOG2E)}"); a("s_mov_b32 s5, s4")
    a("s_waitcnt vmcnt(8)")
    for j in range(8):
        a(f"v_lshlrev_b32 v{32+2*j}, 16, v{RW+j}"); a(f"v_and_b32 v{33+2*j}, 0xffff0000, v{RW+j}")
    for j in range(8): a(f"v_pk_mul_f32 {vr(32+2*j,2)}, {vr(32+2*j,2)}, s[4:5]")
    for j in range(8): a(f"v_cvt_pk_bf16_f32 v{48+j}, v{32+2*j}, v{33+2*j}")
    a(f"v_add_u32 v16, {L_WF}, v8")
    a("ds_write_b128 v16, v[48:51]")
    for j in range(4):
        a(f"v_lshlrev_b32 v{56+2*j}, 16, v{52+j}"); a(f"v_and_b32 v{57+2*j}, 0xffff0000, v{52+j}")
    for j in range(4): a(f"v_pk_add_f32 {vr(56+2*j,2)}, {vr(40+2*j,2)}, {vr(56+2*j,2)} neg_lo:[0,1] neg_hi:[0,1]")
    for j in range(4): a(f"v_cvt_pk_bf16_f32 v{56+j}, v{56+2*j}, v{57+2*j}")
    a(f"v_add_u32 v16, {L_WF + 16384 - 128}, v11")
    a(f"v_add_u32 v17, {L_WF + 16384 + 512}, v11")
    a("s_mov_b64 exec, 0xff")
    a("ds_write_b128 v17, v[52:55]"); a("ds_write_b128 v17, v[56:59] offset:128")
    a("s_mov_b32 s6, 0xffffff00"); a("s_mov_b32 s7, 0xff0000ff"); a("s_mov_b64 exec, s[6:7]")
    a("ds_write_b128 v16, v[52:55]")
    a("s_mov_b32 s6, 0"); a("s_mov_b32 s7, 0xff000000"); a("s_mov_b64 exec, s[6:7]")
    a("ds_write_b128 v16, v[52:55] offset:128")
    a("s_mov_b64 exec, -1")
    a(f"v_bfe_u32 v18, v{LANE}, 2, 2"); a("v_lshlrev_b32 v16, 7, v18")
    a(f"v_bfe_u32 v18, v{LANE}, 4, 1"); a("v_lshl_add_u32 v16, v18, 5, v16")
    a(f"v_and_b32 v18, 3, v{LANE}"); a("v_lshl_add_u32 v16, v18, 3, v16")
    a(f"v_add_u32 v{VAL}, {L_WF + 16384}, v16")
    a("v_lshl_add_u32 v16, v10, 10, v16"); a(f"v_add_u32 v{VAL+1}, {L_WF}, v16")
    a("s_mov_b32 s5, 200000")
    a("s_memrealtime s[6:7]")
    a("s_waitcnt lgkmcnt(0)")
    a("K_EPW:")
    a(f"v_readfirstlane_b32 s4, v{RW+12}")
    a("s_sub_u32 s7, s6, s4"); a("s_add_u32 s7, s7, 100000")
    a("s_cmp_eq_u32 s4, 0"); a("s_cselect_b32 s7, -1, s7")
    a("s_cmp_lt_u32 s7, 200000"); a("s_cbranch_scc1 K_EPOK")
    a("s_cmp_eq_u32 s4, 0"); a("s_cselect_b32 s7, 1, 64")
    a("s_sub_u32 s5, s5, s7"); a("s_cbranch_scc1 K_EPOK")
    a(f"buffer_load_dword v{RW+12}, v{ZERO}, {sr(S_ACC,4)}, 0 offen sc0 sc1")
    a("s_waitcnt vmcnt(0)")
    a("s_branch K_EPW")
    a("K_EPOK:")
    srd(a, S_ACC, 52, 53, WS_ACC, 256 * 8 * 16384)
    a(f"v_mov_b32 v77, v{RW+12}")
    a("s_lshl_b32 s3, s2, 12"); a(f"s_add_u32 s3, s3, {hex(WS_GRAN)}")
    a("v_lshlrev_b32 v15, 2, v15")
    a(f"s_mov_b32 s4, {hex(TAGK)}")
    a("v_not_b32 v79, v77"); a(f"v_xor_b32 v{PS+2}, s4, v77"); a(f"v_xor_b32 v78, v76, v{PS+2}")
    a(f"v_mov_b32 v{PS}, v77"); a(f"v_mov_b32 v{PS+1}, v79")
    a(f"v_lshlrev_b32 v{IMGA}, 12, v9")
    a(f"s_lshl_b32 s5, s{S_W}, 17"); a(f"s_lshl_b32 s6, s{S_B}, 4"); a("s_add_u32 s5, s5, s6"); a(f"s_add_u32 s{S_T3}, s5, {hex(WS_GRAN)}")
    a("s_waitcnt vmcnt(0) lgkmcnt(0)")
    stamp(a, 5)
    a("s_barrier")
    a(f"s_cmp_ge_u32 s{S_W}, 4")
    a("s_cbranch_scc1 K_NOPUB")
    a(f"buffer_store_dwordx4 v[76:79], v15, {sr(S_REC,4)}, s3 offen sc1")
    a("K_NOPUB:")
    HPF = opt("hpf", 0)
    if HPF:
        a("s_lshr_b32 s3, s2, 3"); a("s_mul_i32 s3, s3, 100000")
        for k in range(HPF):
            a(f"buffer_load_dwordx4 {vr(PD,4)}, v8, {sr(S_H,4)}, s3 offen")
            a("s_add_u32 s3, s3, 8192")
    WT = ACCB0
    for f in range(8):
        for kk in range(2): a(f"ds_read_b64_tr_b16 {vr(WT+4*f+2*kk,2)}, v{VAL+1} offset:{8192 + (f&3)*2048 + kk*512 + (f>>2)*64}")
    a("s_waitcnt lgkmcnt(8)")
    for s in range(4): a(mfma32(ACCA0, A1+4*s, WT + 4*s, 0 if s == 0 else None))
    for nh, b in ((0, BXA0), (1, BXA1), (0, BXB0), (1, BXB1)):
        for kk in range(2): a(f"ds_read_b64_tr_b16 {vr(b+2*kk,2)}, v{VAL} offset:{kk*512 + nh*64}")
    a("s_waitcnt lgkmcnt(8)")
    for s in range(4): a(mfma32(ACCA1, A1+4*s, WT + 16 + 4*s, 0 if s == 0 else None))
    a("s_waitcnt lgkmcnt(0)")
    for f in range(8):
        for kk in range(2): a(f"ds_read_b64_tr_b16 {vr(W2F+4*f+2*kk,2)}, v{VAL+1} offset:{(f&3)*2048 + kk*512 + (f>>2)*64}")
    a(f"s_mov_b32 s4, {hex(NLOG2E)}"); a("s_mov_b32 s5, s4")
    a(f"s_mov_b64 exec, {sr(S_LO,2)}")
    for nh, d, ba, bb in ((0, ACCA0, BXA0, BXB0), (1, ACCA1, BXA1, BXB1)):
        for j in range(8): a(f"v_pk_mul_f32 {vr(d+2*j,2)}, {vr(d+2*j,2)}, s[4:5]")
        for j in range(4):
            a(f"v_cvt_pk_bf16_f32 v{ba+j}, v{d+2*j}, v{d+2*j+1}")
            a(f"v_cvt_pk_bf16_f32 v{bb+j}, v{d+8+2*j}, v{d+8+2*j+1}")
    a("s_mov_b64 exec, -1")
    for i in range(64): a(f"v_mov_b32 v{ACCA0+i}, 0")
    stamp(a, 22)
    a(f"v_and_b32 v12, 7, v{LANE}"); a(f"v_and_b32 v13, 8, v{LANE}")
    node_sel(a, "v_cmp_eq_u32 vcc, 0, v13", 13, 14, 15)
    a("v_cmp_lt_u32 vcc, v12, v14")
    a("v_add_u32 v13, v13, v12"); a("v_lshlrev_b32 v13, 7, v13")
    a(f"v_lshrrev_b32 v14, 4, v{LANE}"); a("v_lshl_add_u32 v13, v14, 5, v13")
    a(f"v_mov_b32 v15, {hex(HUGE)}")
    a(f"v_cndmask_b32 v{HA}, v15, v13, vcc")
    a(f"v_bfe_u32 v12, v{LANE}, 2, 2"); a(f"v_lshrrev_b32 v13, 5, v{LANE}"); a("v_lshl_add_u32 v12, v12, 1, v13")
    a(f"v_and_b32 v13, 16, v{LANE}")
    node_sel(a, "v_cmp_eq_u32 vcc, 0, v13", 13, 14, 15)
    a("v_cmp_lt_u32 vcc, v12, v14")
    a("v_add_u32 v13, v13, v12"); a("v_mul_u32_u24 v13, 6, v13")
    a(f"v_and_b32 v14, 3, v{LANE}"); a("v_lshl_add_u32 v13, v14, 1, v13")
    a(f"v_cmp_gt_u32 {sr(S_T0,2)}, 3, v14")
    a(f"v_mov_b32 v15, {hex(HUGE)}")
    a(f"s_and_b64 vcc, vcc, {sr(S_T0,2)}")
    a(f"v_cndmask_b32 v{PA}, v15, v13, vcc")
    VL = S8
    a(f"v_mov_b32 v{SW}, 0"); a("v_mov_b32 v0, 0"); a(f"v_mov_b32 v{VL}, 0")
    a(f"s_mov_b32 s{S_PEND}, -1"); a(f"s_mov_b32 s{S_PEND+1}, 0"); a(f"s_mov_b32 s{S_LEFT}, 0")
    a(f"s_mov_b32 s{S_SPIN}, {opt('spin', 200000)}")
    a(f"s_mov_b32 s{S_SUB}, 0")
    a("s_waitcnt lgkmcnt(0)")
    if EARLY: a("s_barrier")
    if opt("pdel", 0): a(f"s_sleep {opt('pdel', 0)}")
    a("K_POLL:")
    a(f"s_mov_b64 exec, {sr(S_PEND,2)}")
    a(f"buffer_load_dwordx4 {vr(PD,4)}, v{IMGA}, {sr(S_REC,4)}, s{S_T3} offen sc1")
    a("s_waitcnt vmcnt(0)")
    a(f"v_xor_b32 v{PD+2}, v{PD}, v{PD+2}")
    a(f"v_cmp_eq_u32 vcc, v{PD+1}, v{PS}"); a(f"v_cmp_eq_u32 s[60:61], v{PD+3}, v{PS+1}"); a(f"v_cmp_eq_u32 s[58:59], v{PD+2}, v{PS+2}")
    a("s_and_b64 vcc, vcc, s[60:61]"); a("s_and_b64 vcc, vcc, s[58:59]")
    a(f"v_cndmask_b32 v{SW}, v{SW}, v{PD}, vcc")
    a(f"v_cndmask_b32 v0, v0, v{PD}, vcc")
    a("s_mov_b64 exec, -1")
    a(f"s_andn2_b32 s{S_PEND}, s{S_PEND}, vcc_lo")
    a("s_cbranch_scc0 K_ALLIN")
    a(f"s_bcnt1_i32_b32 s4, s{S_PEND}")
    a(f"s_cmp_le_u32 s4, {opt('pth', 0)}")
    a("s_cbranch_scc0 K_PWAIT")
    a("v_cmp_ne_u32 vcc, 0, v0")
    a("s_cmp_lg_u32 vcc_lo, 0")
    a("s_cbranch_scc1 K_ROUND")
    a("K_PWAIT:")
    a(f"s_sub_u32 s{S_SPIN}, s{S_SPIN}, 1")
    a(f"s_cmp_eq_u32 s{S_SPIN}, 0")
    a(f"s_cselect_b32 s{S_PEND}, 0, s{S_PEND}")
    a("s_cbranch_scc1 K_ALLIN")
    if opt("slp", 0): a(f"s_sleep {opt('slp', 0)}")
    a("s_branch K_POLL")
    a("K_ALLIN:")
    if STAMP and STAMP != 4: a(f"v_writelane_b32 v255, s{S_SPIN}, 15")
    stamp(a, 6)
    a("s_branch K_ROUND")
    a("K_RESET:")
    a(f"s_mov_b32 s{S_SPIN}, -1")
    cursor_init(a)
    a(f"v_mov_b32 v0, v{SW}")
    a(f"s_mov_b32 s{S_SUB}, 1")
    a("s_waitcnt lgkmcnt(0)")
    a("s_barrier")
    a("K_ROUND:")
    for p in range(16): a(f"ds_bpermute_b32 v{16+4*p+3}, v{BPX}, v0 offset:{8*p}")
    a(f"s_mov_b32 s3, s{S_SEG}")
    for p in range(16):
        r = 16 + 4*p
        a(f"s_waitcnt lgkmcnt({15-p})")
        a(f"v_cmp_lt_u32_sdwa {sr(S_MASK+2*p,2)}, v{I12}, v{r+3} src0_sel:DWORD src1_sel:WORD_1")
        a(f"v_add_u32_sdwa v{r+3}, v{r+3}, v{I12H} dst_sel:DWORD dst_unused:UNUSED_PAD src0_sel:WORD_0 src1_sel:DWORD")
        a(f"s_or_b64 exec, {sr(S_MASK+2*p,2)}, 1")
        a(f"buffer_load_dwordx3 {vr(r,3)}, v{r+3}, {sr(S_REC,4)}, s3 offen {opt('ldp', 'sc1').replace('+', ' ')}")
        a("s_mov_b64 exec, -1")
        a(f"s_add_u32 s3, s3, {2*CHS}")
    stamp(a, 7)
    a("v_lshrrev_b32 v12, 16, v0")
    a(f"v_cmp_lt_u32 vcc, s{S_WIN}, v12")
    a(f"v_min_u32 v12, s{S_WIN}, v12")
    a("v_add_u32 v0, v0, v12"); a("v_lshlrev_b32 v12, 16, v12"); a("v_sub_u32 v0, v0, v12")
    a(f"s_mov_b32 s{S_MORE}, vcc_lo")
    a(f"v_cndmask_b32 v{VL}, v{VL}, v0, vcc")
    for p in range(16):
        r = 16 + 4*p
        a(f"s_waitcnt vmcnt({15-p + min(p, NPF)})")
        a(f"s_mov_b64 exec, {sr(S_MASK+2*p,2)}")
        a(f"v_bfe_u32 v{r+3}, v{r+2}, 22, 6")
        a(f"ds_add_rtn_u32 v{r+3}, v{r+3}, v{FOUR}")
        if p < NPF:
            a(f"v_and_b32 v{ADQ}, s{S_GM}, v{r+2}")
            a(f"s_or_b64 exec, {sr(S_MASK+2*p,2)}, 1")
            a(f"buffer_load_dword v{S16}, v{ADQ}, {sr(S_H,4)}, 0 offen")
        if p % 4 == 3:
            a("s_waitcnt lgkmcnt(0)")
            for q in range(p-3, p+1):
                rq = 16 + 4*q
                a(f"s_mov_b64 exec, {sr(S_MASK+2*q,2)}")
                a(f"ds_write_b32 v{rq+3}, v{rq+2}")
                a(f"ds_write2st64_b32 v{rq+3}, v{rq}, v{rq+1} offset0:{PO1} offset1:{PO2}")
    a("s_mov_b64 exec, -1")
    a(f"s_cmp_lg_u32 s{S_SUB}, 0")
    a("s_cbranch_scc1 K_LAST")
    a(f"s_or_b32 s{S_LEFT}, s{S_LEFT}, s{S_MORE}")
    a("v_mov_b32 v0, 0")
    a(f"s_cmp_lg_u32 s{S_PEND}, 0")
    a("s_cbranch_scc1 K_POLL")
    a(f"s_cmp_eq_u32 s{S_LEFT}, 0")
    a("s_cbranch_scc1 K_BINNED")
    a(f"v_mov_b32 v0, v{VL}")
    a(f"s_mov_b32 s{S_SUB}, 1")
    a("s_branch K_ROUND")
    a("K_LAST:")
    a(f"s_cmp_eq_u32 s{S_MORE}, 0")
    a("s_cbranch_scc1 K_BINNED")
    a(f"v_mov_b32 v13, {L_FLAG}")
    a(f"ds_write_b32 v13, v{FOUR}")
    a("K_BINNED:")
    stamp(a, 8)
    if not HBL:
        a(f"buffer_load_dwordx4 {vr(HB,4)}, v{HA}, {sr(S_H,4)}, 0 offen")
        a(f"buffer_load_dwordx4 {vr(HB+4,4)}, v{HA}, {sr(S_H,4)}, 0 offen offset:16")
        a(f"v_lshrrev_b32 v16, 1, v{LANEE}")
        a(f"buffer_load_ushort v{WX0}, v16, {sr(S_WX,4)}, 0 offen")
        a(f"buffer_load_ushort v{WX1}, v16, {sr(S_WX,4)}, 0 offen offset:64")
        a(f"buffer_load_ushort v{PV}, v{PA}, {sr(S_POS,4)}, 0 offen")
    for j in range(4): srd(a, S_HJ+4*j, S_H, S_H+1, -1024*j, 3200000 + 1024*j)
    for i in range(16): a(f"v_mov_b32 v{MP+i}, 0")
    a(f"v_lshlrev_b32 v17, 2, v{LANE}")
    a(f"s_mov_b32 s4, s{S_W}"); a("s_add_u32 s5, s4, 8")
    a("s_xor_b32 s48, s4, 4"); a("s_xor_b32 s49, s5, 4")
    a(f"v_readlane_b32 s{S_NEXT}, v{CURB}, s4"); a(f"v_readlane_b32 s{S_JUMP}, v{CURB}, s5")
    a(f"v_mov_b32 v19, {hex(PADW)}")
    a(f"s_mov_b32 s{S_TBL}, s{S_TBLA}")
    WQ2 = 20
    if EARLY:
        a(f"s_mov_b32 s{S_EARLY}, 0")
        a(f"s_cmp_lg_u32 s{S_SPIN}, -1"); a("s_cbranch_scc0 K_NOEARLY")
        a(f"v_add_u32 v18, s{S_NEXT}, v17")
        a("ds_read_b32 v16, v18")
        a(f"v_add_u32 v{ADQ}, s{S_NEXT}, v{LANEQ}"); a(f"v_add_u32 v{ADE}, s{S_NEXT}, v{LANEE}"); a(f"v_add_u32 v{ADE+1}, 128, v{ADE}")
        a(f"ds_read_b128 {vr(WQ2,4)}, v{ADQ}"); a(f"ds_read_b32 v{W2E}, v{ADE}")
        a(f"ds_read_b128 {vr(WQ,4)}, v{ADQ} offset:128"); a(f"ds_read_b32 v{W2E+1}, v{ADE+1}")
        a("s_waitcnt lgkmcnt(4)")
        a("v_cmp_ne_u32 vcc, -1, v16")
        a("s_cmp_eq_u64 vcc, -1"); a("s_cbranch_scc0 K_NOEARLY")
        a(f"s_mov_b32 s{S_EARLY}, 1")
        a("s_waitcnt lgkmcnt(0)")
        for t in g_addr(WQ2) + g_m0(0) + ["s_nop 0"]: a(t)
        for t in g_dma(WQ2): a(t)
        a(f"v_bfe_u32 v{PIX}, v{W2E}, 7, 15"); a(f"v_mul_u32_u24 v{PIX}, 6, v{PIX}")
        for k in range(3): a(f"v_mov_b32 v{PS+k}, 0")
        a(f"s_mov_b64 exec, {sr(S_HI,2)}")
        for k in range(3): a(f"buffer_load_short_d16_hi v{PS+k}, v{PIX}, {sr(S_POS,4)}, 0 offen offset:{2*k}")
        a("s_mov_b64 exec, -1")
        if not G1P:
            for t in g_addr() + g_m0(1) + ["s_nop 0"] + g_dma(): a(t)
        a("K_NOEARLY:")
    a("s_waitcnt lgkmcnt(0)")
    a("s_barrier")
    if EARLY and G1P:
        a(f"s_cmp_eq_u32 s{S_EARLY}, 0"); a("s_cbranch_scc1 K_NOG1")
        for t in g_addr() + g_m0(1) + ["s_nop 0"] + g_dma(): a(t)
        a("K_NOG1:")
    stamp(a, 19)
    a("ds_read_b32 v16, v17")
    a("s_waitcnt lgkmcnt(0)")
    a(f"v_cmp_gt_u32 vcc, v16, v{CURL}")
    a(f"v_sub_u32 v18, v16, v{CURB}"); a("v_add_u32 v18, 127, v18"); a("v_lshrrev_b32 v18, 7, v18")
    a("v_med3_u32 v18, v18, 1, 10")
    a(f"v_sub_u32 v24, v16, v{CURB}"); a(f"v_add_u32 v24, {opt('fq', 64)}, v24"); a("v_lshrrev_b32 v24, 5, v24")
    a(f"v_readlane_b32 s{S_T0}, v16, s4"); a(f"v_readlane_b32 s{S_T1}, v16, s5"); a(f"v_readlane_b32 s{S_MORE}, v16, 16")
    a(f"v_readlane_b32 s{S_REM}, v18, s4"); a(f"v_readlane_b32 s{S_TB}, v18, s5")
    a("v_readlane_b32 s50, v24, s48"); a("v_readlane_b32 s51, v24, s49")
    a("v_readlane_b32 s54, v24, s4"); a("v_readlane_b32 s55, v24, s5")
    a("s_and_b32 s6, vcc_lo, 0xffff")
    a("s_cbranch_scc0 K_FITS")
    a(f"s_cmp_le_u32 s{S_WIN}, 12")
    a("s_cbranch_scc1 K_FITS")
    a("s_barrier")
    a(f"s_lshr_b32 s{S_WIN}, s{S_WIN}, 1")
    a(f"v_mov_b32 v16, {hex(HUGE)}")
    a(f"v_cmp_gt_u32 vcc, s{S_WIN}, v{I12}")
    a(f"v_cndmask_b32 v{I12}, v16, v{I12}, vcc")
    a("s_waitcnt vmcnt(0)")
    a("s_branch K_RESET")
    a("K_FITS:")
    a(f"s_lshl_b32 s4, s{S_REM}, 7"); a(f"s_add_u32 s{S_END}, s4, s{S_NEXT}")
    a(f"s_lshl_b32 s5, s{S_TB}, 7"); a(f"s_add_u32 s{S_END2}, s5, s{S_JUMP}")
    G = 5 if opt("quart", 1) else 6
    for end, cur, d in ((S_END, S_T0, S_QA), (S_END2, S_T1, S_HB)):
        a(f"s_sub_u32 s4, s{end}, s{cur}"); a(f"s_lshr_b32 s4, s4, {G}"); a(f"s_lshl_b32 s4, s4, {G-3}")
        a(f"s_sub_u32 s{d}, 16, s4"); a(f"s_max_u32 s{d}, s{d}, {1 << (G-3)}")
    a(f"s_cmp_lt_u32 s{S_QA}, 16"); a(f"s_cselect_b32 s{S_HA}, 1, -1")
    for cur, end, m in ((S_T0, S_END, S_LO), (S_T1, S_END2, S_HI)):
        a(f"v_add_u32 v16, s{cur}, v{LANEE}")
        a(f"v_cmp_gt_u32 vcc, s{end}, v16")
        a(f"s_and_b64 exec, vcc, {sr(m,2)}")
        a("ds_write_b32 v16, v19")
        a(f"ds_write2st64_b32 v16, v{ZERO}, v{ZERO} offset0:{PO1} offset1:{PO2}")
        a("s_mov_b64 exec, -1")
    a(f"v_mov_b32 v{SW}, v0")
    a("s_add_u32 s50, s50, s51"); a("s_add_u32 s51, s54, s55")
    a(f"s_mul_i32 s50, s50, {opt('fa', 125)}"); a(f"s_mul_i32 s51, s51, {opt('fb', 51)}"); a("s_sub_i32 s50, s50, s51"); a(f"s_add_i32 s50, s50, {opt('fc', 128)}")
    a("s_ashr_i32 s50, s50, 9"); a("s_max_i32 s50, s50, 0")
    a("s_lshr_b32 s51, s50, 1")
    a(f"s_sub_i32 s{S_FLIP}, s{S_REM}, s51"); a(f"s_sub_i32 s{S_FLIP}, s{S_FLIP}, 1"); a(f"s_max_i32 s{S_FLIP}, s{S_FLIP}, 0")
    a(f"s_cmp_lt_u32 s{S_W}, 4"); a(f"s_cselect_b32 s{S_FLIP}, -1, s{S_FLIP}")
    a(f"s_mov_b32 s{S_FLIP2}, s{S_FLIP}")
    a("s_bitcmp1_b32 s50, 0"); a(f"s_cselect_b32 s{S_FLIP}, -1, s{S_FLIP}")
    if EARLY:
        a(f"s_cmp_eq_u32 s{S_EARLY}, 0"); a("s_cbranch_scc1 K_LATEG")
        a(f"s_add_u32 s{S_NEXT}, s{S_NEXT}, 128")
        for t in gstate(): a(t)
        a("s_branch K_GDONE")
        a("K_LATEG:")
    for t in g_reads(0, WQ2) + g_reads(1): a(t)
    a("s_waitcnt lgkmcnt(2)")
    if not EARLY: a(f"v_bfe_u32 v{PIX}, v{W2E}, 7, 15")
    for t in g_addr(WQ2) + g_m0(0) + ["s_nop 0"]: a(t)
    if not EARLY: a(f"s_mov_b64 exec, {sr(S_HI,2)}"); a(pos_gather()); a("s_mov_b64 exec, -1")
    for t in g_dma(WQ2): a(t)
    if EARLY:
        a(f"v_bfe_u32 v{PIX}, v{W2E}, 7, 15"); a(f"v_mul_u32_u24 v{PIX}, 6, v{PIX}")
        for k in range(3): a(f"v_mov_b32 v{PS+k}, 0")
        a(f"s_mov_b64 exec, {sr(S_HI,2)}")
        for k in range(3): a(f"buffer_load_short_d16_hi v{PS+k}, v{PIX}, {sr(S_POS,4)}, 0 offen offset:{2*k}")
        a("s_mov_b64 exec, -1")
    a("s_waitcnt lgkmcnt(0)")
    if opt("g1late", 0): a("s_barrier")
    for t in g_addr() + g_m0(1) + ["s_nop 0"] + g_dma(): a(t)
    a("K_GDONE:")
    if HBL:
        a(f"buffer_load_dwordx4 {vr(HB,4)}, v{HA}, {sr(S_H,4)}, 0 offen")
        a(f"buffer_load_dwordx4 {vr(HB+4,4)}, v{HA}, {sr(S_H,4)}, 0 offen offset:16")
        a(f"v_lshrrev_b32 v16, 1, v{LANEE}")
        a(f"buffer_load_ushort v{WX0}, v16, {sr(S_WX,4)}, 0 offen")
        a(f"buffer_load_ushort v{WX1}, v16, {sr(S_WX,4)}, 0 offen offset:64")
        a(f"buffer_load_ushort v{PV}, v{PA}, {sr(S_POS,4)}, 0 offen")
    stamp(a, 20)
    a(f"s_cmp_eq_u32 s{S_ROUND}, 1")
    a("s_cbranch_scc1 K_FILL2")
    a(f"v_lshlrev_b32 v16, 4, v{LANE}")
    a(f"s_mov_b32 s3, s{S_ACCO}")
    for i in range(16):
        a(f"buffer_load_dwordx4 {vr(ACCA0+4*i,4)}, v16, {sr(S_ACC,4)}, s3 offen offset:{(i%4)*1024} sc0 sc1")
        if i % 4 == 3: a("s_add_u32 s3, s3, 4096")
    a("s_waitcnt vmcnt(0)")
    a("K_FILL2:")
    for t in e_head(0): a(t)
    a(f"s_waitcnt vmcnt({9 if HBL else 4}) lgkmcnt(0)")
    stamp(a, 21)
    for t in a1_reads(0) + e_sect(0, zero=False) + g_reads(0): a(t)
    a("s_waitcnt lgkmcnt(5)")
    a(mfma32(D0, A1, W2F, 0))
    for s in range(1, 4): a(mfma32(D0, A1+4*s, W2F+4*s))
    a("s_waitcnt lgkmcnt(0)")
    a(mfma32(D0, XR, BXA0))
    for t in g_addr() + g_m0(0) + ["s_nop 0"] + g_dma(): a(t)
    a("s_nop 3")
    stamp(a, 9); stamp(a, 10, True)
    if STAMP and STAMP != 4: a(f"v_writelane_b32 v255, s{S_REM}, 12"); a(f"v_writelane_b32 v255, s{S_TB}, 13"); a("s_mov_b32 s5, 24")
    HALF = opt("half", 1)
    a("K_XA0:")
    if HALF: a(f"s_cmp_eq_u32 s{S_REM}, s{S_HA}"); a("s_cbranch_scc1 K_XAH0")
    phase_x(a, 0, ACCA1, BXA1, True)
    a(f"s_cmp_eq_u32 s{S_REM}, 0"); a("s_cbranch_scc1 K_YT0")
    phase_y(a, 0, ACCA0, BXA0)
    if HALF: a(f"s_cmp_eq_u32 s{S_REM}, s{S_HA}"); a("s_cbranch_scc1 K_XAH1")
    phase_x(a, 1, ACCA1, BXA1, True)
    a(f"s_cmp_eq_u32 s{S_REM}, 0"); a("s_cbranch_scc1 K_YT1")
    phase_y(a, 1, ACCA0, BXA0)
    a("s_branch K_XA0")
    NS = (12, 8, 4) if opt("quart", 1) else (8,)
    if HALF:
        for p in (0, 1):
            a(f"K_XAH{p}:")
            for n in NS[:-1]:
                a(f"s_cmp_eq_u32 s{S_QA}, {n}"); a(f"s_cbranch_scc1 K_XAH{p}_{n}")
            for n in reversed(NS):
                a(f"K_XAH{p}_{n}:")
                phase_x(a, p, ACCA1, BXA1, True, n=n)
                phase_y(a, p, ACCA0, BXB0, n=n)
                a("s_nop 10"); a(f"s_branch K_XT{1-p}")
    a("K_YT0:")
    phase_y(a, 0, ACCA0, BXB0)
    a("K_XT1:")
    phase_x(a, 1, ACCA1, BXB1, False)
    a("s_branch K_YB1")
    a("K_YT1:")
    phase_y(a, 1, ACCA0, BXB0)
    a("K_XT0:")
    phase_x(a, 0, ACCA1, BXB1, False)
    a("K_YB0:")
    phase_y(a, 0, ACCB0, BXB0)
    a(f"s_sub_u32 s{S_TB}, s{S_TB}, 1"); a(f"s_cmp_le_u32 s{S_TB}, {HALF}"); a("s_cbranch_scc1 K_TAIL")
    phase_x(a, 1, ACCB1, BXB1, False)
    a("K_YB1:")
    phase_y(a, 1, ACCB0, BXB0)
    a(f"s_sub_u32 s{S_TB}, s{S_TB}, 1"); a(f"s_cmp_le_u32 s{S_TB}, {HALF}"); a("s_cbranch_scc1 K_TAIL")
    phase_x(a, 0, ACCB1, BXB1, False)
    a("s_branch K_YB0")
    a("K_TAIL:")
    if HALF:
        a(f"s_cmp_eq_u32 s{S_TB}, 0"); a("s_cbranch_scc1 K_DRAIN")
        for n in NS:
            a(f"s_cmp_eq_u32 s{S_HB}, {n}"); a(f"s_cbranch_scc1 K_TAIL{n}")
        for n in (16,) + NS:
            a(f"K_TAIL{n}:")
            phase_x(a, 0, ACCB1, BXB1, False, n=n, last=True)
            phase_y(a, 0, ACCB0, BXB0, n=n, last=True)
            if n != NS[-1]: a("s_nop 0"); a("s_branch K_DRAIN")
    a("K_DRAIN:")
    a(mfma32(ACCB1, A2, MP))
    a(mfma32(ACCB1, A2+4, MP+4))
    stamp(a, 16); stamp(a, 11, True)
    a(f"s_cmp_eq_u32 s{S_MORE}, 0")
    a("s_cbranch_scc1 K_EPI")
    a("s_setprio 0")
    a(f"s_mov_b64 exec, {sr(S_HI,2)}"); a(f"ds_write_b64 v{IMGA}, {vr(ZERO,2)}"); a("s_mov_b64 exec, -1")
    a(f"v_lshlrev_b32 v16, 4, v{LANE}")
    a(f"s_mov_b32 s3, s{S_ACCO}")
    a("s_nop 7")
    for i in range(16):
        a(f"buffer_store_dwordx4 {vr(ACCA0+4*i,4)}, v16, {sr(S_ACC,4)}, s3 offen offset:{(i%4)*1024} sc0 sc1")
        if i % 4 == 3: a("s_add_u32 s3, s3, 4096")
    a(f"s_mov_b32 s{S_ROUND}, 2")
    a("s_waitcnt vmcnt(0) lgkmcnt(0)")
    a("s_barrier")
    a("s_branch K_RESET")
    a("K_EPI:")
    whf = lambda f: (16 + 4*f) if f < 12 else (80 + 4*(f-12))
    MB = 108; DO = 116; AD = 100
    a(f"v_lshrrev_b32 v{AD}, 4, v{LANE}"); a(f"v_lshlrev_b32 v{AD}, 4, v{AD}")
    a(f"v_bfe_u32 v{AD+1}, v{LANE}, 2, 2"); a(f"v_add_u32 v{AD}, v{AD}, v{AD+1}"); a(f"v_lshlrev_b32 v{AD}, 7, v{AD}")
    a(f"v_and_b32 v{AD+1}, 3, v{LANE}"); a(f"v_lshl_add_u32 v{AD}, v{AD+1}, 5, v{AD}"); a(f"v_add_u32 v{AD}, {L_WH}, v{AD}")
    a(f"s_mov_b32 s4, {hex(NLN2)}")
    a(f"v_lshrrev_b32 v{AD+2}, 5, v{LANE}"); a(f"v_lshlrev_b32 v{AD+2}, 7, v{AD+2}"); a(f"v_lshrrev_b32 v{AD+3}, 1, v{LANEE}")
    a(f"s_lshl_b32 s5, s{S_W}, 11"); a(f"s_add_u32 s5, s5, {L_IMG}")
    a(f"v_add3_u32 v{AD+2}, v{AD+2}, v{AD+3}, s5")
    a(f"v_and_b32 v{AD+3}, 15, v{LANE}"); a(f"v_lshlrev_b32 v{AD+3}, 7, v{AD+3}"); a(f"v_lshrrev_b32 v{AD+4}, 4, v{LANE}")
    a(f"v_lshl_add_u32 v{AD+3}, v{AD+4}, 5, v{AD+3}"); a(f"v_add_u32 v{AD+3}, s5, v{AD+3}")
    for s in range(4):
        for t in range(4):
            for kk in range(2):
                a(f"ds_read_b64_tr_b16 {vr(whf(t*4+s)+2*kk,2)}, v{AD} offset:{(s>>1)*8192 + (s&1)*1024 + kk*512 + t*8}")
        g, (c0, c1) = list(enumerate(((ACCA0, ACCA1), (ACCB0, ACCB1))))[s >> 1]
        for q in range(2*(s&1), 2*(s&1)+2):
            a(f"v_mul_f32 v{c0+4*q}, s4, v{c0+4*q}"); a(f"v_mul_f32 v{c1+4*q}, s4, v{c1+4*q}")
            a(f"v_cvt_pk_bf16_f32 v{c0+4*q}, v{c0+4*q}, v{c1+4*q}")
            a(f"ds_write_b16 v{AD+2}, v{c0+4*q} offset:{g*1024 + q*256}")
            a(f"ds_write_b16_d16_hi v{AD+2}, v{c0+4*q} offset:{g*1024 + q*256 + 64}")
    a(f"ds_read_b128 {vr(MB,4)}, v{AD+3}"); a(f"ds_read_b128 {vr(MB+4,4)}, v{AD+3} offset:16")
    for w in (WX0, WX1): a(f"v_lshlrev_b32 v{w}, 16, v{w}"); a(f"v_mul_f32 v{w}, s4, v{w}")
    for (c0, c1) in ((ACCA0, ACCA1), (ACCB0, ACCB1)):
        for q in range(4):
            for k in (1, 2, 3):
                a(f"v_mul_f32 v{c0+4*q+k}, v{WX0}, v{c0+4*q+k}"); a(f"v_fmac_f32 v{c0+4*q+k}, v{WX1}, v{c1+4*q+k}")
    a("s_waitcnt lgkmcnt(0)")
    bsrc = (HB, HB+4, MB, MB+4)
    mf = []
    for s in range(4):
        for t in range(4):
            c = "0" if s == 0 else vr(DO+4*t, 4)
            mf.append(f"v_mfma_f32_16x16x32_bf16 {vr(DO+4*t,4)}, {vr(whf(t*4+s),4)}, {vr(bsrc[s],4)}, {c}")
    red = []
    for q in range(4):
        for k in (1, 2, 3): red.append(f"v_permlane16_swap_b32 v{ACCA0+4*q+k}, v{ACCB0+4*q+k}")
    for q in range(4):
        for k in (1, 2, 3): red.append(f"v_add_f32 v{ACCA0+4*q+k}, v{ACCA0+4*q+k}, v{ACCB0+4*q+k}")
    for q in range(2):
        for k in (1, 2, 3):
            red.append(f"v_add_f32_dpp v{ACCA1+4*q+k}, v{ACCA0+4*q+k}, v{ACCA0+4*q+k} row_ror:8 row_mask:0xf bank_mask:0x3")
            red.append(f"v_add_f32_dpp v{ACCA1+4*q+k}, v{ACCA0+4*q+8+k}, v{ACCA0+4*q+8+k} row_ror:8 row_mask:0xf bank_mask:0xc")
    for i, m in enumerate(mf):
        a(m)
        for t in red[2*i:2*i+2]: a(t)
    for t in red[32:]: a(t)
    for k in (1, 2, 3):
        a(f"v_add_f32_dpp v{ACCB1+k}, v{ACCA1+k}, v{ACCA1+k} row_shl:4 row_mask:0xf bank_mask:0x5")
        a(f"v_add_f32_dpp v{ACCB1+k}, v{ACCA1+4+k}, v{ACCA1+4+k} row_shr:4 row_mask:0xf bank_mask:0xa")
    for perm in ("[1,0,3,2]", "[2,3,0,1]"):
        for k in (1, 2, 3): a(f"v_add_f32_dpp v{ACCB1+k}, v{ACCB1+k}, v{ACCB1+k} quad_perm:{perm} row_mask:0xf bank_mask:0xf")
    a(f"v_cmp_eq_u32 vcc, 1, v{AD+1}"); a(f"v_lshlrev_b32 v{PV}, 16, v{PV}"); a(f"s_mov_b32 s4, {hex(NLOG2E)}")
    a(f"v_cndmask_b32 v{AD+5}, v{ACCB1+1}, v{ACCB1+2}, vcc")
    a(f"v_cmp_eq_u32 vcc, 2, v{AD+1}"); a("s_mov_b32 s5, s4"); a("s_mov_b32 s3, 3200000")
    a(f"v_cndmask_b32 v{AD+5}, v{AD+5}, v{ACCB1+3}, vcc")
    a(f"v_add_f32 v{AD+5}, v{AD+5}, v{PV}"); a(f"v_cvt_pk_bf16_f32 v{AD+5}, v{AD+5}, v{AD+5}")
    a(f"buffer_store_short v{AD+5}, v{PA}, {sr(S_OUT,4)}, s3 offen {OP}")
    E = 148
    for j in range(8): a(f"v_pk_mul_f32 {vr(E+2*j,2)}, {vr(DO+2*j,2)}, s[4:5]")
    for j in range(16): a(f"v_exp_f32 v{E+j}, v{E+j}")
    for j in range(8): a(f"v_pk_add_f32 {vr(E+2*j,2)}, {vr(E+2*j,2)}, 1.0 op_sel_hi:[1,0]")
    for j in range(16): a(f"v_rcp_f32 v{E+j}, v{E+j}")
    for j in range(8):
        a(f"v_lshlrev_b32 v{E+16+2*j}, 16, v{HB+j}"); a(f"v_and_b32 v{E+17+2*j}, 0xffff0000, v{HB+j}")
    for j in range(8): a(f"v_pk_fma_f32 {vr(E+2*j,2)}, {vr(E+2*j,2)}, {vr(DO+2*j,2)}, {vr(E+16+2*j,2)}")
    for j in range(8): a(f"v_cvt_pk_bf16_f32 v{E+32+j}, v{E+2*j}, v{E+2*j+1}")
    a(f"buffer_store_dwordx4 {vr(E+32,4)}, v{HA}, {sr(S_OUT,4)}, 0 offen {OP}")
    a(f"buffer_store_dwordx4 {vr(E+36,4)}, v{HA}, {sr(S_OUT,4)}, 0 offen offset:16 {OP}")
    stamp(a, 17)
    if STAMP: a("s_waitcnt vmcnt(0)")
    stamp(a, 18)
    stamp_out(a)
    a("K_END:")
    a("s_endpgm")

def main():
    ref = open(f"cdna_kernels/{NAME}.s.ref").read().split("\n")
    head = [l for l in ref if l.startswith(";") and "@launch" not in l and not l.startswith("; Override") and not l.startswith("; grid=")]
    out = "\n".join(head) + "\n"
    if opt("aslist", 0): out += f"; @launch kernel={KN} grid=(256,1,1) block=(512,1,1) lds={LDS}\n"
    else: out += f"; @launch grid=(256,1,1) block=(512,1,1) lds={LDS}\n"
    out += '.amdgcn_target "amdgcn-amd-amdhsa--gfx950"\n.text\n'
    a = Asm(); gen(a)
    for b in a.check_edges(): print("EDGE HAZARD", b, file=sys.stderr)
    out += f".globl {KN}\n.p2align 8\n.type {KN},@function\n" + a.text()
    out += f""".section .rodata,"a"
.p2align 6
.amdhsa_kernel {KN}
  .amdhsa_next_free_vgpr 256
  .amdhsa_next_free_sgpr 102
  .amdhsa_accum_offset 256
  .amdhsa_group_segment_fixed_size 0
  .amdhsa_kernarg_size 88
  .amdhsa_user_sgpr_count 2
  .amdhsa_user_sgpr_kernarg_segment_ptr 1
  .amdhsa_system_sgpr_workgroup_id_x 1
  .amdhsa_float_denorm_mode_32 3
.end_amdhsa_kernel
"""
    open(sys.argv[1], "w").write(out)
main()
```

```python
import sys, math, struct
from asmlib import Asm

NAME = "gather_scatter__cheap_equivariant_egnn__graph"
KN = NAME + "_kernel"
def f32bits(x): return struct.unpack("<I", struct.pack("<f", x))[0]
NLOG2E = f32bits(-math.log2(math.e)); NLN2 = f32bits(-math.log(2.0))
OPT = dict(a.split("=") for a in sys.argv[2:]) if len(sys.argv) > 2 else {}
def opt(k, d): return type(d)(OPT.get(k, d))
STAMP = opt("stamp", 0)

CH = 3128; CHB = CH * 12; CHS = opt('chs', 37632); NQ = CH // 4; NQ_LAST = (800000 - 255 * CH) // 4
WSO = opt('wso', 0) << 20
WS_GRAN = 0x00A00000; WS_POSF = 0x00B00000; WS_ACC = 0x01000000; WS_STAMP = 0x08000000
GMUL = 10737; GMAGIC = 51201995
L_CUR = 0; L_FLAG = 64; L_EPOCH = 68; L_TBL = 0x100; L_IMG = 0x1100; L_GB = 0x5100
L_WH = L_GB + 8 * 8192
L_REC = L_WH + 16384
PADO = 128 * 98 + 384 * 16; PLANE = 18944; PO1 = PLANE // 256; PO2 = 2 * PO1
L_PAD = L_REC + PADO
LDS = L_REC + 3 * PLANE
L_STG = L_GB; L_HIST = L_GB + 37632; L_OFFS = L_HIST + 1024; L_WF = L_GB + 40960
assert LDS <= 163840 and PADO + 128 <= PLANE and L_GB % 256 == 0
PADW = (32767 << 7) | (7 << 3)
HUGE = 0x40000000
TAGK = 0x9E3779B9

D0 = 16; D1 = 32; T = 48; MP = 64; A2 = 72; A1 = 80; XR = 96
W2F = 100; BXA0 = 132; BXA1 = 136; BXB0 = 140; BXB1 = 144
ACCA0 = 148; ACCA1 = 164; ACCB0 = 180; ACCB1 = 196
COLC = 212; RDA = 216; TRA = 220; IMGB = 221; LANEQ = 222; LANEE = 223
WQ = 224; W2E = 228; ADE = 230; PS = 232; CURB = 235; HA = 236; PA = 237; PV = 238; CURL = 239
PD = 240; WX0 = 243; VAL = 244; IMGA = 246; S8 = 247; S16 = 248; ADQ = 249
ZERO = 250; D2 = 252; PIX = 253; WX1 = 254
LANE = 1; SW = 2; I12 = 3; I12H = 4; BPX = 5; FOUR = 6; TMP = 7; HB = 8
S_H = 8; S_POSF = 12; S_REC = 16; S_POS = 20; S_OUT = 24; S_ACC = 28; S_MASK = 32; S_HJ = 32
S_W = 64; S_B = 65; S_NA = 66; S_NB = 67; S_CA = 68; S_CB = 69
S_LO = 70; S_HI = 72; S_GM = 74; S_TBL = 75; S_TBLA = 76; S_TBLB = 77
S_NEXT = 78; S_END = 79; S_JUMP = 80; S_END2 = 81; S_PADB = 82; S_PADE = 83
S_REM = 84; S_TB = 85; S_GB = 86; S_WIN = 87; S_ROUND = 88; S_MORE = 89; S_T0 = 90; S_T1 = 91; S_T3 = 92
S_SEG = 93; S_ACCO = 94; S_FLIP = 95; S_WX = 96; S_SUB = 100; S_SPIN = 101; S_FLIP2 = 101; S_EARLY = 57; S_HA = 52; S_HB = 53; S_QA = 56; S_PEND = 78; S_LEFT = 80

def vr(b, n): return f"v[{b}:{b+n-1}]"
def sr(b, n): return f"s[{b}:{b+n-1}]"
def srd(a, d, lo, hi, off, num, stride=0):
    if off > 0:
        a(f"s_add_u32 s{d}, s{lo}, {hex(off)}"); a(f"s_addc_u32 s{d+1}, s{hi}, 0")
    elif off < 0:
        a(f"s_sub_u32 s{d}, s{lo}, {hex(-off)}"); a(f"s_subb_u32 s{d+1}, s{hi}, 0")
    else:
        a(f"s_mov_b32 s{d}, s{lo}"); a(f"s_mov_b32 s{d+1}, s{hi}")
    if stride: a(f"s_or_b32 s{d+1}, s{d+1}, {hex(stride << 16)}")
    a(f"s_mov_b32 s{d+2}, {hex(num)}"); a(f"s_mov_b32 s{d+3}, 0x20000")
def stamp(a, idx, cyc=False):
    if not STAMP: return
    if STAMP == 4:
        if cyc or idx in (0, 18, 20, 21, 22): return
        idx = {16: 10, 17: 11, 19: 12}.get(idx, idx)
    a(f"{'s_memtime' if cyc else 's_memrealtime'} s[6:7]"); a("s_waitcnt lgkmcnt(0)"); a(f"v_writelane_b32 v255, s6, {idx}")
def stamp_out(a):
    if not STAMP: return
    if STAMP == 4:
        a("s_mov_b64 exec, -1")
        a("s_load_dwordx2 s[32:33], s[0:1], 72"); a("s_waitcnt lgkmcnt(0)")
        srd(a, 36, 32, 33, 0, 256)
        a(f"buffer_load_dword v17, v{ZERO}, s[36:39], 0 offen sc0 sc1")
        a("v_readlane_b32 s4, v255, 9"); a("v_readlane_b32 s5, v255, 10"); a("v_readlane_b32 s6, v255, 6")
        a("s_waitcnt vmcnt(0)")
        a("v_readfirstlane_b32 s7, v17")
        a("s_lshl_b32 s32, s7, 1"); a("s_add_u32 s32, s32, 10000")
        a("s_sub_u32 s4, s32, s4"); a("s_sub_u32 s5, s32, s5"); a("s_sub_u32 s6, s32, s6")
        a("v_writelane_b32 v255, s4, 13"); a("v_writelane_b32 v255, s5, 14"); a("v_writelane_b32 v255, s6, 15")
        a("v_sub_u32 v255, v255, v17")
        a(f"v_lshlrev_b32 v16, 2, v{LANE}")
        a("s_mov_b64 exec, 0xfffe")
        a("buffer_atomic_umax v255, v16, s[36:39], 0 offen sc1")
        return
    a("s_mov_b64 exec, -1")
    a("s_load_dwordx2 s[32:33], s[0:1], 80"); a("s_waitcnt lgkmcnt(0)")
    srd(a, 36, 32, 33, WS_STAMP, 1 << 22)
    a("s_lshl_b32 s32, s2, 4"); a(f"s_add_u32 s32, s32, s{S_W}"); a("s_lshl_b32 s32, s32, 8")
    a(f"v_lshlrev_b32 v16, 2, v{LANE}")
    a("buffer_store_dword v255, v16, s[36:39], s32 offen")

def mfma32(d, a_, b_, c=None):
    return f"v_mfma_f32_32x32x16_bf16 {vr(d,16)}, {vr(a_,4)}, {vr(b_,4)}, {'0' if c == 0 else vr(d,16)}"
def silu_main(d, n=16):
    m = [f"v_exp_f32 v{T+j}, v{d+j}" for j in range(n)]
    m += [f"v_pk_add_f32 {vr(T+2*j,2)}, {vr(T+2*j,2)}, 1.0 op_sel_hi:[1,0]" for j in range(n//2)]
    m += [f"v_rcp_f32 v{T+j}, v{T+j}" for j in range(n)]
    m += [f"v_pk_mul_f32 {vr(T+2*j,2)}, {vr(T+2*j,2)}, {vr(d+2*j,2)}" for j in range(n//2)]
    m += [f"v_cvt_pk_bf16_f32 v{MP+j}, v{T+2*j}, v{T+2*j+1}" for j in range(n//2)]
    return m
def emit(a, main, ins):
    for t in ins.get(-1, []): a(t)
    for i, m in enumerate(main):
        a(m)
        for t in ins.get(i, []): a(t)
def gstate(isA=True):
    o = [f"s_add_u32 s{S_NEXT}, s{S_NEXT}, 128", f"s_cmp_eq_u32 s{S_NEXT}, s{S_END}",
         f"s_cselect_b32 s{S_NEXT}, s{S_JUMP}, s{S_NEXT}", f"s_cselect_b32 s{S_END}, s{S_END2}, s{S_END}"]
    if isA: o += [f"s_cselect_b32 s{S_JUMP}, s{S_PADB}, s{S_JUMP}", f"s_cselect_b32 s{S_END2}, s{S_PADE}, s{S_END2}"]
    return o
def g_reads(e, wq=WQ, isA=True):
    return [f"v_add_u32 v{ADQ}, s{S_NEXT}, v{LANEQ}", f"v_add_u32 v{ADE+e}, s{S_NEXT}, v{LANEE}",
            f"ds_read_b128 {vr(wq,4)}, v{ADQ}", f"ds_read_b32 v{W2E+e}, v{ADE+e}"] + gstate(isA)
def g_addr(wq=WQ): return [f"v_and_or_b32 v{wq+j}, v{wq+j}, s{S_GM}, v{COLC+j}" for j in range(4)]
def g_m0(e): return [f"s_add_u32 m0, s{S_GB}, {e*4096}"]
def g_dma(wq=WQ): return [f"buffer_load_dwordx4 v{wq+j}, {sr(S_HJ+4*j,4)}, 0 offen offset:{j*1024} {opt('gp', '')} lds" for j in range(4)]
def pos_gather(): return f"buffer_load_dwordx3 {vr(PS,3)}, v{PIX}, {sr(S_POSF,4)}, 0 idxen sc1"
def e_head(e):
    return [f"v_and_b32 v{S8}, 0x38, v{W2E+e}", f"v_lshl_add_u32 v{S16}, v{S8}, 1, s{S_TBL}", f"ds_read_b96 {vr(PD,3)}, v{S16} offset:128",
            f"v_bfe_u32 v{PIX}, v{W2E+1-e}, 7, 15"]
def e_sect(e, zero=True):
    o = [f"s_mov_b64 exec, {sr(S_LO,2)}", f"ds_read_b128 {vr(XR,4)}, v{S16}", f"s_mov_b64 exec, {sr(S_HI,2)}"]
    o += [f"v_sub_f32 v{PD+k}, v{PD+k}, v{PS+k}" for k in range(3)]
    o += [f"v_cvt_pk_bf16_f32 v{VAL}, 1.0, v{PD}", f"v_cvt_pk_bf16_f32 v{VAL+1}, v{PD+1}, v{PD+2}",
          f"v_dot2_f32_bf16 v{D2}, v{VAL}, v{VAL}, -1.0", f"v_dot2_f32_bf16 v{D2}, v{VAL+1}, v{VAL+1}, v{D2}",
          f"ds_read2st64_b32 {vr(XR,2)}, v{ADE+e} offset0:{PO1} offset1:{PO2}"]
    if zero: o += [f"ds_write_b64 v{IMGA}, {vr(ZERO,2)}"]
    o += [f"v_add_u32 v{IMGA}, v{S8}, v{IMGB}", f"ds_write_b64 v{IMGA}, {vr(VAL,2)}", pos_gather(),
          f"v_cvt_pk_bf16_f32 v{XR+2}, v{D2}, v{D2}", "s_mov_b64 exec, -1"]
    return o
def a1_reads(e): return [f"ds_read_b128 {vr(A1+4*s,4)}, v{RDA+s} offset:{e*4096}" for s in range(4)]
def tr_reads(): return [f"ds_read_b64_tr_b16 {vr(A2+2*k,2)}, v{TRA} offset:{k*512}" for k in range(4)]

OP = opt('op', 'nt').replace('+', ' ')
TWO = opt('two', 0); EARLY = opt('early', 1); HBL = opt('hbl', 0); G1P = opt('g1post', 0)
NPF = opt('npf', 0)
PRIO = opt("prio", 2)
_lbl = [0]
XPOS = {16: "0,3,24,27,30,33,36,25,26", 12: "0,3,6,18,21,24,36,11,13", 8: "0,3,12,15,18,24,26,13,14", 4: "0,3,6,9,12,13,13,7,8"}
YPOS = {16: "0,3,6,24,27,30,33,1,7,8,10,11", 12: "0,3,6,18,21,24,36,1,7,8,10,11", 8: "0,0,4,12,15,18,24,1,5,6,7,13", 4: "0,0,2,6,9,12,13,1,3,6,7,8"}
def phase_x(a, p, acc1, bx1, isA, n=16, last=False):
    e = 1 - p
    ins = {}; pre = []
    def add(k, l): ins[k] = ins.get(k, []) + l
    if isA:
        pre += [f"s_sub_u32 s{S_REM}, s{S_REM}, 1", f"s_cmp_eq_u32 s{S_REM}, 0", f"s_cselect_b32 s{S_TBL}, s{S_TBLB}, s{S_TBLA}"]
        if PRIO == 2:
            _lbl[0] += 1; L = f"KP{_lbl[0]}"
            add(2, [f"s_cmp_lg_u32 s{S_REM}, s{S_FLIP}", f"s_cbranch_scc1 {L}", "s_setprio 1", f"{L}:"])
            _lbl[0] += 1; L = f"KP{_lbl[0]}"
            add(n*7//2 - 2, [f"s_cmp_lg_u32 s{S_REM}, s{S_FLIP2}", f"s_cbranch_scc1 {L}", "s_setprio 1", f"{L}:"])
    if STAMP == 2:
        pre += ["s_memtime s[6:7]", "s_waitcnt lgkmcnt(0)", "s_mov_b32 m0, s5", "s_add_u32 s5, s5, 1", "v_writelane_b32 v255, s6, m0"]
    if STAMP == 3:
        pre += ["s_memtime s[6:7]", "s_memrealtime s[54:55]", "s_waitcnt lgkmcnt(0)", "s_mov_b32 m0, s5", "s_add_u32 s5, s5, 1", "v_writelane_b32 v255, s6, m0",
                "s_mov_b32 m0, s5", "s_add_u32 s5, s5, 1", "v_writelane_b32 v255, s54, m0"]
    ins[-1] = pre
    XP = [int(x) for x in opt(f"xp{n}", XPOS[n]).split(",")]
    mf = [mfma32(acc1, A2, MP), mfma32(acc1, A2+4, MP+4), mfma32(D1, XR, bx1, 0)] + [mfma32(D1, A1+4*s, W2F+16+4*s) for s in range(4)]
    for k, m in zip(XP[:7], mf): add(k, [m])
    tr = tr_reads()
    add(XP[1]+1, tr[:2]); add(XP[1]+2, tr[2:])
    if not last:
        add(0, e_head(e))
        add(XP[7], ["s_waitcnt vmcnt(4) lgkmcnt(4)"] + e_sect(e))
        add(XP[8], g_reads(e, isA=isA))
        add(min(XP[6]+1, n*7//2 - 1), a1_reads(e))
    assert XP[7] > XP[2] and XP[7] > XP[1]+2 and XP[8] > XP[7] and XP[6]+1 > XP[8]
    emit(a, silu_main(D0, n), ins)

def phase_y(a, p, acc0, bx0, n=16, last=False):
    e = 1 - p
    ins = {}
    def add(k, l): ins[k] = ins.get(k, []) + l
    ins[-1] = ["s_waitcnt lgkmcnt(0)" if last else "s_waitcnt lgkmcnt(10)"]
    YP = [int(x) for x in opt(f"yp{n}", YPOS[n]).split(",")]
    mf = [mfma32(acc0, A2, MP), mfma32(acc0, A2+4, MP+4), mfma32(D0, A1, W2F, 0)] + [mfma32(D0, A1+4*s, W2F+4*s) for s in range(1, 4)] + [mfma32(D0, XR, bx0)]
    if not last: add(YP[2], ["s_waitcnt lgkmcnt(0)"])
    for i, (k, m) in enumerate(zip(YP[:7], mf)):
        if (n <= 8 and i == 1) or (last and i >= 2): continue
        add(k, [m])
    if not last:
        add(0, g_m0(e))
        add(YP[7], (["s_waitcnt lgkmcnt(5)"] if YP[7] < YP[2] else []) + g_addr())
        for k, d in zip(YP[8:], g_dma()): add(k, [d])
    assert min(YP[8:]) >= YP[2] and min(YP[8:]) >= YP[7]
    emit(a, silu_main(D1, n), ins)

def node_sel(a, cond, vnode, vcnt, vtmp):
    a(cond)
    a(f"v_mov_b32 v{vnode}, s{S_NB}"); a(f"v_mov_b32 v{vcnt}, s{S_NA}")
    a(f"v_cndmask_b32 v{vnode}, v{vnode}, v{vcnt}, vcc")
    a(f"v_mov_b32 v{vcnt}, s{S_CB}"); a(f"v_mov_b32 v{vtmp}, s{S_CA}")
    a(f"v_cndmask_b32 v{vcnt}, v{vcnt}, v{vtmp}, vcc")

def cursor_init(a):
    a(f"v_lshlrev_b32 v{ADQ}, 2, v{LANE}")
    a("s_mov_b64 exec, 0x1ffff"); a(f"ds_write_b32 v{ADQ}, v{CURB}"); a("s_mov_b64 exec, -1")

def gen(a):
    a(f"{KN}:")
    a("s_cmp_ge_u32 s2, 256")
    a("s_cbranch_scc1 K_END")
    a("s_load_dwordx16 s[32:47], s[0:1], 0")
    a("s_load_dwordx4 s[48:51], s[0:1], 64")
    a("s_load_dwordx2 s[52:53], s[0:1], 80")
    if opt("cpf", 0) == 2:
        a("s_getpc_b64 s[4:5]")
        a("K_PC:")
        a("s_mov_b32 s3, K_END-K_PC-16")
        a("v_lshlrev_b32 v8, 4, v0")
        for k in range(2):
            a(f"v_add_u32 v12, {8192*k}, v8"); a("v_min_u32 v12, s3, v12")
            a(f"global_load_dwordx4 {vr(PD,4)}, v12, s[4:5]")
    stamp(a, 0); stamp(a, 14, True)
    a("s_cmp_eq_u32 s2, 255")
    a(f"s_movk_i32 s4, {NQ - 512}")
    a(f"s_cselect_b32 s4, {NQ_LAST - 512}, s4")
    a(f"s_mul_i32 s3, s2, {CH*4}")
    a("s_lshl_b32 s5, s3, 1")
    a("v_lshlrev_b32 v8, 4, v0")
    a("v_lshlrev_b32 v9, 5, v0")
    a("v_cmp_gt_u32 s[62:63], s4, v0")
    a(f"v_mov_b32 v12, {hex(HUGE)}")
    a("v_add_u32 v10, 0x2000, v8")
    a("v_add_u32 v11, 0x4000, v9")
    a("v_cndmask_b32 v10, v12, v10, s[62:63]")
    a("v_cndmask_b32 v11, v12, v11, s[62:63]")
    a("v_and_b32 v12, 0xff, v0")
    a("v_lshlrev_b32 v12, 2, v12")
    a(f"v_mov_b32 v{ZERO}, 0")
    a(f"ds_write_b32 v12, v{ZERO} offset:{L_HIST}")
    a("s_waitcnt lgkmcnt(0)")
    if WSO: a(f"s_add_u32 s52, s52, {hex(WSO)}"); a("s_addc_u32 s53, s53, 0")
    srd(a, 8, 40, 41, 0, 3200000)
    srd(a, 12, 38, 39, 0, 3200000)
    srd(a, 16, 36, 37, 0, 6400000)
    nt = " nt" if opt("k1nt", 1) else ""
    a(f"buffer_load_dwordx4 v[16:19], v8, s[8:11], s3 offen{nt}")
    a(f"buffer_load_dwordx4 v[20:23], v10, s[8:11], s3 offen{nt}")
    if opt("dstfirst", 0): a("s_barrier")
    a(f"buffer_load_dwordx4 v[24:27], v8, s[12:15], s3 offen{nt}")
    a(f"buffer_load_dwordx4 v[28:31], v10, s[12:15], s3 offen{nt}")
    a(f"buffer_load_dwordx4 v[32:35], v9, s[16:19], s5 offen{nt}")
    a(f"buffer_load_dwordx4 v[36:39], v9, s[16:19], s5 offen offset:16{nt}")
    a(f"buffer_load_dwordx4 v[40:43], v11, s[16:19], s5 offen{nt}")
    a(f"buffer_load_dwordx4 v[44:47], v11, s[16:19], s5 offen offset:16{nt}")
    NC = 0
    if opt("cpf", 0) == 1:
        a("s_getpc_b64 s[4:5]")
        a("K_PC:")
        a("s_mov_b32 s3, K_END-K_PC-16")
        for k in range(2):
            a(f"v_add_u32 v12, {8192*k}, v8"); a("v_min_u32 v12, s3, v12")
            a(f"global_load_dwordx4 {vr(PD,4)}, v12, s[4:5]")
        NC = 2
    if not opt("dstfirst", 0): a("s_barrier")
    a(f"v_and_b32 v{LANE}, 63, v0")
    a("v_lshrrev_b32 v12, 6, v0")
    a(f"v_readfirstlane_b32 s{S_W}, v12")
    RW = 148
    srd(a, S_ACC, 50, 51, 0, 256)
    a("v_mov_b32 v12, 0")
    a("s_cmp_lg_u32 s2, 0"); a("s_cbranch_scc1 K_NOEP")
    a(f"s_cmp_lg_u32 s{S_W}, 7"); a("s_cbranch_scc1 K_NOEP")
    a("s_memrealtime s[4:5]")
    a("s_waitcnt lgkmcnt(0)")
    a("s_or_b32 s4, s4, 1")
    a("v_mov_b32 v13, s4")
    a("s_mov_b64 exec, 1")
    a(f"buffer_store_dword v13, v12, {sr(S_ACC,4)}, 0 offen sc0 sc1")
    a("s_mov_b64 exec, -1")
    a("K_NOEP:")
    a(f"v_mov_b32 v{ZERO+1}, 0")
    a("s_and_b32 s3, s2, 7"); a("s_lshl_b32 s3, s3, 5")
    a(f"s_lshr_b32 s{S_B}, s2, 3"); a(f"s_add_u32 s{S_B}, s{S_B}, s3")
    a(f"s_lshl_b32 s4, s{S_B}, 20"); a(f"s_add_u32 s4, s4, {GMUL-1}")
    a(f"s_mov_b32 s7, {GMAGIC}")
    a(f"v_lshl_add_u32 v12, v{LANE}, 16, s4")
    a("v_add_u32 v13, 0x10000, v12")
    a("v_mul_hi_u32 v12, v12, s7"); a("v_mul_hi_u32 v13, v13, s7")
    a("v_lshrrev_b32 v12, 7, v12"); a("v_lshrrev_b32 v13, 7, v13")
    a("v_min_u32 v13, 25000, v13")
    a(f"s_mov_b32 s4, s{S_W}"); a("s_add_u32 s5, s4, 8")
    a("v_readlane_b32 s3, v12, 0"); a(f"v_readlane_b32 s{S_CA}, v13, s4")
    a(f"v_readlane_b32 s{S_NA}, v12, s4"); a(f"v_readlane_b32 s{S_NB}, v12, s5"); a(f"v_readlane_b32 s{S_CB}, v13, s5")
    a(f"v_mul_u32_u24 v14, 384, v{LANE}")
    a("s_lshl_b32 s3, s3, 7"); a(f"s_sub_u32 s3, {L_REC}, s3")
    a(f"v_lshl_add_u32 v{CURB}, v12, 7, v14"); a(f"v_add_u32 v{CURB}, s3, v{CURB}")
    a(f"v_lshl_add_u32 v{CURL}, v13, 7, v14"); a("s_add_u32 s3, s3, 384"); a(f"v_add_u32 v{CURL}, s3, v{CURL}")
    a(f"v_cmp_gt_u32 vcc, 16, v{LANE}")
    a(f"s_sub_u32 s{S_CB}, s{S_CB}, s{S_NB}"); a(f"s_sub_u32 s{S_CA}, s{S_CA}, s{S_NA}")
    a(f"v_cndmask_b32 v{CURB}, 0, v{CURB}, vcc")
    a(f"v_and_b32 v9, 31, v{LANE}")
    a(f"v_lshrrev_b32 v10, 5, v{LANE}")
    a(f"v_lshlrev_b32 v11, 4, v{LANE}")
    a(f"v_and_b32 v12, 7, v{LANE}")
    node_sel(a, f"v_cmp_gt_u32 vcc, 8, v{LANE}", 13, 14, 15)
    a("v_cmp_lt_u32 vcc, v12, v14")
    a(f"v_cmp_gt_u32 s[60:61], 16, v{LANE}")
    a("v_add_u32 v13, v13, v12"); a("v_mov_b32 v14, 0x7fff")
    a("s_and_b64 vcc, vcc, s[60:61]")
    a(f"v_cndmask_b32 v{PIX}, v14, v13, vcc")
    a(f"v_mul_u32_u24 v{D2}, 6, v{PIX}")
    srd(a, S_POS, 34, 35, 0, 150000)
    N1 = NC
    a("v_and_b32 v12, 3, v9"); a("v_bfe_u32 v13, v9, 3, 1"); a("v_lshl_or_b32 v12, v13, 2, v12")
    node_sel(a, "v_cmp_gt_u32 vcc, 16, v9", 13, 14, 15)
    a("v_and_b32 v15, 4, v9"); a("v_lshl_or_b32 v15, v15, 1, v12")
    a("v_cmp_lt_u32 vcc, v15, v14")
    a("v_add_u32 v13, v13, v12"); a("v_lshlrev_b32 v13, 7, v13"); a("v_lshl_add_u32 v13, v10, 4, v13")
    a(f"v_mov_b32 v14, {hex(HUGE)}")
    a(f"v_cndmask_b32 v{S8}, v14, v13, vcc")
    srd(a, S_H, 32, 33, 0, 3200000)
    srd(a, 56, 42, 43, 0, 133 * 128)
    srd(a, 40, 46, 47, 0, 128 * 128)
    srd(a, S_POSF, 52, 53, WS_POSF, 25000, stride=16)
    srd(a, S_REC, 52, 53, 0, WS_GRAN + 256 * 4096)
    if opt("tlb", 0):
        srd(a, S_OUT, 48, 49, 0, 3350000)
        srd(a, S_WX, 52, 53, 0, WS_POSF + 400000)
        a(f"s_cmp_lg_u32 s{S_W}, 5"); a("s_cbranch_scc1 K_NOTLB")
        a(f"v_lshlrev_b32 v12, {opt('tlb', 0)}, v{LANE}")
        a(f"buffer_load_dword v{PD}, v12, {sr(S_WX,4)}, 0 offen")
        a(f"buffer_load_dword v{PD}, v12, {sr(S_H,4)}, 0 offen")
        a(f"buffer_load_dword v{PD}, v12, {sr(S_OUT,4)}, 0 offen")
        a("K_NOTLB:")
    a("v_mov_b32 v14, 12")
    a(f"s_mul_i32 s54, s2, {CHS}")
    for g in range(2):
        a(f"s_waitcnt vmcnt({N1 + 7 - g})")
        if g == 0: stamp(a, 1)
        if g == 1: a("s_mov_b64 exec, s[62:63]")
        for k in range(4):
            i = 4*g + k
            a(f"v_mul_u32_u24 v{48+i}, {hex(GMUL)}, v{16+i}")
            a(f"v_lshrrev_b32 v{56+i}, 18, v{48+i}")
            a(f"v_and_b32 v{56+i}, 0x3fc, v{56+i}")
            a(f"ds_add_rtn_u32 v{64+i}, v{56+i}, v14 offset:{L_HIST}")
    a("s_mov_b64 exec, -1")
    for j in range(3): a(f"buffer_load_ushort v{RW+8+j}, v{D2}, {sr(S_POS,4)}, 0 offen offset:{2*j}")
    a(f"buffer_load_dword v{RW+12}, v{ZERO}, {sr(S_ACC,4)}, 0 offen sc0 sc1")
    for s in range(4): a(f"buffer_load_dwordx4 {vr(A1+4*s,4)}, v{S8}, {sr(S_H,4)}, 0 offen offset:{32*s}")
    N1 += 8
    if opt("wpf", 0):
        a("s_lshr_b32 s4, s2, 3"); a("s_lshl_b32 s4, s4, 10"); a("s_and_b32 s5, s4, 0x3fff")
        a(f"s_cmp_lg_u32 s{S_W}, 6"); a("s_cbranch_scc1 K_NOWPF")
        a(f"buffer_load_dwordx4 {vr(PD,4)}, v11, s[56:59], s4 offen")
        a(f"buffer_load_dwordx4 {vr(PD,4)}, v11, s[40:43], s5 offen")
        a("K_NOWPF:")
    a("s_mov_b32 s6, 400016")
    for i in range(8):
        a(f"v_and_b32 v{16+i}, 0xffff, v{48+i}")
        a(f"v_mul_hi_u32 v{16+i}, v{16+i}, s6")
        a(f"v_bfe_u32 v{48+i}, v{48+i}, 16, 4")
        a(f"v_lshlrev_b32 v{16+i}, 3, v{16+i}")
        a(f"v_lshl_or_b32 v{16+i}, v{48+i}, 24, v{16+i}")
    a("s_waitcnt lgkmcnt(0)")
    a("s_barrier")
    stamp(a, 2)
    a(f"ds_read_b128 v[72:75], v11 offset:{L_HIST}")
    a(f"s_lshl_b32 s4, s{S_W}, 8")
    a(f"v_lshl_add_u32 v15, v{LANE}, 2, s4")
    a(f"ds_read_b32 v76, v15 offset:{L_HIST}")
    a("s_waitcnt lgkmcnt(1)")
    a("v_add_u32 v49, v72, v73"); a("v_add_u32 v50, v49, v74"); a("v_add_u32 v51, v50, v75")
    a("v_mov_b32 v52, v51")
    for sh in (1, 2, 4, 8): a(f"v_add_u32_dpp v52, v52, v52 row_shr:{sh} row_mask:0xf bank_mask:0xf bound_ctrl:0")
    a("v_add_u32_dpp v52, v52, v52 row_bcast:15 row_mask:0xa bank_mask:0xf")
    a("v_add_u32_dpp v52, v52, v52 row_bcast:31 row_mask:0xc bank_mask:0xf")
    a("v_sub_u32 v52, v52, v51"); a("v_add_u32 v53, v52, v72"); a("v_add_u32 v54, v52, v49"); a("v_add_u32 v55, v52, v50")
    a(f"ds_write_b128 v11, v[52:55] offset:{L_OFFS}")
    a("s_waitcnt lgkmcnt(0)")
    for i in range(8): a(f"ds_read_b32 v{48+i}, v{56+i} offset:{L_OFFS}")
    a(f"ds_read_b32 v77, v15 offset:{L_OFFS}")
    a(f"s_waitcnt vmcnt({N1 + 4})")
    for i in range(8): a(f"v_lshl_or_b32 v{16+i}, v{24+i}, 7, v{16+i}")
    a("s_waitcnt lgkmcnt(0)")
    for i in range(8): a(f"v_add_u32 v{48+i}, v{48+i}, v{64+i}")
    a("v_lshl_or_b32 v76, v76, 16, v77")
    for g in range(2):
        if g == 1: a("s_mov_b64 exec, s[62:63]")
        for k in range(4): a(f"ds_write_b32 v{48+4*g+k}, v{16+4*g+k} offset:{L_STG+8}")
        for k in range(4): a(f"v_add_u32 v{56+4*g+k}, {L_STG}, v{48+4*g+k}")
        a(f"s_waitcnt vmcnt({N1 + 2 - 2*g})")
        for k in range(4):
            i = 4*g + k
            a(f"ds_write2_b32 v{56+i}, v{32+2*i}, v{33+2*i} offset0:0 offset1:1")
    a("s_mov_b64 exec, -1")
    N2 = 9
    a(f"v_cmp_gt_u32 vcc, {CHS//16 - 2048}, v0")
    a(f"v_mov_b32 v12, {hex(HUGE)}")
    a("v_cndmask_b32 v12, v12, v8, vcc")
    a("s_waitcnt vmcnt(5)")
    for j in range(3): a(f"v_lshlrev_b32 v{68+j}, 16, v{RW+8+j}")
    a("v_mov_b32 v71, 0")
    a("s_mov_b64 exec, 0xffff")
    a(f"buffer_store_dwordx4 v[68:71], v{PIX}, {sr(S_POSF,4)}, 0 idxen sc1")
    a("s_mov_b64 exec, -1")
    a("s_movk_i32 s4, 0x2000")
    a(f"buffer_load_dwordx4 {vr(RW,4)}, v8, {sr(56,4)}, s4 offen")
    a("s_movk_i32 s4, 0x4000")
    a(f"buffer_load_dwordx4 {vr(RW+4,4)}, v11, {sr(56,4)}, s4 offen")
    a(f"s_lshl_b32 s5, s{S_W}, 10")
    a(f"s_add_u32 m0, s5, {L_WF + 8192}"); a("s_nop 0")
    a(f"buffer_load_dwordx4 v8, {sr(56,4)}, 0 offen lds")
    a(f"s_add_u32 m0, s5, {L_WH}"); a("s_nop 0")
    a(f"buffer_load_dwordx4 v8, s[40:43], 0 offen lds")
    a(f"s_add_u32 m0, s5, {L_WH + 8192}"); a("s_movk_i32 s4, 0x2000")
    a(f"buffer_load_dwordx4 v8, s[40:43], s4 offen lds")
    stamp(a, 3)
    a("s_waitcnt lgkmcnt(0)")
    a("s_barrier")
    if opt("cprio", 1): a("s_setprio 3")
    for j in range(5): a(f"ds_read_b128 {vr(16+4*j,4)}, v8 offset:{L_STG + 8192*j}")
    for j in range(5):
        a(f"s_waitcnt lgkmcnt({4-j})")
        a(f"buffer_store_dwordx4 {vr(16+4*j,4)}, v{8 if j < 4 else 12}, {sr(S_REC,4)}, s54 offen {opt('stp', 'sc1').replace('+', ' ')}")
        if j < 4: a("s_add_u32 s54, s54, 8192")
    if opt("cprio", 1): a("s_setprio 0")
    stamp(a, 4)
    cursor_init(a)
    if EARLY:
        a(f"v_readlane_b32 s4, v{CURB}, s{S_W}"); a("v_mov_b32 v12, -1"); a(f"v_add_u32 v13, s4, v{ADQ}")
        a("ds_write_b32 v13, v12")
    a(f"s_mov_b32 s{S_LO}, -1"); a(f"s_mov_b32 s{S_LO+1}, 0"); a(f"s_mov_b32 s{S_HI}, 0"); a(f"s_mov_b32 s{S_HI+1}, -1")
    a(f"s_lshl_b32 s{S_TBLA}, s{S_W}, 8"); a(f"s_add_u32 s{S_TBLA}, s{S_TBLA}, {L_TBL}"); a(f"s_add_u32 s{S_TBLB}, s{S_TBLA}, 2048")
    a(f"v_and_b32 v12, 7, v{LANE}"); a("v_lshrrev_b32 v13, 1, v12"); a("v_and_b32 v14, 1, v12"); a("v_lshlrev_b32 v14, 4, v14")
    a("v_mov_b32 v60, 0x3f80"); a("v_lshlrev_b32 v14, v14, v60")
    for j in range(4):
        a(f"v_cmp_eq_u32 vcc, {j}, v13"); a(f"v_cndmask_b32 v{48+j}, 0, v14, vcc")
    a(f"v_bfe_u32 v13, v{LANE}, 3, 1"); a("v_lshlrev_b32 v13, 11, v13"); a("v_lshl_add_u32 v13, v12, 4, v13")
    a(f"v_add_u32 v{TMP}, s{S_TBLA}, v13")
    a("s_mov_b64 exec, 0xffff"); a(f"ds_write_b128 v{TMP}, v[48:51]"); a(f"ds_write_b128 v{TMP}, v[68:71] offset:128"); a("s_mov_b64 exec, -1")
    srd(a, S_OUT, 48, 49, 0, 3350000)
    srd(a, S_WX, 44, 45, 0, 128)
    a(f"s_mov_b32 s{S_GM}, 0x3fff80")
    a(f"s_lshl_b32 s{S_GB}, s{S_W}, 13"); a(f"s_add_u32 s{S_GB}, s{S_GB}, {L_GB}")
    a(f"s_mov_b32 s{S_WIN}, {32*12}"); a(f"s_mov_b32 s{S_ROUND}, 1"); a(f"s_mov_b32 s{S_PADB}, {L_PAD}"); a(f"s_mov_b32 s{S_PADE}, {L_PAD+128}")
    a(f"s_lshl_b32 s{S_ACCO}, s2, 3"); a(f"s_add_u32 s{S_ACCO}, s{S_ACCO}, s{S_W}"); a(f"s_lshl_b32 s{S_ACCO}, s{S_ACCO}, 14")
    a(f"s_mul_i32 s{S_SEG}, s{S_W}, {32*CHS}")
    a(f"v_mov_b32 v{FOUR}, 4")
    if TWO:
        a(f"v_and_b32 v12, 15, v{LANE}"); a(f"v_mul_u32_u24 v{I12}, 12, v12"); a(f"v_lshrrev_b32 v12, 4, v{LANE}")
        a(f"v_mul_u32_u24 v{I12H}, {CHS}, v12"); a(f"v_add_u32 v{I12H}, v{I12H}, v{I12}")
        a(f"v_lshlrev_b32 v{BPX}, 2, v12")
    else:
        a(f"v_mul_u32_u24 v{I12}, 12, v9"); a(f"v_mul_u32_u24 v{I12H}, {CHS}, v10"); a(f"v_add_u32 v{I12H}, v{I12H}, v{I12}")
        a(f"v_lshlrev_b32 v{BPX}, 2, v10")
    a(f"s_lshl_b32 s4, s{S_W}, 11"); a(f"s_add_u32 s4, s4, {L_IMG}")
    for j in range(4): a(f"v_mov_b32 v{48+j}, 0")
    a("v_add_u32 v12, s4, v11")
    a("ds_write_b128 v12, v[48:51]"); a("ds_write_b128 v12, v[48:51] offset:1024")
    a(f"v_lshl_add_u32 v{IMGB}, v9, 6, s4")
    a(f"v_bfe_u32 v12, v{LANE}, 2, 2"); a("v_lshl_add_u32 v12, v10, 2, v12"); a("v_lshlrev_b32 v12, 6, v12")
    a(f"v_bfe_u32 v13, v{LANE}, 4, 1"); a("v_lshl_add_u32 v12, v13, 5, v12")
    a(f"v_and_b32 v13, 3, v{LANE}"); a("v_lshl_add_u32 v12, v13, 3, v12")
    a(f"v_add_u32 v{TRA}, s4, v12")
    a(f"v_and_b32 v12, 7, v{LANE}"); a(f"v_bfe_u32 v13, v{LANE}, 4, 1"); a("v_lshlrev_b32 v13, 2, v13"); a("v_xor_b32 v12, v12, v13")
    for j in range(4):
        a(f"v_xor_b32 v13, {j}, v12"); a(f"v_lshlrev_b32 v{COLC+j}, 4, v13")
    a("v_and_b32 v12, 3, v9"); a("v_lshrrev_b32 v13, 2, v9"); a("v_lshl_add_u32 v13, v12, 3, v13"); a("v_lshlrev_b32 v13, 7, v13")
    a(f"v_add_u32 v13, s{S_GB}, v13")
    a("v_bfe_u32 v14, v9, 3, 1"); a("v_lshl_or_b32 v12, v14, 2, v12"); a("v_xor_b32 v12, v12, v10")
    for s in range(4):
        a(f"v_xor_b32 v14, {2*s}, v12"); a(f"v_lshl_add_u32 v{RDA+s}, v14, 4, v13")
    a(f"v_lshrrev_b32 v12, 3, v{LANE}"); a(f"v_lshlrev_b32 v{LANEQ}, 4, v12"); a(f"v_lshlrev_b32 v{LANEE}, 2, v9")
    a(f"v_mov_b32 v12, {hex(PADW)}"); a(f"v_add_u32 v13, s{S_PADB}, v{LANEE}")
    a("ds_write_b32 v13, v12"); a(f"ds_write2st64_b32 v13, v{ZERO}, v{ZERO} offset0:{PO1} offset1:{PO2}")
    a(f"v_mov_b32 v{XR+3}, 0")
    a(f"s_mov_b32 s4, {hex(NLOG2E)}"); a("s_mov_b32 s5, s4")
    a("s_waitcnt vmcnt(8)")
    for j in range(8):
        a(f"v_lshlrev_b32 v{32+2*j}, 16, v{RW+j}"); a(f"v_and_b32 v{33+2*j}, 0xffff0000, v{RW+j}")
    for j in range(8): a(f"v_pk_mul_f32 {vr(32+2*j,2)}, {vr(32+2*j,2)}, s[4:5]")
    for j in range(8): a(f"v_cvt_pk_bf16_f32 v{48+j}, v{32+2*j}, v{33+2*j}")
    a(f"v_add_u32 v16, {L_WF}, v8")
    a("ds_write_b128 v16, v[48:51]")
    for j in range(4):
        a(f"v_lshlrev_b32 v{56+2*j}, 16, v{52+j}"); a(f"v_and_b32 v{57+2*j}, 0xffff0000, v{52+j}")
    for j in range(4): a(f"v_pk_add_f32 {vr(56+2*j,2)}, {vr(40+2*j,2)}, {vr(56+2*j,2)} neg_lo:[0,1] neg_hi:[0,1]")
    for j in range(4): a(f"v_cvt_pk_bf16_f32 v{56+j}, v{56+2*j}, v{57+2*j}")
    a(f"v_add_u32 v16, {L_WF + 16384 - 128}, v11")
    a(f"v_add_u32 v17, {L_WF + 16384 + 512}, v11")
    a("s_mov_b64 exec, 0xff")
    a("ds_write_b128 v17, v[52:55]"); a("ds_write_b128 v17, v[56:59] offset:128")
    a("s_mov_b32 s6, 0xffffff00"); a("s_mov_b32 s7, 0xff0000ff"); a("s_mov_b64 exec, s[6:7]")
    a("ds_write_b128 v16, v[52:55]")
    a("s_mov_b32 s6, 0"); a("s_mov_b32 s7, 0xff000000"); a("s_mov_b64 exec, s[6:7]")
    a("ds_write_b128 v16, v[52:55] offset:128")
    a("s_mov_b64 exec, -1")
    a(f"v_bfe_u32 v18, v{LANE}, 2, 2"); a("v_lshlrev_b32 v16, 7, v18")
    a(f"v_bfe_u32 v18, v{LANE}, 4, 1"); a("v_lshl_add_u32 v16, v18, 5, v16")
    a(f"v_and_b32 v18, 3, v{LANE}"); a("v_lshl_add_u32 v16, v18, 3, v16")
    a(f"v_add_u32 v{VAL}, {L_WF + 16384}, v16")
    a("v_lshl_add_u32 v16, v10, 10, v16"); a(f"v_add_u32 v{VAL+1}, {L_WF}, v16")
    a("s_mov_b32 s5, 200000")
    a("s_memrealtime s[6:7]")
    a("s_waitcnt lgkmcnt(0)")
    a("K_EPW:")
    a(f"v_readfirstlane_b32 s4, v{RW+12}")
    a("s_sub_u32 s7, s6, s4"); a("s_add_u32 s7, s7, 100000")
    a("s_cmp_eq_u32 s4, 0"); a("s_cselect_b32 s7, -1, s7")
    a("s_cmp_lt_u32 s7, 200000"); a("s_cbranch_scc1 K_EPOK")
    a("s_cmp_eq_u32 s4, 0"); a("s_cselect_b32 s7, 1, 64")
    a("s_sub_u32 s5, s5, s7"); a("s_cbranch_scc1 K_EPOK")
    a(f"buffer_load_dword v{RW+12}, v{ZERO}, {sr(S_ACC,4)}, 0 offen sc0 sc1")
    a("s_waitcnt vmcnt(0)")
    a("s_branch K_EPW")
    a("K_EPOK:")
    srd(a, S_ACC, 52, 53, WS_ACC, 256 * 8 * 16384)
    a(f"v_mov_b32 v77, v{RW+12}")
    a("s_lshl_b32 s3, s2, 12"); a(f"s_add_u32 s3, s3, {hex(WS_GRAN)}")
    a("v_lshlrev_b32 v15, 2, v15")
    a(f"s_mov_b32 s4, {hex(TAGK)}")
    a("v_not_b32 v79, v77"); a(f"v_xor_b32 v{PS+2}, s4, v77"); a(f"v_xor_b32 v78, v76, v{PS+2}")
    a(f"v_mov_b32 v{PS}, v77"); a(f"v_mov_b32 v{PS+1}, v79")
    a(f"v_lshlrev_b32 v{IMGA}, 12, v9")
    a(f"s_lshl_b32 s5, s{S_W}, 17"); a(f"s_lshl_b32 s6, s{S_B}, 4"); a("s_add_u32 s5, s5, s6"); a(f"s_add_u32 s{S_T3}, s5, {hex(WS_GRAN)}")
    a("s_waitcnt vmcnt(0) lgkmcnt(0)")
    stamp(a, 5)
    a("s_barrier")
    a(f"s_cmp_ge_u32 s{S_W}, 4")
    a("s_cbranch_scc1 K_NOPUB")
    a(f"buffer_store_dwordx4 v[76:79], v15, {sr(S_REC,4)}, s3 offen sc1")
    a("K_NOPUB:")
    HPF = opt("hpf", 0)
    if HPF:
        a("s_lshr_b32 s3, s2, 3"); a("s_mul_i32 s3, s3, 100000")
        for k in range(HPF):
            a(f"buffer_load_dwordx4 {vr(PD,4)}, v8, {sr(S_H,4)}, s3 offen")
            a("s_add_u32 s3, s3, 8192")
    WT = ACCB0
    for f in range(8):
        for kk in range(2): a(f"ds_read_b64_tr_b16 {vr(WT+4*f+2*kk,2)}, v{VAL+1} offset:{8192 + (f&3)*2048 + kk*512 + (f>>2)*64}")
    a("s_waitcnt lgkmcnt(8)")
    for s in range(4): a(mfma32(ACCA0, A1+4*s, WT + 4*s, 0 if s == 0 else None))
    for nh, b in ((0, BXA0), (1, BXA1), (0, BXB0), (1, BXB1)):
        for kk in range(2): a(f"ds_read_b64_tr_b16 {vr(b+2*kk,2)}, v{VAL} offset:{kk*512 + nh*64}")
    a("s_waitcnt lgkmcnt(8)")
    for s in range(4): a(mfma32(ACCA1, A1+4*s, WT + 16 + 4*s, 0 if s == 0 else None))
    a("s_waitcnt lgkmcnt(0)")
    for f in range(8):
        for kk in range(2): a(f"ds_read_b64_tr_b16 {vr(W2F+4*f+2*kk,2)}, v{VAL+1} offset:{(f&3)*2048 + kk*512 + (f>>2)*64}")
    a(f"s_mov_b32 s4, {hex(NLOG2E)}"); a("s_mov_b32 s5, s4")
    a(f"s_mov_b64 exec, {sr(S_LO,2)}")
    for nh, d, ba, bb in ((0, ACCA0, BXA0, BXB0), (1, ACCA1, BXA1, BXB1)):
        for j in range(8): a(f"v_pk_mul_f32 {vr(d+2*j,2)}, {vr(d+2*j,2)}, s[4:5]")
        for j in range(4):
            a(f"v_cvt_pk_bf16_f32 v{ba+j}, v{d+2*j}, v{d+2*j+1}")
            a(f"v_cvt_pk_bf16_f32 v{bb+j}, v{d+8+2*j}, v{d+8+2*j+1}")
    a("s_mov_b64 exec, -1")
    for i in range(64): a(f"v_mov_b32 v{ACCA0+i}, 0")
    stamp(a, 22)
    a(f"v_and_b32 v12, 7, v{LANE}"); a(f"v_and_b32 v13, 8, v{LANE}")
    node_sel(a, "v_cmp_eq_u32 vcc, 0, v13", 13, 14, 15)
    a("v_cmp_lt_u32 vcc, v12, v14")
    a("v_add_u32 v13, v13, v12"); a("v_lshlrev_b32 v13, 7, v13")
    a(f"v_lshrrev_b32 v14, 4, v{LANE}"); a("v_lshl_add_u32 v13, v14, 5, v13")
    a(f"v_mov_b32 v15, {hex(HUGE)}")
    a(f"v_cndmask_b32 v{HA}, v15, v13, vcc")
    a(f"v_bfe_u32 v12, v{LANE}, 2, 2"); a(f"v_lshrrev_b32 v13, 5, v{LANE}"); a("v_lshl_add_u32 v12, v12, 1, v13")
    a(f"v_and_b32 v13, 16, v{LANE}")
    node_sel(a, "v_cmp_eq_u32 vcc, 0, v13", 13, 14, 15)
    a("v_cmp_lt_u32 vcc, v12, v14")
    a("v_add_u32 v13, v13, v12"); a("v_mul_u32_u24 v13, 6, v13")
    a(f"v_and_b32 v14, 3, v{LANE}"); a("v_lshl_add_u32 v13, v14, 1, v13")
    a(f"v_cmp_gt_u32 {sr(S_T0,2)}, 3, v14")
    a(f"v_mov_b32 v15, {hex(HUGE)}")
    a(f"s_and_b64 vcc, vcc, {sr(S_T0,2)}")
    a(f"v_cndmask_b32 v{PA}, v15, v13, vcc")
    a(f"buffer_load_dwordx4 {vr(HB,4)}, v{HA}, {sr(S_H,4)}, 0 offen")
    a(f"buffer_load_dwordx4 {vr(HB+4,4)}, v{HA}, {sr(S_H,4)}, 0 offen offset:16")
    a(f"v_lshrrev_b32 v16, 1, v{LANEE}")
    a(f"buffer_load_ushort v{D2}, v16, {sr(S_WX,4)}, 0 offen")
    a(f"buffer_load_ushort v{WX1}, v16, {sr(S_WX,4)}, 0 offen offset:64")
    a(f"buffer_load_ushort v{PV}, v{PA}, {sr(S_POS,4)}, 0 offen")
    VL = S8
    a(f"v_mov_b32 v{SW}, 0"); a("v_mov_b32 v0, 0"); a(f"v_mov_b32 v{VL}, 0")
    a(f"s_mov_b32 s{S_PEND}, -1"); a(f"s_mov_b32 s{S_PEND+1}, 0"); a(f"s_mov_b32 s{S_LEFT}, 0")
    a(f"s_mov_b32 s{S_SPIN}, {opt('spin', 200000)}")
    a(f"s_mov_b32 s{S_SUB}, 0")
    a("s_waitcnt lgkmcnt(0)")
    if EARLY: a("s_barrier")
    if opt("pdel", 0): a(f"s_sleep {opt('pdel', 0)}")
    a("K_POLL:")
    a(f"s_mov_b64 exec, {sr(S_PEND,2)}")
    a(f"buffer_load_dwordx4 {vr(PD,4)}, v{IMGA}, {sr(S_REC,4)}, s{S_T3} offen sc1")
    a("s_waitcnt vmcnt(0)")
    a(f"v_xor_b32 v{PD+2}, v{PD}, v{PD+2}")
    a(f"v_cmp_eq_u32 vcc, v{PD+1}, v{PS}"); a(f"v_cmp_eq_u32 s[60:61], v{PD+3}, v{PS+1}"); a(f"v_cmp_eq_u32 s[58:59], v{PD+2}, v{PS+2}")
    a("s_and_b64 vcc, vcc, s[60:61]"); a("s_and_b64 vcc, vcc, s[58:59]")
    a(f"v_cndmask_b32 v{SW}, v{SW}, v{PD}, vcc")
    a(f"v_cndmask_b32 v0, v0, v{PD}, vcc")
    a("s_mov_b64 exec, -1")
    a(f"s_andn2_b32 s{S_PEND}, s{S_PEND}, vcc_lo")
    a("s_cbranch_scc0 K_ALLIN")
    a(f"s_bcnt1_i32_b32 s4, s{S_PEND}")
    a(f"s_cmp_le_u32 s4, {opt('pth', 0)}")
    a("s_cbranch_scc0 K_PWAIT")
    a("v_cmp_ne_u32 vcc, 0, v0")
    a("s_cmp_lg_u32 vcc_lo, 0")
    a("s_cbranch_scc1 K_ROUND")
    a("K_PWAIT:")
    a(f"s_sub_u32 s{S_SPIN}, s{S_SPIN}, 1")
    a(f"s_cmp_eq_u32 s{S_SPIN}, 0")
    a(f"s_cselect_b32 s{S_PEND}, 0, s{S_PEND}")
    a("s_cbranch_scc1 K_ALLIN")
    if opt("slp", 0): a(f"s_sleep {opt('slp', 0)}")
    a("s_branch K_POLL")
    a("K_ALLIN:")
    a(f"v_mov_b32 v{WX0}, v{D2}")
    if STAMP and STAMP != 4: a(f"v_writelane_b32 v255, s{S_SPIN}, 15")
    stamp(a, 6)
    a("s_branch K_ROUND")
    a("K_RESET:")
    a(f"s_mov_b32 s{S_SPIN}, -1")
    cursor_init(a)
    a(f"v_mov_b32 v0, v{SW}")
    a(f"s_mov_b32 s{S_SUB}, 1")
    a("s_waitcnt lgkmcnt(0)")
    a("s_barrier")
    if TWO:
        a("K_ROUND:")
        NP = 12
        for p in range(8): a(f"ds_bpermute_b32 v{16+4*p+3}, v{BPX}, v0 offset:{16*p}")
        a(f"s_min_u32 s4, s{S_WIN}, 192")
        a(f"v_lshrrev_b32 v{ADQ}, 16, v0")
        a(f"v_min_u32 v{ADQ}, s4, v{ADQ}")
        a(f"v_add_u32 v67, v0, v{ADQ}"); a(f"v_lshlrev_b32 v{ADQ}, 16, v{ADQ}"); a(f"v_sub_u32 v67, v67, v{ADQ}")
        a("v_cmp_lt_u32 vcc, 0xffff, v67")
        a(f"s_cmp_gt_u32 s{S_WIN}, 192"); a("s_cselect_b32 vcc_lo, vcc_lo, 0")
        a("v_mbcnt_lo_u32_b32 v64, vcc_lo, 0")
        a("v_cmp_gt_u32 s[6:7], 16, v64")
        a("v_lshlrev_b32 v64, 2, v64"); a("v_mov_b32 v65, 252")
        a("s_and_b64 vcc, vcc, s[6:7]")
        a("v_cndmask_b32 v64, v65, v64, vcc")
        a(f"v_mul_u32_u24 v65, {CHS}, v{LANE}")
        a("v_cndmask_b32 v66, 0, v67, vcc")
        a("ds_permute_b32 v66, v64, v66"); a("ds_permute_b32 v65, v64, v65")
        a(f"v_lshrrev_b32 v{ADQ}, 16, v67"); a(f"v_min_u32 v{ADQ}, 192, v{ADQ}"); a(f"v_cndmask_b32 v{ADQ}, 0, v{ADQ}, vcc")
        a(f"v_add_u32 v67, v67, v{ADQ}"); a(f"v_lshlrev_b32 v{ADQ}, 16, v{ADQ}"); a(f"v_sub_u32 v67, v67, v{ADQ}")
        a("v_cmp_lt_u32 vcc, 0xffff, v67")
        a(f"s_mov_b32 s3, s{S_SEG}")
        a(f"s_mov_b32 s{S_MORE}, vcc_lo")
        a(f"v_cndmask_b32 v{VL}, v{VL}, v67, vcc")
        for p in range(8):
            r = 16 + 4*p
            if p < 2: a(f"s_waitcnt lgkmcnt({9-p})")
            a(f"v_cmp_lt_u32_sdwa {sr(S_MASK+2*p,2)}, v{I12}, v{r+3} src0_sel:DWORD src1_sel:WORD_1")
            a(f"v_add_u32_sdwa v{r+3}, v{r+3}, v{I12H} dst_sel:DWORD dst_unused:UNUSED_PAD src0_sel:WORD_0 src1_sel:DWORD")
            a(f"s_or_b64 exec, {sr(S_MASK+2*p,2)}, 1")
            a(f"buffer_load_dwordx3 {vr(r,3)}, v{r+3}, {sr(S_REC,4)}, s3 offen sc1")
            a("s_mov_b64 exec, -1")
            a(f"s_add_u32 s3, s3, {4*CHS}")
            if p == 1:
                a("s_waitcnt lgkmcnt(0)")
                a("v_mov_b32 v0, v67")
                for q in range(4):
                    a(f"ds_bpermute_b32 v{48+4*q+3}, v{BPX}, v66 offset:{16*q}"); a(f"ds_bpermute_b32 v{68+q}, v{BPX}, v65 offset:{16*q}")
        a("s_waitcnt lgkmcnt(0)")
        for p in range(8, 12):
            r = 16 + 4*p
            a(f"v_cmp_lt_u32_sdwa {sr(S_MASK+2*p,2)}, v{I12}, v{r+3} src0_sel:DWORD src1_sel:WORD_1")
            a(f"v_and_b32 v{r+3}, 0xffff, v{r+3}"); a(f"v_add3_u32 v{r+3}, v{r+3}, v{68+p-8}, v{I12}")
            a(f"s_or_b64 exec, {sr(S_MASK+2*p,2)}, 1")
            a(f"buffer_load_dwordx3 {vr(r,3)}, v{r+3}, {sr(S_REC,4)}, s{S_SEG} offen sc1")
            a("s_mov_b64 exec, -1")
        stamp(a, 7)
        for p in range(NP):
            r = 16 + 4*p
            a(f"s_waitcnt vmcnt({NP-1-p})")
            a(f"s_mov_b64 exec, {sr(S_MASK+2*p,2)}")
            a(f"v_bfe_u32 v{r+3}, v{r+2}, 22, 6")
            a(f"ds_add_rtn_u32 v{r+3}, v{r+3}, v{FOUR}")
            if p % 4 == 3:
                a("s_waitcnt lgkmcnt(0)")
                for q in range(p-3, p+1):
                    rq = 16 + 4*q
                    a(f"s_mov_b64 exec, {sr(S_MASK+2*q,2)}")
                    a(f"ds_write_b32 v{rq+3}, v{rq+2}")
                    a(f"ds_write2st64_b32 v{rq+3}, v{rq}, v{rq+1} offset0:{PO1} offset1:{PO2}")
        a("s_mov_b64 exec, -1")
    else:
        a("K_ROUND:")
        for p in range(16): a(f"ds_bpermute_b32 v{16+4*p+3}, v{BPX}, v0 offset:{8*p}")
        a(f"s_mov_b32 s3, s{S_SEG}")
        for p in range(16):
            r = 16 + 4*p
            a(f"s_waitcnt lgkmcnt({15-p})")
            a(f"v_cmp_lt_u32_sdwa {sr(S_MASK+2*p,2)}, v{I12}, v{r+3} src0_sel:DWORD src1_sel:WORD_1")
            a(f"v_add_u32_sdwa v{r+3}, v{r+3}, v{I12H} dst_sel:DWORD dst_unused:UNUSED_PAD src0_sel:WORD_0 src1_sel:DWORD")
            a(f"s_or_b64 exec, {sr(S_MASK+2*p,2)}, 1")
            a(f"buffer_load_dwordx3 {vr(r,3)}, v{r+3}, {sr(S_REC,4)}, s3 offen {opt('ldp', 'sc1').replace('+', ' ')}")
            a("s_mov_b64 exec, -1")
            a(f"s_add_u32 s3, s3, {2*CHS}")
        stamp(a, 7)
        a(f"v_lshrrev_b32 v{ADQ}, 16, v0")
        a(f"v_cmp_lt_u32 vcc, s{S_WIN}, v{ADQ}")
        a(f"v_min_u32 v{ADQ}, s{S_WIN}, v{ADQ}")
        a(f"v_add_u32 v0, v0, v{ADQ}"); a(f"v_lshlrev_b32 v{ADQ}, 16, v{ADQ}"); a(f"v_sub_u32 v0, v0, v{ADQ}")
        a(f"s_mov_b32 s{S_MORE}, vcc_lo")
        a(f"v_cndmask_b32 v{VL}, v{VL}, v0, vcc")
        for p in range(16):
            r = 16 + 4*p
            a(f"s_waitcnt vmcnt({15-p + min(p, NPF)})")
            a(f"s_mov_b64 exec, {sr(S_MASK+2*p,2)}")
            a(f"v_bfe_u32 v{r+3}, v{r+2}, 22, 6")
            a(f"ds_add_rtn_u32 v{r+3}, v{r+3}, v{FOUR}")
            if p < NPF:
                a(f"v_and_b32 v{ADQ}, s{S_GM}, v{r+2}")
                a(f"s_or_b64 exec, {sr(S_MASK+2*p,2)}, 1")
                a(f"buffer_load_dword v{S16}, v{ADQ}, {sr(S_H,4)}, 0 offen")
            if p % 4 == 3:
                a("s_waitcnt lgkmcnt(0)")
                for q in range(p-3, p+1):
                    rq = 16 + 4*q
                    a(f"s_mov_b64 exec, {sr(S_MASK+2*q,2)}")
                    a(f"ds_write_b32 v{rq+3}, v{rq+2}")
                    a(f"ds_write2st64_b32 v{rq+3}, v{rq}, v{rq+1} offset0:{PO1} offset1:{PO2}")
        a("s_mov_b64 exec, -1")
    a(f"s_cmp_lg_u32 s{S_SUB}, 0")
    a("s_cbranch_scc1 K_LAST")
    a(f"s_or_b32 s{S_LEFT}, s{S_LEFT}, s{S_MORE}")
    a("v_mov_b32 v0, 0")
    a(f"s_cmp_lg_u32 s{S_PEND}, 0")
    a("s_cbranch_scc1 K_POLL")
    a(f"s_cmp_eq_u32 s{S_LEFT}, 0")
    a("s_cbranch_scc1 K_BINNED")
    a(f"v_mov_b32 v0, v{VL}")
    a(f"s_mov_b32 s{S_SUB}, 1")
    a("s_branch K_ROUND")
    a("K_LAST:")
    a(f"s_cmp_eq_u32 s{S_MORE}, 0")
    a("s_cbranch_scc1 K_BINNED")
    a(f"v_mov_b32 v{ADQ}, {L_FLAG}")
    a(f"ds_write_b32 v{ADQ}, v{FOUR}")
    a("K_BINNED:")
    stamp(a, 8)
    for j in range(4): srd(a, S_HJ+4*j, S_H, S_H+1, -1024*j, 3200000 + 1024*j)
    for i in range(16): a(f"v_mov_b32 v{MP+i}, 0")
    a(f"v_lshlrev_b32 v17, 2, v{LANE}")
    a(f"s_mov_b32 s4, s{S_W}"); a("s_add_u32 s5, s4, 8")
    a("s_xor_b32 s48, s4, 4"); a("s_xor_b32 s49, s5, 4")
    a(f"v_readlane_b32 s{S_NEXT}, v{CURB}, s4"); a(f"v_readlane_b32 s{S_JUMP}, v{CURB}, s5")
    a(f"v_mov_b32 v19, {hex(PADW)}")
    a(f"s_mov_b32 s{S_TBL}, s{S_TBLA}")
    WQ2 = 20
    if EARLY:
        a(f"s_mov_b32 s{S_EARLY}, 0")
        a(f"s_cmp_lg_u32 s{S_SPIN}, -1"); a("s_cbranch_scc0 K_NOEARLY")
        a(f"v_add_u32 v18, s{S_NEXT}, v17")
        a("ds_read_b32 v16, v18")
        a(f"v_add_u32 v{ADQ}, s{S_NEXT}, v{LANEQ}"); a(f"v_add_u32 v{ADE}, s{S_NEXT}, v{LANEE}"); a(f"v_add_u32 v{ADE+1}, 128, v{ADE}")
        a(f"ds_read_b128 {vr(WQ2,4)}, v{ADQ}"); a(f"ds_read_b32 v{W2E}, v{ADE}")
        a(f"ds_read_b128 {vr(WQ,4)}, v{ADQ} offset:128"); a(f"ds_read_b32 v{W2E+1}, v{ADE+1}")
        a("s_waitcnt lgkmcnt(4)")
        a("v_cmp_ne_u32 vcc, -1, v16")
        a("s_cmp_eq_u64 vcc, -1"); a("s_cbranch_scc0 K_NOEARLY")
        a(f"s_mov_b32 s{S_EARLY}, 1")
        a("s_waitcnt lgkmcnt(0)")
        for t in g_addr(WQ2) + g_m0(0) + ["s_nop 0"]: a(t)
        for t in g_dma(WQ2): a(t)
        a(f"v_bfe_u32 v{PIX}, v{W2E}, 7, 15"); a(f"v_mul_u32_u24 v{PIX}, 6, v{PIX}")
        for k in range(3): a(f"v_mov_b32 v{PS+k}, 0")
        a(f"s_mov_b64 exec, {sr(S_HI,2)}")
        for k in range(3): a(f"buffer_load_short_d16_hi v{PS+k}, v{PIX}, {sr(S_POS,4)}, 0 offen offset:{2*k}")
        a("s_mov_b64 exec, -1")
        if not G1P:
            for t in g_addr() + g_m0(1) + ["s_nop 0"] + g_dma(): a(t)
        a("K_NOEARLY:")
    a("s_waitcnt lgkmcnt(0)")
    a("s_barrier")
    if EARLY and G1P:
        a(f"s_cmp_eq_u32 s{S_EARLY}, 0"); a("s_cbranch_scc1 K_NOG1")
        for t in g_addr() + g_m0(1) + ["s_nop 0"] + g_dma(): a(t)
        a("K_NOG1:")
    stamp(a, 19)
    a("ds_read_b32 v16, v17")
    a("s_waitcnt lgkmcnt(0)")
    a(f"v_cmp_gt_u32 vcc, v16, v{CURL}")
    a(f"v_sub_u32 v18, v16, v{CURB}"); a("v_add_u32 v18, 127, v18"); a("v_lshrrev_b32 v18, 7, v18")
    a("v_med3_u32 v18, v18, 1, 10")
    a(f"v_sub_u32 v24, v16, v{CURB}"); a(f"v_add_u32 v24, {opt('fq', 64)}, v24"); a("v_lshrrev_b32 v24, 5, v24")
    a(f"v_readlane_b32 s{S_T0}, v16, s4"); a(f"v_readlane_b32 s{S_T1}, v16, s5"); a(f"v_readlane_b32 s{S_MORE}, v16, 16")
    a(f"v_readlane_b32 s{S_REM}, v18, s4"); a(f"v_readlane_b32 s{S_TB}, v18, s5")
    a("v_readlane_b32 s50, v24, s48"); a("v_readlane_b32 s51, v24, s49")
    a("v_readlane_b32 s54, v24, s4"); a("v_readlane_b32 s55, v24, s5")
    a("s_and_b32 s6, vcc_lo, 0xffff")
    a("s_cbranch_scc0 K_FITS")
    a(f"s_cmp_le_u32 s{S_WIN}, 12")
    a("s_cbranch_scc1 K_FITS")
    a("s_barrier")
    a(f"s_lshr_b32 s{S_WIN}, s{S_WIN}, 1")
    a(f"v_mov_b32 v16, {hex(HUGE)}")
    a(f"v_cmp_gt_u32 vcc, s{S_WIN}, v{I12}")
    a(f"v_cndmask_b32 v{I12}, v16, v{I12}, vcc")
    a("s_waitcnt vmcnt(0)")
    a("s_branch K_RESET")
    a("K_FITS:")
    a(f"s_lshl_b32 s4, s{S_REM}, 7"); a(f"s_add_u32 s{S_END}, s4, s{S_NEXT}")
    a(f"s_lshl_b32 s5, s{S_TB}, 7"); a(f"s_add_u32 s{S_END2}, s5, s{S_JUMP}")
    G = 5 if opt("quart", 1) else 6
    for end, cur, d in ((S_END, S_T0, S_QA), (S_END2, S_T1, S_HB)):
        a(f"s_sub_u32 s4, s{end}, s{cur}"); a(f"s_lshr_b32 s4, s4, {G}"); a(f"s_lshl_b32 s4, s4, {G-3}")
        a(f"s_sub_u32 s{d}, 16, s4"); a(f"s_max_u32 s{d}, s{d}, {1 << (G-3)}")
    a(f"s_cmp_lt_u32 s{S_QA}, 16"); a(f"s_cselect_b32 s{S_HA}, 1, -1")
    for cur, end, m in ((S_T0, S_END, S_LO), (S_T1, S_END2, S_HI)):
        a(f"v_add_u32 v16, s{cur}, v{LANEE}")
        a(f"v_cmp_gt_u32 vcc, s{end}, v16")
        a(f"s_and_b64 exec, vcc, {sr(m,2)}")
        a("ds_write_b32 v16, v19")
        a(f"ds_write2st64_b32 v16, v{ZERO}, v{ZERO} offset0:{PO1} offset1:{PO2}")
        a("s_mov_b64 exec, -1")
    a(f"v_mov_b32 v{SW}, v0")
    a("s_add_u32 s50, s50, s51"); a("s_add_u32 s51, s54, s55")
    a(f"s_mul_i32 s50, s50, {opt('fa', 125)}"); a(f"s_mul_i32 s51, s51, {opt('fb', 51)}"); a("s_sub_i32 s50, s50, s51"); a(f"s_add_i32 s50, s50, {opt('fc', 128)}")
    a("s_ashr_i32 s50, s50, 9"); a("s_max_i32 s50, s50, 0")
    a("s_lshr_b32 s51, s50, 1")
    a(f"s_sub_i32 s{S_FLIP}, s{S_REM}, s51"); a(f"s_sub_i32 s{S_FLIP}, s{S_FLIP}, 1"); a(f"s_max_i32 s{S_FLIP}, s{S_FLIP}, 0")
    a(f"s_cmp_lt_u32 s{S_W}, 4"); a(f"s_cselect_b32 s{S_FLIP}, -1, s{S_FLIP}")
    a(f"s_mov_b32 s{S_FLIP2}, s{S_FLIP}")
    a("s_bitcmp1_b32 s50, 0"); a(f"s_cselect_b32 s{S_FLIP}, -1, s{S_FLIP}")
    if EARLY:
        a(f"s_cmp_eq_u32 s{S_EARLY}, 0"); a("s_cbranch_scc1 K_LATEG")
        a(f"s_add_u32 s{S_NEXT}, s{S_NEXT}, 128")
        for t in gstate(): a(t)
        a("s_branch K_GDONE")
        a("K_LATEG:")
    for t in g_reads(0, WQ2) + g_reads(1): a(t)
    a("s_waitcnt lgkmcnt(2)")
    if not EARLY: a(f"v_bfe_u32 v{PIX}, v{W2E}, 7, 15")
    for t in g_addr(WQ2) + g_m0(0) + ["s_nop 0"]: a(t)
    if not EARLY: a(f"s_mov_b64 exec, {sr(S_HI,2)}"); a(pos_gather()); a("s_mov_b64 exec, -1")
    for t in g_dma(WQ2): a(t)
    if EARLY:
        a(f"v_bfe_u32 v{PIX}, v{W2E}, 7, 15"); a(f"v_mul_u32_u24 v{PIX}, 6, v{PIX}")
        for k in range(3): a(f"v_mov_b32 v{PS+k}, 0")
        a(f"s_mov_b64 exec, {sr(S_HI,2)}")
        for k in range(3): a(f"buffer_load_short_d16_hi v{PS+k}, v{PIX}, {sr(S_POS,4)}, 0 offen offset:{2*k}")
        a("s_mov_b64 exec, -1")
    a("s_waitcnt lgkmcnt(0)")
    if opt("g1late", 0): a("s_barrier")
    for t in g_addr() + g_m0(1) + ["s_nop 0"] + g_dma(): a(t)
    a("K_GDONE:")
    stamp(a, 20)
    a(f"s_cmp_eq_u32 s{S_ROUND}, 1")
    a("s_cbranch_scc1 K_FILL2")
    a(f"v_lshlrev_b32 v16, 4, v{LANE}")
    a(f"s_mov_b32 s3, s{S_ACCO}")
    for i in range(16):
        a(f"buffer_load_dwordx4 {vr(ACCA0+4*i,4)}, v16, {sr(S_ACC,4)}, s3 offen offset:{(i%4)*1024} sc0 sc1")
        if i % 4 == 3: a("s_add_u32 s3, s3, 4096")
    a("s_waitcnt vmcnt(0)")
    a("K_FILL2:")
    for t in e_head(0): a(t)
    a("s_waitcnt vmcnt(4) lgkmcnt(0)")
    stamp(a, 21)
    for t in a1_reads(0) + e_sect(0, zero=False) + g_reads(0): a(t)
    a("s_waitcnt lgkmcnt(5)")
    a(mfma32(D0, A1, W2F, 0))
    for s in range(1, 4): a(mfma32(D0, A1+4*s, W2F+4*s))
    a("s_waitcnt lgkmcnt(0)")
    a(mfma32(D0, XR, BXA0))
    for t in g_addr() + g_m0(0) + ["s_nop 0"] + g_dma(): a(t)
    a("s_nop 3")
    stamp(a, 9); stamp(a, 10, True)
    if STAMP and STAMP != 4: a(f"v_writelane_b32 v255, s{S_REM}, 12"); a(f"v_writelane_b32 v255, s{S_TB}, 13"); a("s_mov_b32 s5, 24")
    HALF = opt("half", 1)
    a("K_XA0:")
    if HALF: a(f"s_cmp_eq_u32 s{S_REM}, s{S_HA}"); a("s_cbranch_scc1 K_XAH0")
    phase_x(a, 0, ACCA1, BXA1, True)
    a(f"s_cmp_eq_u32 s{S_REM}, 0"); a("s_cbranch_scc1 K_YT0")
    phase_y(a, 0, ACCA0, BXA0)
    if HALF: a(f"s_cmp_eq_u32 s{S_REM}, s{S_HA}"); a("s_cbranch_scc1 K_XAH1")
    phase_x(a, 1, ACCA1, BXA1, True)
    a(f"s_cmp_eq_u32 s{S_REM}, 0"); a("s_cbranch_scc1 K_YT1")
    phase_y(a, 1, ACCA0, BXA0)
    a("s_branch K_XA0")
    NS = (12, 8, 4) if opt("quart", 1) else (8,)
    if HALF:
        for p in (0, 1):
            a(f"K_XAH{p}:")
            for n in NS[:-1]:
                a(f"s_cmp_eq_u32 s{S_QA}, {n}"); a(f"s_cbranch_scc1 K_XAH{p}_{n}")
            for n in reversed(NS):
                a(f"K_XAH{p}_{n}:")
                phase_x(a, p, ACCA1, BXA1, True, n=n)
                phase_y(a, p, ACCA0, BXB0, n=n)
                a("s_nop 10"); a(f"s_branch K_XT{1-p}")
    a("K_YT0:")
    phase_y(a, 0, ACCA0, BXB0)
    a("K_XT1:")
    phase_x(a, 1, ACCA1, BXB1, False)
    a("s_branch K_YB1")
    a("K_YT1:")
    phase_y(a, 1, ACCA0, BXB0)
    a("K_XT0:")
    phase_x(a, 0, ACCA1, BXB1, False)
    a("K_YB0:")
    phase_y(a, 0, ACCB0, BXB0)
    a(f"s_sub_u32 s{S_TB}, s{S_TB}, 1"); a(f"s_cmp_le_u32 s{S_TB}, {HALF}"); a("s_cbranch_scc1 K_TAIL")
    phase_x(a, 1, ACCB1, BXB1, False)
    a("K_YB1:")
    phase_y(a, 1, ACCB0, BXB0)
    a(f"s_sub_u32 s{S_TB}, s{S_TB}, 1"); a(f"s_cmp_le_u32 s{S_TB}, {HALF}"); a("s_cbranch_scc1 K_TAIL")
    phase_x(a, 0, ACCB1, BXB1, False)
    a("s_branch K_YB0")
    a("K_TAIL:")
    if HALF:
        a(f"s_cmp_eq_u32 s{S_TB}, 0"); a("s_cbranch_scc1 K_DRAIN")
        for n in NS:
            a(f"s_cmp_eq_u32 s{S_HB}, {n}"); a(f"s_cbranch_scc1 K_TAIL{n}")
        for n in (16,) + NS:
            a(f"K_TAIL{n}:")
            phase_x(a, 0, ACCB1, BXB1, False, n=n, last=True)
            phase_y(a, 0, ACCB0, BXB0, n=n, last=True)
            if n != NS[-1]: a("s_nop 0"); a("s_branch K_DRAIN")
    a("K_DRAIN:")
    a(mfma32(ACCB1, A2, MP))
    a(mfma32(ACCB1, A2+4, MP+4))
    stamp(a, 16); stamp(a, 11, True)
    a(f"s_cmp_eq_u32 s{S_MORE}, 0")
    a("s_cbranch_scc1 K_EPI")
    a("s_setprio 0")
    a(f"s_mov_b64 exec, {sr(S_HI,2)}"); a(f"ds_write_b64 v{IMGA}, {vr(ZERO,2)}"); a("s_mov_b64 exec, -1")
    a(f"v_lshlrev_b32 v16, 4, v{LANE}")
    a(f"s_mov_b32 s3, s{S_ACCO}")
    a("s_nop 7")
    for i in range(16):
        a(f"buffer_store_dwordx4 {vr(ACCA0+4*i,4)}, v16, {sr(S_ACC,4)}, s3 offen offset:{(i%4)*1024} sc0 sc1")
        if i % 4 == 3: a("s_add_u32 s3, s3, 4096")
    a(f"s_mov_b32 s{S_ROUND}, 2")
    a("s_waitcnt vmcnt(0) lgkmcnt(0)")
    a("s_barrier")
    a("s_branch K_RESET")
    a("K_EPI:")
    whf = lambda f: (16 + 4*f) if f < 12 else (80 + 4*(f-12))
    MB = 108; DO = 116; AD = 100
    a(f"v_lshrrev_b32 v{AD}, 4, v{LANE}"); a(f"v_lshlrev_b32 v{AD}, 4, v{AD}")
    a(f"v_bfe_u32 v{AD+1}, v{LANE}, 2, 2"); a(f"v_add_u32 v{AD}, v{AD}, v{AD+1}"); a(f"v_lshlrev_b32 v{AD}, 7, v{AD}")
    a(f"v_and_b32 v{AD+1}, 3, v{LANE}"); a(f"v_lshl_add_u32 v{AD}, v{AD+1}, 5, v{AD}"); a(f"v_add_u32 v{AD}, {L_WH}, v{AD}")
    a(f"s_mov_b32 s4, {hex(NLN2)}")
    a(f"v_lshrrev_b32 v{AD+2}, 5, v{LANE}"); a(f"v_lshlrev_b32 v{AD+2}, 7, v{AD+2}"); a(f"v_lshrrev_b32 v{AD+3}, 1, v{LANEE}")
    a(f"s_lshl_b32 s5, s{S_W}, 11"); a(f"s_add_u32 s5, s5, {L_IMG}")
    a(f"v_add3_u32 v{AD+2}, v{AD+2}, v{AD+3}, s5")
    a(f"v_and_b32 v{AD+3}, 15, v{LANE}"); a(f"v_lshlrev_b32 v{AD+3}, 7, v{AD+3}"); a(f"v_lshrrev_b32 v{AD+4}, 4, v{LANE}")
    a(f"v_lshl_add_u32 v{AD+3}, v{AD+4}, 5, v{AD+3}"); a(f"v_add_u32 v{AD+3}, s5, v{AD+3}")
    for s in range(4):
        for t in range(4):
            for kk in range(2):
                a(f"ds_read_b64_tr_b16 {vr(whf(t*4+s)+2*kk,2)}, v{AD} offset:{(s>>1)*8192 + (s&1)*1024 + kk*512 + t*8}")
        g, (c0, c1) = list(enumerate(((ACCA0, ACCA1), (ACCB0, ACCB1))))[s >> 1]
        for q in range(2*(s&1), 2*(s&1)+2):
            a(f"v_mul_f32 v{c0+4*q}, s4, v{c0+4*q}"); a(f"v_mul_f32 v{c1+4*q}, s4, v{c1+4*q}")
            a(f"v_cvt_pk_bf16_f32 v{c0+4*q}, v{c0+4*q}, v{c1+4*q}")
            a(f"ds_write_b16 v{AD+2}, v{c0+4*q} offset:{g*1024 + q*256}")
            a(f"ds_write_b16_d16_hi v{AD+2}, v{c0+4*q} offset:{g*1024 + q*256 + 64}")
    a(f"ds_read_b128 {vr(MB,4)}, v{AD+3}"); a(f"ds_read_b128 {vr(MB+4,4)}, v{AD+3} offset:16")
    for w in (WX0, WX1): a(f"v_lshlrev_b32 v{w}, 16, v{w}"); a(f"v_mul_f32 v{w}, s4, v{w}")
    for (c0, c1) in ((ACCA0, ACCA1), (ACCB0, ACCB1)):
        for q in range(4):
            for k in (1, 2, 3):
                a(f"v_mul_f32 v{c0+4*q+k}, v{WX0}, v{c0+4*q+k}"); a(f"v_fmac_f32 v{c0+4*q+k}, v{WX1}, v{c1+4*q+k}")
    a("s_waitcnt lgkmcnt(0)")
    bsrc = (HB, HB+4, MB, MB+4)
    mf = []
    for s in range(4):
        for t in range(4):
            c = "0" if s == 0 else vr(DO+4*t, 4)
            mf.append(f"v_mfma_f32_16x16x32_bf16 {vr(DO+4*t,4)}, {vr(whf(t*4+s),4)}, {vr(bsrc[s],4)}, {c}")
    red = []
    for q in range(4):
        for k in (1, 2, 3): red.append(f"v_permlane16_swap_b32 v{ACCA0+4*q+k}, v{ACCB0+4*q+k}")
    for q in range(4):
        for k in (1, 2, 3): red.append(f"v_add_f32 v{ACCA0+4*q+k}, v{ACCA0+4*q+k}, v{ACCB0+4*q+k}")
    for q in range(2):
        for k in (1, 2, 3):
            red.append(f"v_add_f32_dpp v{ACCA1+4*q+k}, v{ACCA0+4*q+k}, v{ACCA0+4*q+k} row_ror:8 row_mask:0xf bank_mask:0x3")
            red.append(f"v_add_f32_dpp v{ACCA1+4*q+k}, v{ACCA0+4*q+8+k}, v{ACCA0+4*q+8+k} row_ror:8 row_mask:0xf bank_mask:0xc")
    for i, m in enumerate(mf):
        a(m)
        for t in red[2*i:2*i+2]: a(t)
    for t in red[32:]: a(t)
    for k in (1, 2, 3):
        a(f"v_add_f32_dpp v{ACCB1+k}, v{ACCA1+k}, v{ACCA1+k} row_shl:4 row_mask:0xf bank_mask:0x5")
        a(f"v_add_f32_dpp v{ACCB1+k}, v{ACCA1+4+k}, v{ACCA1+4+k} row_shr:4 row_mask:0xf bank_mask:0xa")
    for perm in ("[1,0,3,2]", "[2,3,0,1]"):
        for k in (1, 2, 3): a(f"v_add_f32_dpp v{ACCB1+k}, v{ACCB1+k}, v{ACCB1+k} quad_perm:{perm} row_mask:0xf bank_mask:0xf")
    a(f"v_cmp_eq_u32 vcc, 1, v{AD+1}"); a(f"v_lshlrev_b32 v{PV}, 16, v{PV}"); a(f"s_mov_b32 s4, {hex(NLOG2E)}")
    a(f"v_cndmask_b32 v{AD+5}, v{ACCB1+1}, v{ACCB1+2}, vcc")
    a(f"v_cmp_eq_u32 vcc, 2, v{AD+1}"); a("s_mov_b32 s5, s4"); a("s_mov_b32 s3, 3200000")
    a(f"v_cndmask_b32 v{AD+5}, v{AD+5}, v{ACCB1+3}, vcc")
    a(f"v_add_f32 v{AD+5}, v{AD+5}, v{PV}"); a(f"v_cvt_pk_bf16_f32 v{AD+5}, v{AD+5}, v{AD+5}")
    a(f"buffer_store_short v{AD+5}, v{PA}, {sr(S_OUT,4)}, s3 offen {OP}")
    E = 148
    for j in range(8): a(f"v_pk_mul_f32 {vr(E+2*j,2)}, {vr(DO+2*j,2)}, s[4:5]")
    for j in range(16): a(f"v_exp_f32 v{E+j}, v{E+j}")
    for j in range(8): a(f"v_pk_add_f32 {vr(E+2*j,2)}, {vr(E+2*j,2)}, 1.0 op_sel_hi:[1,0]")
    for j in range(16): a(f"v_rcp_f32 v{E+j}, v{E+j}")
    for j in range(8):
        a(f"v_lshlrev_b32 v{E+16+2*j}, 16, v{HB+j}"); a(f"v_and_b32 v{E+17+2*j}, 0xffff0000, v{HB+j}")
    for j in range(8): a(f"v_pk_fma_f32 {vr(E+2*j,2)}, {vr(E+2*j,2)}, {vr(DO+2*j,2)}, {vr(E+16+2*j,2)}")
    for j in range(8): a(f"v_cvt_pk_bf16_f32 v{E+32+j}, v{E+2*j}, v{E+2*j+1}")
    a(f"buffer_store_dwordx4 {vr(E+32,4)}, v{HA}, {sr(S_OUT,4)}, 0 offen {OP}")
    a(f"buffer_store_dwordx4 {vr(E+36,4)}, v{HA}, {sr(S_OUT,4)}, 0 offen offset:16 {OP}")
    stamp(a, 17)
    if STAMP: a("s_waitcnt vmcnt(0)")
    stamp(a, 18)
    stamp_out(a)
    a("K_END:")
    a("s_endpgm")

def main():
    ref = open(f"cdna_kernels/{NAME}.s.ref").read().split("\n")
    head = [l for l in ref if l.startswith(";") and "@launch" not in l and not l.startswith("; Override") and not l.startswith("; grid=")]
    out = "\n".join(head) + "\n"
    if opt("aslist", 0): out += f"; @launch kernel={KN} grid=(256,1,1) block=(512,1,1) lds={LDS}\n"
    else: out += f"; @launch grid=(256,1,1) block=(512,1,1) lds={LDS}\n"
    out += '.amdgcn_target "amdgcn-amd-amdhsa--gfx950"\n.text\n'
    a = Asm(); gen(a)
    for b in a.check_edges(): print("EDGE HAZARD", b, file=sys.stderr)
    out += f".globl {KN}\n.p2align 8\n.type {KN},@function\n" + a.text()
    out += f""".section .rodata,"a"
.p2align 6
.amdhsa_kernel {KN}
  .amdhsa_next_free_vgpr 256
  .amdhsa_next_free_sgpr 102
  .amdhsa_accum_offset 256
  .amdhsa_group_segment_fixed_size 0
  .amdhsa_kernarg_size 88
  .amdhsa_user_sgpr_count 2
  .amdhsa_user_sgpr_kernarg_segment_ptr 1
  .amdhsa_system_sgpr_workgroup_id_x 1
  .amdhsa_float_denorm_mode_32 3
.end_amdhsa_kernel
"""
    open(sys.argv[1], "w").write(out)
main()
```
